```python
import torch

def _softmax(x, axis=-1):
    return torch.softmax(x, dim=axis)
def _gelu(x):
    return torch.nn.functional.gelu(x, approximate="tanh")
def _silu(x):
    return torch.nn.functional.silu(x)
def _sigmoid(x):
    return torch.sigmoid(x)
def _layernorm(x, axis=-1, eps=1e-5):
    m = x.mean(dim=axis, keepdim=True)
    v = x.var(dim=axis, keepdim=True, unbiased=False)
    return (x - m) / torch.sqrt(v + eps)
def _scatter_add(tgt, idx, src, axis=0):
    return tgt.clone().index_add_(axis, idx, src)
def _segment_sum(src, seg, n):
    out = torch.zeros((n,) + src.shape[1:], dtype=src.dtype)
    return out.index_add_(0, seg, src)
def _pad(x, pw):
    flat = tuple(v for pair in reversed(pw) for v in pair)
    return torch.nn.functional.pad(x, flat)

kernel_name = 'concat_heads__gqa_block_cached__gqa_block_cached__decode'

def setup_inputs():

    _w = (lambda a: (lambda t: t.to(torch.bfloat16) if t.is_floating_point() else t)(torch.as_tensor(a)))
    def _A_setup():
        B, Sq, D = 8, 1, 512
        Hq, Hkv, Sk, Dh = 32, 8, 8192, 128
        assert Hq % Hkv == 0, (Hq, Hkv)
        return {
            "x": _w((lambda *s: torch.randn(*s, dtype=torch.bfloat16) * 0.8)(B, Sq, D)),
            "k_cache": _w((lambda *s: torch.randn(*s, dtype=torch.bfloat16) * 0.8)(B, Hkv, Sk, Dh)),
            "v_cache": _w((lambda *s: torch.randn(*s, dtype=torch.bfloat16) * 0.05)(B, Hkv, Sk, Dh)),
            "wq": _w((lambda *s: torch.randn(*s, dtype=torch.bfloat16) * 0.8)(D, Hq * Dh) * (D ** -0.5)),
            "wo": _w((lambda *s: torch.randn(*s, dtype=torch.bfloat16) * 0.05)(Hq * Dh, D) * ((Hq * Dh) ** -0.5)),
        }
    _A_in = _A_setup()

    def _B_setup():
        B, Sq, D = 8, 1, 512
        Hq, Hkv, Sk, Dh = 32, 8, 8192, 128
        assert Hq % Hkv == 0, (Hq, Hkv)
        return {
            "x": _w((lambda *s: torch.randn(*s, dtype=torch.bfloat16) * 0.8)(B, Sq, D)),
            "k_cache": _w((lambda *s: torch.randn(*s, dtype=torch.bfloat16) * 0.8)(B, Hkv, Sk, Dh)),
            "v_cache": _w((lambda *s: torch.randn(*s, dtype=torch.bfloat16) * 0.05)(B, Hkv, Sk, Dh)),
            "wq": _w((lambda *s: torch.randn(*s, dtype=torch.bfloat16) * 0.8)(D, Hq * Dh) * (D ** -0.5)),
            "wo": _w((lambda *s: torch.randn(*s, dtype=torch.bfloat16) * 0.05)(Hq * Dh, D) * ((Hq * Dh) ** -0.5)),
        }
    _B_in = _B_setup()

    return {
        "A_x": _A_in["x"],
        "A_k_cache": _A_in["k_cache"],
        "A_v_cache": _A_in["v_cache"],
        "A_wq": _A_in["wq"],
        "A_wo": _A_in["wo"],
        "B_x": _B_in["x"],
        "B_k_cache": _B_in["k_cache"],
        "B_v_cache": _B_in["v_cache"],
        "B_wq": _B_in["wq"],
        "B_wo": _B_in["wo"],
    }

def reference(A_x, A_k_cache, A_v_cache, A_wq, A_wo, B_x, B_k_cache, B_v_cache, B_wq, B_wo):
    def _A_ref(x, k_cache, v_cache, wq, wo):
        B, Sq, D = x.shape
        Hq, Dh = 32, 128
        Hkv = k_cache.shape[1]
        rep = Hq // Hkv
        q = (lambda x, *d: x.permute(*d))((x @ wq).reshape(B, Sq, Hq, Dh), 0, 2, 1, 3)
        k = (lambda x, n, axis: torch.repeat_interleave(x, n, dim=axis))(k_cache, rep, axis=1)
        v = (lambda x, n, axis: torch.repeat_interleave(x, n, dim=axis))(v_cache, rep, axis=1)
        scores = torch.einsum("bhqd,bhkd->bhqk", q, k) * (Dh ** -0.5)
        p = _softmax(scores, axis=-1)
        o = torch.einsum("bhqk,bhkd->bhqd", p, v)
        return (lambda x, *d: x.permute(*d))(o, 0, 2, 1, 3).reshape(B, Sq, Hq * Dh) @ wo

    def _B_ref(x, k_cache, v_cache, wq, wo):
        B, Sq, D = x.shape
        Hq, Dh = 32, 128
        Hkv = k_cache.shape[1]
        rep = Hq // Hkv
        q = (lambda x, *d: x.permute(*d))((x @ wq).reshape(B, Sq, Hq, Dh), 0, 2, 1, 3)
        k = (lambda x, n, axis: torch.repeat_interleave(x, n, dim=axis))(k_cache, rep, axis=1)
        v = (lambda x, n, axis: torch.repeat_interleave(x, n, dim=axis))(v_cache, rep, axis=1)
        scores = torch.einsum("bhqd,bhkd->bhqk", q, k) * (Dh ** -0.5)
        p = _softmax(scores, axis=-1)
        o = torch.einsum("bhqk,bhkd->bhqd", p, v)
        return (lambda x, *d: x.permute(*d))(o, 0, 2, 1, 3).reshape(B, Sq, Hq * Dh) @ wo

    a = _A_ref(A_x, A_k_cache, A_v_cache, A_wq, A_wo)
    b = _B_ref(B_x, B_k_cache, B_v_cache, B_wq, B_wo)
    return torch.concatenate([a, b], axis=-1)
```

```python
import sys, math, struct

NAME = "concat_heads__gqa_block_cached__gqa_block_cached__decode"

def f2u(f):
    return struct.unpack("<I", struct.pack("<f", f))[0]

class Cfg:
    NW = 8
    NSPLIT = 2
    NT = ""
    INTERLEAVE = 0

WS_Q = 0x000000
WS_O = 0x100000
WS_ML = 0x200000
WS_ACC = 0x210000

HEADER = """; Kernarg layout for this problem (104 bytes, ptrs only, base s[0:1]):
;   offset  80: d_out     shape=(8, 1, 1024) dtype=bfloat16 (2 bytes/elem)
"""

class Emitter:
    def __init__(self):
        self.lines = []
    def __call__(self, s):
        if s.startswith("buffer_") and "offset:" in s:
            o = int(s.split("offset:")[1].split()[0])
            assert 0 <= o <= 4095, s
        if s.startswith("ds_") and "offset:" in s:
            o = int(s.split("offset:")[1].split()[0])
            assert 0 <= o <= 65535, s
        self.lines.append("    " + s)
    def label(self, s):
        self.lines.append(s + ":")
    def raw(self, s):
        self.lines.append(s)
    def text(self):
        return "\n".join(self.lines) + "\n"

def vr(b, n):
    return f"v[{b}:{b+n-1}]" if n > 1 else f"v{b}"

def kernel_begin(e, name):
    e.raw(f".globl {name}")
    e.raw(".p2align 8")
    e.raw(f".type {name},@function")
    e.label(name)

def kernel_desc(e, name, nv, ns=102):
    acc = (nv + 3) // 4 * 4
    e.raw(f".amdhsa_kernel {name}")
    e.raw(f"  .amdhsa_next_free_vgpr {nv}")
    e.raw(f"  .amdhsa_next_free_sgpr {ns}")
    e.raw(f"  .amdhsa_accum_offset {acc}")
    e.raw("  .amdhsa_group_segment_fixed_size 0")
    e.raw("  .amdhsa_kernarg_size 104")
    e.raw("  .amdhsa_user_sgpr_count 2")
    e.raw("  .amdhsa_user_sgpr_kernarg_segment_ptr 1")
    e.raw("  .amdhsa_system_sgpr_workgroup_id_x 1")
    e.raw("  .amdhsa_float_denorm_mode_32 3")
    e.raw(".end_amdhsa_kernel")

def srd(e, d, ptr_lo, ptr_hi, nbytes):
    e(f"s_mov_b32 s{d}, s{ptr_lo}")
    e(f"s_and_b32 s{d+1}, s{ptr_hi}, 0xffff")
    e(f"s_mov_b32 s{d+2}, {nbytes}")
    e(f"s_mov_b32 s{d+3}, 0x00020000")

def perm_mfma(e, src, tmp, acc, afrag, selLo, selHi, first=False):
    for i in range(8):
        w = i >> 1
        sel = selHi if (i & 1) else selLo
        for tp in range(4):
            a = src + 4 * (2 * tp) + w
            b = src + 4 * (2 * tp + 1) + w
            e(f"v_perm_b32 v{tmp + 4*i + tp}, v{b}, v{a}, s{sel}")
        if i >= 1:
            j = i - 1
            c = "0" if first else vr(acc + 4*j, 4)
            e(f"v_mfma_f32_16x16x32_bf16 {vr(acc+4*j,4)}, {vr(afrag,4)}, {vr(tmp+4*j,4)}, {c}")
    e("s_nop 1")
    j = 7
    c = "0" if first else vr(acc + 4*j, 4)
    e(f"v_mfma_f32_16x16x32_bf16 {vr(acc+4*j,4)}, {vr(afrag,4)}, {vr(tmp+4*j,4)}, {c}")

def gen_qproj(e):
    name = "qproj_kernel"
    kernel_begin(e, name)
    e("s_cmp_ge_u32 s2, 256")
    e("s_cbranch_scc1 L_q_end")
    e("s_lshr_b32 s3, s2, 7")
    e("s_mul_i32 s4, s3, 40")
    e("s_add_u32 s6, s0, s4")
    e("s_addc_u32 s7, s1, 0")
    e("s_load_dwordx2 s[8:9], s[6:7], 0")
    e("s_load_dwordx2 s[10:11], s[6:7], 24")
    e("s_load_dwordx2 s[12:13], s[0:1], 96")
    e("s_lshr_b32 s14, s2, 2")
    e("s_and_b32 s14, s14, 31")
    e("s_and_b32 s15, s2, 3")
    e("v_and_b32 v1, 63, v0")
    e("v_lshrrev_b32 v2, 6, v0")
    e("v_and_b32 v3, 15, v1")
    e("v_lshrrev_b32 v4, 4, v1")
    e("s_lshl_b32 s16, s15, 7")
    e("v_lshl_add_u32 v5, v2, 5, s16")
    e("v_lshl_add_u32 v5, v4, 3, v5")
    e("s_mov_b32 s40, 0x05040100")
    e("s_mov_b32 s41, 0x07060302")
    for t in range(1, 8):
        e(f"s_mov_b32 s{41+t}, {t*8192}")
    e("s_waitcnt lgkmcnt(0)")
    srd(e, 20, 8, 9, 8192)
    srd(e, 24, 10, 11, 4194304)
    srd(e, 28, 12, 13, 0x220000)
    e("v_lshlrev_b32 v6, 10, v3")
    e("v_lshl_add_u32 v6, v5, 1, v6")
    e("buffer_load_dwordx4 v[12:15], v6, s[20:23], 0 offen")
    e("v_lshlrev_b32 v7, 13, v5")
    e("v_lshl_add_u32 v7, v3, 4, v7")
    e("s_lshl_b32 s17, s14, 8")
    e("v_add_u32 v7, s17, v7")
    for t in range(8):
        so = "0" if t == 0 else f"s{41+t}"
        e(f"buffer_load_dwordx4 {vr(16+4*t,4)}, v7, s[24:27], {so} offen")
    e("s_cmp_ge_u32 s2, 8")
    e("s_cbranch_scc1 L_q_nozero")
    e("v_mov_b32 v8, 0")
    e("v_mov_b32 v9, 0")
    e("v_mov_b32 v10, 0")
    e("v_mov_b32 v11, 0")
    e("s_lshl_b32 s18, s2, 12")
    e(f"s_add_u32 s18, s18, {WS_ACC}")
    e("v_lshlrev_b32 v5, 4, v0")
    e("buffer_store_dwordx4 v[8:11], v5, s[28:31], s18 offen")
    e.label("L_q_nozero")
    e("s_waitcnt vmcnt(0)")
    perm_mfma(e, 16, 48, 80, 12, 40, 41, first=True)
    e("v_lshlrev_b32 v5, 12, v2")
    e("v_lshl_add_u32 v5, v4, 11, v5")
    e("v_lshl_add_u32 v5, v3, 5, v5")
    e("s_nop 7")
    e("s_mov_b64 s[34:35], exec")
    e("s_mov_b32 exec_lo, -1")
    e("s_mov_b32 exec_hi, 0")
    for i in range(8):
        for r in range(4):
            e(f"ds_write_b32 v5, v{80+4*i+r} offset:{r*512+i*4}")
    e("s_mov_b64 exec, s[34:35]")
    e("s_waitcnt lgkmcnt(0)")
    e("s_barrier")
    e("v_lshlrev_b32 v5, 4, v0")
    for w in range(4):
        e(f"ds_read_b128 {vr(16+4*w,4)}, v5 offset:{w*4096}")
    e("s_waitcnt lgkmcnt(0)")
    for k in range(4):
        e(f"v_add_f32 v{16+k}, v{16+k}, v{20+k}")
        e(f"v_add_f32 v{24+k}, v{24+k}, v{28+k}")
    for k in range(4):
        e(f"v_add_f32 v{16+k}, v{16+k}, v{24+k}")
    e("v_lshrrev_b32 v6, 5, v0")
    e("v_and_b32 v7, 31, v0")
    e("v_lshlrev_b32 v6, 14, v6")
    e("v_lshl_add_u32 v6, v7, 4, v6")
    e("s_lshl_b32 s18, s15, 1")
    e("s_add_u32 s18, s18, s3")
    e("s_lshl_b32 s18, s18, 17")
    e("s_lshl_b32 s19, s14, 9")
    e("s_add_u32 s18, s18, s19")
    e(f"s_add_u32 s18, s18, {WS_Q}")
    e("buffer_store_dwordx4 v[16:19], v6, s[28:31], s18 offen")
    e.label("L_q_end")
    e("s_endpgm")
    return name, 112

def gen_attn(e, cfg):
    name = "attn_kernel"
    NW, NSPLIT = cfg.NW, cfg.NSPLIT
    NWG = 128 * NSPLIT
    KEYS_WG = 8192 // NSPLIT
    KEYS_W = KEYS_WG // NW
    NIT = KEYS_W // 32
    assert NIT % 2 == 0
    cscale = (128 ** -0.5) * math.log2(math.e)
    VKO0, VKO1, VVO0, VVO1 = 1, 2, 3, 4
    VM, VL, VMC, VT, VT2, VD = 5, 6, 7, 8, 9, 10
    Q = 12
    S = 28
    P = 36
    O = 40
    KB = [72, 104]
    VB = [136, 168]
    TMP = 200
    NV = 232
    LDS_O = 0
    LDS_ML = NW * 2048
    LDS_Q = LDS_ML + NW * 32
    LDS_TOTAL = LDS_Q + 1024
    kernel_begin(e, name)
    e(f"s_cmp_ge_u32 s2, {NWG}")
    e("s_cbranch_scc1 L_a_end")
    lg = int(math.log2(NSPLIT))
    e(f"s_lshr_b32 s3, s2, {6+lg}")
    e(f"s_lshr_b32 s14, s2, {lg}")
    e("s_and_b32 s14, s14, 63")
    e(f"s_and_b32 s15, s2, {NSPLIT-1}")
    e("s_mul_i32 s4, s3, 40")
    e("s_add_u32 s6, s0, s4")
    e("s_addc_u32 s7, s1, 0")
    e("s_load_dwordx4 s[8:11], s[6:7], 8")
    e("s_load_dwordx2 s[12:13], s[0:1], 96")
    e("v_and_b32 v11, 63, v0")
    e("v_lshrrev_b32 v5, 6, v0")
    e("s_nop 0")
    e("v_readfirstlane_b32 s16, v5")
    e("v_and_b32 v6, 15, v11")
    e("v_lshrrev_b32 v7, 4, v11")
    e("v_and_b32 v8, 3, v6")
    e("v_lshrrev_b32 v9, 2, v6")
    e("v_lshl_add_u32 v8, v8, 2, v9")
    e("v_lshlrev_b32 v8, 8, v8")
    e(f"v_lshl_add_u32 v{VKO0}, v7, 4, v8")
    e(f"v_add_u32 v{VKO1}, 0x1000, v{VKO0}")
    e(f"v_lshlrev_b32 v{VVO0}, 4, v11")
    e(f"v_add_u32 v{VVO1}, 0x1000, v{VVO0}")
    e("s_mov_b32 s40, 0x05040100")
    e("s_mov_b32 s41, 0x07060302")
    e(f"s_mov_b32 s42, {f2u(cscale):#x}")
    e("s_lshl_b32 s17, s14, 21")
    e(f"s_mul_i32 s18, s15, {KEYS_WG*256}")
    e("s_add_u32 s17, s17, s18")
    e("s_waitcnt lgkmcnt(0)")
    e("s_add_u32 s8, s8, s17")
    e("s_addc_u32 s9, s9, 0")
    e("s_add_u32 s10, s10, s17")
    e("s_addc_u32 s11, s11, 0")
    srd(e, 20, 8, 9, KEYS_WG * 256)
    srd(e, 24, 10, 11, KEYS_WG * 256)
    srd(e, 28, 12, 13, 0x220000)
    e("s_lshl_b32 s18, s14, 11")
    e("s_lshl_b32 s19, s3, 17")
    e("s_add_u32 s18, s18, s19")
    e(f"s_add_u32 s18, s18, {WS_Q}")
    nq = 512 // (NW * 64)
    assert nq >= 1
    e("v_lshlrev_b32 v8, 2, v0")
    qt = TMP
    for ks in range(4):
        for u in range(nq):
            e(f"buffer_load_dword v{qt + ks*nq + u}, v8, s[28:31], s18 offen offset:{u*NW*64*4}")
        if ks < 3:
            e("s_add_u32 s18, s18, 0x40000")
    if cfg.INTERLEAVE:
        e("s_lshl_b32 s44, s16, 13")
        step = NW * 8192
    else:
        e(f"s_mul_i32 s44, s16, {KEYS_W*256}")
        step = 8192
    def loadK(st, soff):
        for T in range(2):
            for j in range(4):
                vo = VKO1 if T else VKO0
                e(f"buffer_load_dwordx4 {vr(KB[st]+16*T+4*j,4)}, v{vo}, s[20:23], {soff} offen offset:{j*64}{cfg.NT}")
    def loadV(st, soff):
        for t in range(8):
            vo = VVO1 if t >= 4 else VVO0
            e(f"buffer_load_dwordx4 {vr(VB[st]+4*t,4)}, v{vo}, s[24:27], {soff} offen offset:{(t&3)*1024}{cfg.NT}")
    loadK(0, "s44"); loadV(0, "s44")
    e(f"s_add_u32 s45, s44, {step}")
    loadK(1, "s45"); loadV(1, "s45")
    e(f"s_add_u32 s44, s45, {step}")
    for i in range(32):
        e(f"v_mov_b32 v{O+i}, 0")
    for i in range(16):
        e(f"v_mov_b32 v{Q+i}, 0")
    e("s_waitcnt vmcnt(32)")
    for u in range(nq):
        e(f"v_add_f32 v{qt+u}, v{qt+u}, v{qt+nq+u}")
        e(f"v_add_f32 v{qt+2*nq+u}, v{qt+2*nq+u}, v{qt+3*nq+u}")
        e(f"v_add_f32 v{qt+u}, v{qt+u}, v{qt+2*nq+u}")
        e(f"v_cvt_pk_bf16_f32 v{qt+u}, v{qt+u}, v{qt+u}")
    e("v_lshlrev_b32 v8, 1, v0")
    for u in range(nq):
        e(f"ds_write_b16 v8, v{qt+u} offset:{LDS_Q + u*NW*64*2}")
    e("s_waitcnt lgkmcnt(0)")
    e("s_barrier")
    e("v_lshlrev_b32 v8, 8, v6")
    e("v_lshl_add_u32 v8, v7, 4, v8")
    e("v_cmp_gt_u32 vcc, 4, v6")
    e("s_and_saveexec_b64 s[34:35], vcc")
    for j in range(4):
        e(f"ds_read_b128 {vr(Q+4*j,4)}, v8 offset:{LDS_Q + j*64}")
    e("s_mov_b64 exec, s[34:35]")
    e(f"s_mov_b32 s46, {NIT//2}")
    e(f"v_mov_b32 v{VM}, 0xff800000")
    e(f"v_mov_b32 v{VL}, 0")
    e(f"v_mov_b32 v{VMC}, 0")
    e("s_waitcnt lgkmcnt(0)")
    endoff = KEYS_WG * 256 if cfg.INTERLEAVE else None
    e.label("L_a_loop")
    for st in range(2):
        K, V = KB[st], VB[st]
        e("s_waitcnt vmcnt(24)")
        for j in range(4):
            for T in range(2):
                c = "0" if j == 0 else vr(S+4*T, 4)
                e(f"v_mfma_f32_16x16x32_bf16 {vr(S+4*T,4)}, {vr(K+16*T+4*j,4)}, {vr(Q+4*j,4)}, {c}")
        e("s_cmp_gt_u32 s46, 1")
        e("s_cselect_b32 s47, s44, 0x40000000")
        loadK(st, "s47")
        e(f"v_max3_f32 v{VT}, v{S}, v{S+1}, v{S+2}")
        e(f"v_max3_f32 v{VT}, v{VT}, v{S+3}, v{S+4}")
        e(f"v_max3_f32 v{VT}, v{VT}, v{S+5}, v{S+6}")
        e(f"v_max3_f32 v{VT}, v{VT}, v{S+7}, v{VM}")
        e(f"v_mov_b32 v{VT2}, v{VT}")
        e("s_nop 1")
        e(f"v_permlane16_swap_b32 v{VT}, v{VT2}")
        e("s_nop 0")
        e(f"v_max_f32 v{VT}, v{VT}, v{VT2}")
        e(f"v_mov_b32 v{VT2}, v{VT}")
        e("s_nop 1")
        e(f"v_permlane32_swap_b32 v{VT}, v{VT2}")
        e("s_nop 0")
        e(f"v_max_f32 v{VT}, v{VT}, v{VT2}")
        e(f"v_cmp_gt_f32 vcc, v{VT}, v{VM}")
        e(f"s_cbranch_vccz L_a_skip{st}")
        e(f"v_sub_f32 v{VD}, v{VM}, v{VT}")
        e(f"v_mul_f32 v{VD}, s42, v{VD}")
        e(f"v_exp_f32 v{VD}, v{VD}")
        e(f"v_mov_b32 v{VM}, v{VT}")
        e(f"v_mul_f32 v{VMC}, s42, v{VT}")
        e(f"v_mul_f32 v{VL}, v{VL}, v{VD}")
        for h in range(4):
            e(f"v_readlane_b32 s{48+h}, v{VD}, {h}")
        e("s_nop 1")
        for i in range(8):
            for r in range(4):
                e(f"v_mul_f32 v{O+4*i+r}, s{48+r}, v{O+4*i+r}")
        e.label(f"L_a_skip{st}")
        for i in range(8):
            e(f"v_fma_f32 v{S+i}, v{S+i}, s42, -v{VMC}")
        for i in range(8):
            e(f"v_exp_f32 v{S+i}, v{S+i}")
        e("s_nop 0")
        e(f"v_add_f32 v{VT}, v{S}, v{S+1}")
        e(f"v_add_f32 v{VT2}, v{S+2}, v{S+3}")
        e(f"v_add_f32 v{VD}, v{S+4}, v{S+5}")
        e(f"v_add_f32 v{VL}, v{VL}, v{VT}")
        e(f"v_add_f32 v{VT}, v{S+6}, v{S+7}")
        e(f"v_add_f32 v{VT2}, v{VT2}, v{VD}")
        e(f"v_add_f32 v{VL}, v{VL}, v{VT}")
        e(f"v_add_f32 v{VL}, v{VL}, v{VT2}")
        for k in range(4):
            e(f"v_cvt_pk_bf16_f32 v{P+k}, v{S+2*k}, v{S+2*k+1}")
        e("s_waitcnt vmcnt(24)")
        perm_mfma(e, V, TMP, O, P, 40, 41)
        loadV(st, "s47")
        e(f"s_add_u32 s44, s44, {step}")
    e("s_sub_u32 s46, s46, 1")
    e("s_cmp_lg_u32 s46, 0")
    e("s_cbranch_scc1 L_a_loop")
    e(f"v_mov_b32 v{VT}, v{VL}")
    e(f"v_mov_b32 v{VT2}, v{VL}")
    e("s_nop 1")
    e(f"v_permlane16_swap_b32 v{VT}, v{VT2}")
    e("s_nop 0")
    e(f"v_add_f32 v{VT}, v{VT}, v{VT2}")
    e(f"v_mov_b32 v{VT2}, v{VT}")
    e("s_nop 1")
    e(f"v_permlane32_swap_b32 v{VT}, v{VT2}")
    e("s_nop 0")
    e(f"v_add_f32 v{VL}, v{VT}, v{VT2}")
    e(f"v_mov_b32 v{VT}, v{VM}")
    e(f"v_mov_b32 v{VT2}, v{VL}")
    e("v_and_b32 v11, 63, v0")
    e("v_lshlrev_b32 v12, 3, v11")
    e("s_lshl_b32 s18, s16, 5")
    e(f"s_add_u32 s18, s18, {LDS_ML}")
    e("v_add_u32 v12, s18, v12")
    e("v_lshlrev_b32 v13, 5, v11")
    e("s_lshl_b32 s18, s16, 11")
    e("v_add_u32 v13, s18, v13")
    e("s_nop 4")
    e("s_mov_b64 s[34:35], exec")
    e("s_mov_b64 exec, 0xf")
    e(f"ds_write_b64 v12, v[{VT}:{VT2}]")
    e("s_mov_b64 exec, 0xffff")
    for i in range(8):
        for r in range(4):
            e(f"ds_write_b32 v13, v{O+4*i+r} offset:{LDS_O + r*512 + i*4}")
    e("s_mov_b64 exec, s[34:35]")
    e("s_waitcnt vmcnt(0) lgkmcnt(0)")
    e("s_barrier")
    for u in range(nq):
        e(f"v_add_u32 v14, {u*NW*64}, v0")
        e("v_lshrrev_b32 v15, 7, v14")
        e("v_lshlrev_b32 v16, 3, v15")
        e("v_lshlrev_b32 v17, 2, v14")
        for w in range(NW):
            e(f"ds_read_b64 {vr(72+2*w,2)}, v16 offset:{LDS_ML + w*32}")
        for w in range(NW):
            e(f"ds_read_b32 v{104+w}, v17 offset:{LDS_O + w*2048}")
        e("s_waitcnt lgkmcnt(0)")
        e(f"v_max_f32 v18, v72, v74")
        for w in range(2, NW):
            e(f"v_max_f32 v18, v18, v{72+2*w}")
        e("v_mov_b32 v19, 0")
        e("v_mov_b32 v20, 0")
        for w in range(NW):
            e(f"v_sub_f32 v21, v{72+2*w}, v18")
            e("v_mul_f32 v21, s42, v21")
            e("v_exp_f32 v21, v21")
            e("s_nop 0")
            e(f"v_fmac_f32 v19, v21, v{73+2*w}")
            e(f"v_fmac_f32 v20, v21, v{104+w}")
        e("s_lshl_b32 s18, s3, 6")
        e("s_add_u32 s18, s18, s14")
        e(f"s_mul_i32 s19, s18, {4*NSPLIT*512}")
        e("s_lshl_b32 s36, s15, 9")
        e("s_add_u32 s19, s19, s36")
        e(f"s_add_u32 s19, s19, {WS_O}")
        e("v_and_b32 v22, 127, v14")
        e("v_lshlrev_b32 v22, 2, v22")
        e(f"v_mul_u32_u24 v23, {NSPLIT*512}, v15")
        e("v_add_u32 v22, v22, v23")
        e("buffer_store_dword v20, v22, s[28:31], s19 offen")
        e(f"s_mul_i32 s19, s18, {4*NSPLIT*8}")
        e("s_lshl_b32 s36, s15, 3")
        e("s_add_u32 s19, s19, s36")
        e(f"s_add_u32 s19, s19, {WS_ML}")
        e(f"v_mul_u32_u24 v23, {NSPLIT*8}, v15")
        e("v_and_b32 v22, 127, v14")
        e("v_cmp_eq_u32 vcc, 0, v22")
        e("s_and_saveexec_b64 s[34:35], vcc")
        e("buffer_store_dwordx2 v[18:19], v23, s[28:31], s19 offen")
        e("s_mov_b64 exec, s[34:35]")
    e.label("L_a_end")
    e("s_endpgm")
    return name, NV, LDS_TOTAL, NWG

def gen_oproj(e, cfg):
    name = "oproj_kernel"
    NSPLIT = cfg.NSPLIT
    cscale = (128 ** -0.5) * math.log2(math.e)
    kernel_begin(e, name)
    e("s_cmp_ge_u32 s2, 256")
    e("s_cbranch_scc1 L_o_end")
    e("s_lshr_b32 s3, s2, 7")
    e("s_lshr_b32 s14, s2, 5")
    e("s_and_b32 s14, s14, 3")
    e("s_and_b32 s15, s2, 31")
    e("s_mul_i32 s4, s3, 40")
    e("s_add_u32 s6, s0, s4")
    e("s_addc_u32 s7, s1, 0")
    e("s_load_dwordx2 s[8:9], s[6:7], 32")
    e("s_load_dwordx4 s[52:55], s[0:1], 80")
    e("s_load_dwordx2 s[12:13], s[0:1], 96")
    e("v_and_b32 v1, 63, v0")
    e("v_lshrrev_b32 v2, 6, v0")
    e("v_and_b32 v3, 15, v1")
    e("v_lshrrev_b32 v4, 4, v1")
    e("s_mov_b32 s40, 0x05040100")
    e("s_mov_b32 s41, 0x07060302")
    e(f"s_mov_b32 s42, {f2u(cscale):#x}")
    e("s_lshl_b32 s16, s15, 7")
    e("v_lshl_add_u32 v5, v2, 5, s16")
    e("v_lshl_add_u32 v5, v4, 3, v5")
    e("s_waitcnt lgkmcnt(0)")
    srd(e, 24, 8, 9, 4194304)
    srd(e, 28, 12, 13, 0x220000)
    OP_P = 8 * 32 * NSPLIT * 512
    ML_P = 8 * 32 * NSPLIT * 8
    e(f"s_mul_i32 s17, s3, {OP_P}")
    e(f"s_add_u32 s17, s17, {WS_O}")
    e("s_add_u32 s18, s12, s17")
    e("s_addc_u32 s19, s13, 0")
    srd(e, 20, 18, 19, OP_P)
    e(f"s_mul_i32 s17, s3, {ML_P}")
    e(f"s_add_u32 s17, s17, {WS_ML}")
    e("s_add_u32 s18, s12, s17")
    e("s_addc_u32 s19, s13, 0")
    srd(e, 56, 18, 19, ML_P)
    e("v_lshlrev_b32 v7, 10, v5")
    e("v_lshl_add_u32 v7, v3, 4, v7")
    e("s_lshl_b32 s17, s14, 8")
    e("v_add_u32 v7, s17, v7")
    e("v_add_u32 v8, 0x1000, v7")
    for t in range(8):
        vo = 8 if t >= 4 else 7
        e(f"buffer_load_dwordx4 {vr(16+4*t,4)}, v{vo}, s[24:27], 0 offen offset:{(t&3)*1024}")
    e(f"v_mul_u32_u24 v9, {32*NSPLIT*512}, v3")
    e("v_lshl_add_u32 v9, v2, 7, v9")
    e("v_lshl_add_u32 v9, v4, 5, v9")
    e(f"s_mul_i32 s17, s15, {NSPLIT*512}")
    PB = 112
    for s in range(NSPLIT):
        e(f"buffer_load_dwordx4 {vr(PB+8*s,4)}, v9, s[20:23], s17 offen offset:{s*512}")
        e(f"buffer_load_dwordx4 {vr(PB+8*s+4,4)}, v9, s[20:23], s17 offen offset:{s*512+16}")
    MB = PB + 8 * NSPLIT
    e(f"v_mul_u32_u24 v10, {32*NSPLIT*8}, v3")
    e(f"s_mul_i32 s17, s15, {NSPLIT*8}")
    for s in range(NSPLIT):
        e(f"buffer_load_dwordx2 {vr(MB+2*s,2)}, v10, s[56:59], s17 offen offset:{s*8}")
    e("s_waitcnt vmcnt(0)")
    e(f"v_mov_b32 v11, v{MB}")
    for s in range(1, NSPLIT):
        e(f"v_max_f32 v11, v11, v{MB+2*s}")
    for s in range(NSPLIT):
        e(f"v_sub_f32 v{MB+2*s}, v{MB+2*s}, v11")
        e(f"v_mul_f32 v{MB+2*s}, s42, v{MB+2*s}")
        e(f"v_exp_f32 v{MB+2*s}, v{MB+2*s}")
    e("s_nop 0")
    e(f"v_mul_f32 v11, v{MB}, v{MB+1}")
    for s in range(1, NSPLIT):
        e(f"v_fmac_f32 v11, v{MB+2*s}, v{MB+2*s+1}")
    e("v_rcp_f32 v11, v11")
    e("s_nop 0")
    for s in range(NSPLIT):
        e(f"v_mul_f32 v{MB+2*s}, v{MB+2*s}, v11")
    for k in range(8):
        e(f"v_mul_f32 v{PB+k}, v{PB+k}, v{MB}")
        for s in range(1, NSPLIT):
            e(f"v_fmac_f32 v{PB+k}, v{PB+8*s+k}, v{MB+2*s}")
    for k in range(4):
        e(f"v_cvt_pk_bf16_f32 v{12+k}, v{PB+2*k}, v{PB+2*k+1}")
    perm_mfma(e, 16, 48, 80, 12, 40, 41, first=True)
    e("v_lshlrev_b32 v5, 12, v2")
    e("v_lshl_add_u32 v5, v4, 11, v5")
    e("v_lshl_add_u32 v5, v3, 5, v5")
    e("s_nop 7")
    e("s_mov_b64 s[34:35], exec")
    e("s_mov_b32 exec_lo, -1")
    e("s_mov_b32 exec_hi, 0")
    for i in range(8):
        for r in range(4):
            e(f"ds_write_b32 v5, v{80+4*i+r} offset:{r*512+i*4}")
    e("s_mov_b64 exec, s[34:35]")
    e("s_waitcnt lgkmcnt(0)")
    e("s_barrier")
    e("v_lshlrev_b32 v5, 2, v0")
    for u in range(4):
        for w in range(4):
            e(f"ds_read_b32 v{16+4*u+w}, v5 offset:{w*4096+u*1024}")
    e("s_waitcnt lgkmcnt(0)")
    for u in range(4):
        e(f"v_add_f32 v{16+4*u}, v{16+4*u}, v{17+4*u}")
        e(f"v_add_f32 v{18+4*u}, v{18+4*u}, v{19+4*u}")
    for u in range(4):
        e(f"v_add_f32 v{16+4*u}, v{16+4*u}, v{18+4*u}")
    e("v_lshrrev_b32 v6, 7, v0")
    e("v_and_b32 v7, 127, v0")
    e("v_lshlrev_b32 v6, 12, v6")
    e("v_lshl_add_u32 v6, v7, 2, v6")
    e("s_lshl_b32 s17, s3, 11")
    e("s_lshl_b32 s18, s14, 9")
    e("s_add_u32 s17, s17, s18")
    e(f"s_add_u32 s17, s17, {WS_ACC}")
    e("s_mov_b32 s18, s17")
    for u in range(4):
        e(f"buffer_atomic_add_f32 v{16+4*u}, v6, s[28:31], s18 offen")
        if u < 3:
            e("s_add_u32 s18, s18, 8192")
    e("s_waitcnt vmcnt(0)")
    e("s_barrier")
    e("v_readfirstlane_b32 s19, v2")
    e("s_cmp_lg_u32 s19, 0")
    e("s_cbranch_scc1 L_o_end")
    srd(e, 60, 54, 55, 256)
    e("s_lshl_b32 s19, s3, 2")
    e("s_add_u32 s19, s19, s14")
    e("s_lshl_b32 s19, s19, 2")
    e("v_mov_b32 v8, 1")
    e("v_mov_b32 v9, 0")
    e("s_mov_b64 exec, 1")
    e("buffer_atomic_add v8, v9, s[60:63], s19 offen sc0")
    e("s_waitcnt vmcnt(0)")
    e("s_mov_b64 exec, -1")
    e("v_readfirstlane_b32 s19, v8")
    e("s_cmp_lg_u32 s19, 31")
    e("s_cbranch_scc1 L_o_end")
    e("v_lshlrev_b32 v6, 3, v1")
    for i in range(8):
        e(f"v_mov_b32 v{16+2*i}, 0")
        e(f"v_mov_b32 v{17+2*i}, 0")
    e("s_mov_b32 s18, s17")
    for i in range(8):
        e(f"buffer_atomic_add_f32 v{16+2*i}, v6, s[28:31], s18 offen sc0")
        e(f"buffer_atomic_add_f32 v{17+2*i}, v6, s[28:31], s18 offen offset:4 sc0")
        if i < 7:
            e("s_add_u32 s18, s18, 4096")
    srd(e, 64, 52, 53, 16384)
    e("s_lshl_b32 s18, s3, 10")
    e("s_lshl_b32 s19, s14, 8")
    e("s_add_u32 s18, s18, s19")
    e("v_lshlrev_b32 v7, 2, v1")
    e("s_waitcnt vmcnt(0)")
    for i in range(8):
        e(f"v_cvt_pk_bf16_f32 v{16+2*i}, v{16+2*i}, v{17+2*i}")
        e(f"buffer_store_dword v{16+2*i}, v7, s[64:67], s18 offen")
        if i < 7:
            e("s_add_u32 s18, s18, 2048")
    e.label("L_o_end")
    e("s_endpgm")
    return name, 144

def main():
    cfg = Cfg()
    out = f"cdna_kernels/{NAME}.s"
    for a in sys.argv[1:]:
        if "=" in a:
            k, v = a.split("=", 1)
            if k == "out":
                out = v
            elif k == "NT":
                cfg.NT = " " + v if v else ""
            else:
                setattr(cfg, k, int(v))
    e = Emitter()
    e.raw('.amdgcn_target "amdgcn-amd-amdhsa--gfx950"')
    e.raw(".text")
    n1, nv1 = gen_qproj(e)
    n2, nv2, lds2, nwg2 = gen_attn(e, cfg)
    n3, nv3 = gen_oproj(e, cfg)
    e.raw('.section .rodata,"a"')
    for n, nv in ((n1, nv1), (n2, nv2), (n3, nv3)):
        e.raw(".p2align 6")
        kernel_desc(e, n, nv)
    hdr = HEADER
    hdr += f"; @launch kernel={n1} grid=(256,1,1) block=(256,1,1) lds=16384\n"
    hdr += f"; @launch kernel={n2} grid=({nwg2},1,1) block=({cfg.NW*64},1,1) lds={lds2}\n"
    hdr += f"; @launch kernel={n3} grid=(256,1,1) block=(256,1,1) lds=16384\n"
    open(out, "w").write(hdr + e.text())

main()
```

```python
import sys, math, struct

NAME = "concat_heads__gqa_block_cached__gqa_block_cached__decode"

def f2u(f):
    return struct.unpack("<I", struct.pack("<f", f))[0]

class Cfg:
    NW = 8
    NSPLIT = 2
    NT = ""
    FUSED = 0
    INTERLEAVE = 0

WS_Q = 0x000000
WS_O = 0x100000
WS_ML = 0x200000
WS_ACC = 0x210000

HEADER = """; Kernarg layout for this problem (104 bytes, ptrs only, base s[0:1]):
;   offset  80: d_out     shape=(8, 1, 1024) dtype=bfloat16 (2 bytes/elem)
"""

class Emitter:
    def __init__(self):
        self.lines = []
    def __call__(self, s):
        if s.startswith("buffer_") and "offset:" in s:
            o = int(s.split("offset:")[1].split()[0])
            assert 0 <= o <= 4095, s
        if s.startswith("ds_") and "offset:" in s:
            o = int(s.split("offset:")[1].split()[0])
            assert 0 <= o <= 65535, s
        self.lines.append("    " + s)
    def label(self, s):
        self.lines.append(s + ":")
    def raw(self, s):
        self.lines.append(s)
    def text(self):
        return "\n".join(self.lines) + "\n"

def vr(b, n):
    return f"v[{b}:{b+n-1}]" if n > 1 else f"v{b}"

def kernel_begin(e, name):
    e.raw(f".globl {name}")
    e.raw(".p2align 8")
    e.raw(f".type {name},@function")
    e.label(name)

def kernel_desc(e, name, nv, ns=102):
    acc = (nv + 3) // 4 * 4
    e.raw(f".amdhsa_kernel {name}")
    e.raw(f"  .amdhsa_next_free_vgpr {nv}")
    e.raw(f"  .amdhsa_next_free_sgpr {ns}")
    e.raw(f"  .amdhsa_accum_offset {acc}")
    e.raw("  .amdhsa_group_segment_fixed_size 0")
    e.raw("  .amdhsa_kernarg_size 104")
    e.raw("  .amdhsa_user_sgpr_count 2")
    e.raw("  .amdhsa_user_sgpr_kernarg_segment_ptr 1")
    e.raw("  .amdhsa_system_sgpr_workgroup_id_x 1")
    e.raw("  .amdhsa_float_denorm_mode_32 3")
    e.raw(".end_amdhsa_kernel")

def srd(e, d, ptr_lo, ptr_hi, nbytes):
    e(f"s_mov_b32 s{d}, s{ptr_lo}")
    e(f"s_and_b32 s{d+1}, s{ptr_hi}, 0xffff")
    e(f"s_mov_b32 s{d+2}, {nbytes}")
    e(f"s_mov_b32 s{d+3}, 0x00020000")

def perm_mfma(e, src, tmp, acc, afrag, selLo, selHi, first=False):
    for i in range(8):
        w = i >> 1
        sel = selHi if (i & 1) else selLo
        for tp in range(4):
            a = src + 4 * (2 * tp) + w
            b = src + 4 * (2 * tp + 1) + w
            e(f"v_perm_b32 v{tmp + 4*i + tp}, v{b}, v{a}, s{sel}")
        if i >= 1:
            j = i - 1
            c = "0" if first else vr(acc + 4*j, 4)
            e(f"v_mfma_f32_16x16x32_bf16 {vr(acc+4*j,4)}, {vr(afrag,4)}, {vr(tmp+4*j,4)}, {c}")
    e("s_nop 1")
    j = 7
    c = "0" if first else vr(acc + 4*j, 4)
    e(f"v_mfma_f32_16x16x32_bf16 {vr(acc+4*j,4)}, {vr(afrag,4)}, {vr(tmp+4*j,4)}, {c}")

def gen_qproj(e):
    name = "qproj_kernel"
    kernel_begin(e, name)
    e("s_cmp_ge_u32 s2, 256")
    e("s_cbranch_scc1 L_q_end")
    e("s_lshr_b32 s3, s2, 7")
    e("s_mul_i32 s4, s3, 40")
    e("s_add_u32 s6, s0, s4")
    e("s_addc_u32 s7, s1, 0")
    e("s_load_dwordx2 s[8:9], s[6:7], 0")
    e("s_load_dwordx2 s[10:11], s[6:7], 24")
    e("s_load_dwordx2 s[12:13], s[0:1], 96")
    e("s_lshr_b32 s14, s2, 2")
    e("s_and_b32 s14, s14, 31")
    e("s_and_b32 s15, s2, 3")
    e("v_and_b32 v1, 63, v0")
    e("v_lshrrev_b32 v2, 6, v0")
    e("v_and_b32 v3, 15, v1")
    e("v_lshrrev_b32 v4, 4, v1")
    e("s_lshl_b32 s16, s15, 7")
    e("v_lshl_add_u32 v5, v2, 5, s16")
    e("v_lshl_add_u32 v5, v4, 3, v5")
    e("s_mov_b32 s40, 0x05040100")
    e("s_mov_b32 s41, 0x07060302")
    for t in range(1, 8):
        e(f"s_mov_b32 s{41+t}, {t*8192}")
    e("s_waitcnt lgkmcnt(0)")
    srd(e, 20, 8, 9, 8192)
    srd(e, 24, 10, 11, 4194304)
    srd(e, 28, 12, 13, 0x220000)
    e("v_lshlrev_b32 v6, 10, v3")
    e("v_lshl_add_u32 v6, v5, 1, v6")
    e("buffer_load_dwordx4 v[12:15], v6, s[20:23], 0 offen")
    e("v_lshlrev_b32 v7, 13, v5")
    e("v_lshl_add_u32 v7, v3, 4, v7")
    e("s_lshl_b32 s17, s14, 8")
    e("v_add_u32 v7, s17, v7")
    for t in range(8):
        so = "0" if t == 0 else f"s{41+t}"
        e(f"buffer_load_dwordx4 {vr(16+4*t,4)}, v7, s[24:27], {so} offen")
    e("s_cmp_ge_u32 s2, 8")
    e("s_cbranch_scc1 L_q_nozero")
    e("v_mov_b32 v8, 0")
    e("v_mov_b32 v9, 0")
    e("v_mov_b32 v10, 0")
    e("v_mov_b32 v11, 0")
    e("s_lshl_b32 s18, s2, 12")
    e(f"s_add_u32 s18, s18, {WS_ACC}")
    e("v_lshlrev_b32 v5, 4, v0")
    e("buffer_store_dwordx4 v[8:11], v5, s[28:31], s18 offen")
    e.label("L_q_nozero")
    e("s_waitcnt vmcnt(0)")
    perm_mfma(e, 16, 48, 80, 12, 40, 41, first=True)
    e("v_lshlrev_b32 v5, 12, v2")
    e("v_lshl_add_u32 v5, v4, 11, v5")
    e("v_lshl_add_u32 v5, v3, 5, v5")
    e("s_nop 7")
    e("s_mov_b64 s[34:35], exec")
    e("s_mov_b32 exec_lo, -1")
    e("s_mov_b32 exec_hi, 0")
    for i in range(8):
        for r in range(4):
            e(f"ds_write_b32 v5, v{80+4*i+r} offset:{r*512+i*4}")
    e("s_mov_b64 exec, s[34:35]")
    e("s_waitcnt lgkmcnt(0)")
    e("s_barrier")
    e("v_lshlrev_b32 v5, 4, v0")
    for w in range(4):
        e(f"ds_read_b128 {vr(16+4*w,4)}, v5 offset:{w*4096}")
    e("s_waitcnt lgkmcnt(0)")
    for k in range(4):
        e(f"v_add_f32 v{16+k}, v{16+k}, v{20+k}")
        e(f"v_add_f32 v{24+k}, v{24+k}, v{28+k}")
    for k in range(4):
        e(f"v_add_f32 v{16+k}, v{16+k}, v{24+k}")
    e("v_lshrrev_b32 v6, 5, v0")
    e("v_and_b32 v7, 31, v0")
    e("v_lshlrev_b32 v6, 14, v6")
    e("v_lshl_add_u32 v6, v7, 4, v6")
    e("s_lshl_b32 s18, s15, 1")
    e("s_add_u32 s18, s18, s3")
    e("s_lshl_b32 s18, s18, 17")
    e("s_lshl_b32 s19, s14, 9")
    e("s_add_u32 s18, s18, s19")
    e(f"s_add_u32 s18, s18, {WS_Q}")
    e("buffer_store_dwordx4 v[16:19], v6, s[28:31], s18 offen")
    e.label("L_q_end")
    e("s_endpgm")
    return name, 112

def gen_attn(e, cfg):
    name = "attn_kernel"
    NW, NSPLIT = cfg.NW, cfg.NSPLIT
    NWG = 128 * NSPLIT
    KEYS_WG = 8192 // NSPLIT
    KEYS_W = KEYS_WG // NW
    NIT = KEYS_W // 32
    assert NIT % 2 == 0
    cscale = (128 ** -0.5) * math.log2(math.e)
    VKO0, VKO1, VVO0, VVO1 = 1, 2, 3, 4
    VM, VL, VMC, VT, VT2, VD = 5, 6, 7, 8, 9, 10
    Q = 12
    S = 28
    P = 36
    O = 40
    KB = [72, 104]
    VB = [136, 168]
    TMP = 200
    NV = 232
    LDS_O = 0
    LDS_ML = NW * 2048
    LDS_Q = LDS_ML + NW * 32
    LDS_TOTAL = LDS_Q + 1024
    kernel_begin(e, name)
    e(f"s_cmp_ge_u32 s2, {NWG}")
    e("s_cbranch_scc1 L_a_end")
    lg = int(math.log2(NSPLIT))
    e(f"s_lshr_b32 s3, s2, {6+lg}")
    e(f"s_lshr_b32 s14, s2, {lg}")
    e("s_and_b32 s14, s14, 63")
    e(f"s_and_b32 s15, s2, {NSPLIT-1}")
    e("s_mul_i32 s4, s3, 40")
    e("s_add_u32 s6, s0, s4")
    e("s_addc_u32 s7, s1, 0")
    e("s_load_dwordx4 s[8:11], s[6:7], 8")
    e("s_load_dwordx2 s[12:13], s[0:1], 96")
    e("v_and_b32 v11, 63, v0")
    e("v_lshrrev_b32 v5, 6, v0")
    e("s_nop 0")
    e("v_readfirstlane_b32 s16, v5")
    e("v_and_b32 v6, 15, v11")
    e("v_lshrrev_b32 v7, 4, v11")
    e("v_and_b32 v8, 3, v6")
    e("v_lshrrev_b32 v9, 2, v6")
    e("v_lshl_add_u32 v8, v8, 2, v9")
    e("v_lshlrev_b32 v8, 8, v8")
    e(f"v_lshl_add_u32 v{VKO0}, v7, 4, v8")
    e(f"v_add_u32 v{VKO1}, 0x1000, v{VKO0}")
    e(f"v_lshlrev_b32 v{VVO0}, 4, v11")
    e(f"v_add_u32 v{VVO1}, 0x1000, v{VVO0}")
    e("s_mov_b32 s40, 0x05040100")
    e("s_mov_b32 s41, 0x07060302")
    e(f"s_mov_b32 s42, {f2u(cscale):#x}")
    e("s_lshl_b32 s17, s14, 21")
    e(f"s_mul_i32 s18, s15, {KEYS_WG*256}")
    e("s_add_u32 s17, s17, s18")
    e("s_waitcnt lgkmcnt(0)")
    e("s_add_u32 s8, s8, s17")
    e("s_addc_u32 s9, s9, 0")
    e("s_add_u32 s10, s10, s17")
    e("s_addc_u32 s11, s11, 0")
    srd(e, 20, 8, 9, KEYS_WG * 256)
    srd(e, 24, 10, 11, KEYS_WG * 256)
    srd(e, 28, 12, 13, 0x220000)
    e("s_lshl_b32 s18, s14, 11")
    e("s_lshl_b32 s19, s3, 17")
    e("s_add_u32 s18, s18, s19")
    e(f"s_add_u32 s18, s18, {WS_Q}")
    nq = 512 // (NW * 64)
    assert nq >= 1
    e("v_lshlrev_b32 v8, 2, v0")
    qt = TMP
    for ks in range(4):
        for u in range(nq):
            e(f"buffer_load_dword v{qt + ks*nq + u}, v8, s[28:31], s18 offen offset:{u*NW*64*4}")
        if ks < 3:
            e("s_add_u32 s18, s18, 0x40000")
    if cfg.INTERLEAVE:
        e("s_lshl_b32 s44, s16, 13")
        step = NW * 8192
    else:
        e(f"s_mul_i32 s44, s16, {KEYS_W*256}")
        step = 8192
    def loadK(st, soff):
        for T in range(2):
            for j in range(4):
                vo = VKO1 if T else VKO0
                e(f"buffer_load_dwordx4 {vr(KB[st]+16*T+4*j,4)}, v{vo}, s[20:23], {soff} offen offset:{j*64}{cfg.NT}")
    def loadV(st, soff):
        for t in range(8):
            vo = VVO1 if t >= 4 else VVO0
            e(f"buffer_load_dwordx4 {vr(VB[st]+4*t,4)}, v{vo}, s[24:27], {soff} offen offset:{(t&3)*1024}{cfg.NT}")
    loadK(0, "s44"); loadV(0, "s44")
    e(f"s_add_u32 s45, s44, {step}")
    loadK(1, "s45"); loadV(1, "s45")
    e(f"s_add_u32 s44, s45, {step}")
    for i in range(32):
        e(f"v_mov_b32 v{O+i}, 0")
    for i in range(16):
        e(f"v_mov_b32 v{Q+i}, 0")
    e("s_waitcnt vmcnt(32)")
    for u in range(nq):
        e(f"v_add_f32 v{qt+u}, v{qt+u}, v{qt+nq+u}")
        e(f"v_add_f32 v{qt+2*nq+u}, v{qt+2*nq+u}, v{qt+3*nq+u}")
        e(f"v_add_f32 v{qt+u}, v{qt+u}, v{qt+2*nq+u}")
        e(f"v_cvt_pk_bf16_f32 v{qt+u}, v{qt+u}, v{qt+u}")
    e("v_lshlrev_b32 v8, 1, v0")
    for u in range(nq):
        e(f"ds_write_b16 v8, v{qt+u} offset:{LDS_Q + u*NW*64*2}")
    e("s_waitcnt lgkmcnt(0)")
    e("s_barrier")
    e("v_lshlrev_b32 v8, 8, v6")
    e("v_lshl_add_u32 v8, v7, 4, v8")
    e("v_cmp_gt_u32 vcc, 4, v6")
    e("s_and_saveexec_b64 s[34:35], vcc")
    for j in range(4):
        e(f"ds_read_b128 {vr(Q+4*j,4)}, v8 offset:{LDS_Q + j*64}")
    e("s_mov_b64 exec, s[34:35]")
    e(f"s_mov_b32 s46, {NIT//2}")
    e(f"v_mov_b32 v{VM}, 0xff800000")
    e(f"v_mov_b32 v{VL}, 0")
    e(f"v_mov_b32 v{VMC}, 0")
    e("s_waitcnt lgkmcnt(0)")
    endoff = KEYS_WG * 256 if cfg.INTERLEAVE else None
    e.label("L_a_loop")
    for st in range(2):
        K, V = KB[st], VB[st]
        e("s_waitcnt vmcnt(24)")
        for j in range(4):
            for T in range(2):
                c = "0" if j == 0 else vr(S+4*T, 4)
                e(f"v_mfma_f32_16x16x32_bf16 {vr(S+4*T,4)}, {vr(K+16*T+4*j,4)}, {vr(Q+4*j,4)}, {c}")
        e("s_cmp_gt_u32 s46, 1")
        e("s_cselect_b32 s47, s44, 0x40000000")
        loadK(st, "s47")
        e(f"v_max3_f32 v{VT}, v{S}, v{S+1}, v{S+2}")
        e(f"v_max3_f32 v{VT}, v{VT}, v{S+3}, v{S+4}")
        e(f"v_max3_f32 v{VT}, v{VT}, v{S+5}, v{S+6}")
        e(f"v_max3_f32 v{VT}, v{VT}, v{S+7}, v{VM}")
        e(f"v_mov_b32 v{VT2}, v{VT}")
        e("s_nop 1")
        e(f"v_permlane16_swap_b32 v{VT}, v{VT2}")
        e("s_nop 0")
        e(f"v_max_f32 v{VT}, v{VT}, v{VT2}")
        e(f"v_mov_b32 v{VT2}, v{VT}")
        e("s_nop 1")
        e(f"v_permlane32_swap_b32 v{VT}, v{VT2}")
        e("s_nop 0")
        e(f"v_max_f32 v{VT}, v{VT}, v{VT2}")
        e(f"v_cmp_gt_f32 vcc, v{VT}, v{VM}")
        e(f"s_cbranch_vccz L_a_skip{st}")
        e(f"v_sub_f32 v{VD}, v{VM}, v{VT}")
        e(f"v_mul_f32 v{VD}, s42, v{VD}")
        e(f"v_exp_f32 v{VD}, v{VD}")
        e(f"v_mov_b32 v{VM}, v{VT}")
        e(f"v_mul_f32 v{VMC}, s42, v{VT}")
        e(f"v_mul_f32 v{VL}, v{VL}, v{VD}")
        for h in range(4):
            e(f"v_readlane_b32 s{48+h}, v{VD}, {h}")
        e("s_nop 1")
        for i in range(8):
            for r in range(4):
                e(f"v_mul_f32 v{O+4*i+r}, s{48+r}, v{O+4*i+r}")
        e.label(f"L_a_skip{st}")
        for i in range(8):
            e(f"v_fma_f32 v{S+i}, v{S+i}, s42, -v{VMC}")
        for i in range(8):
            e(f"v_exp_f32 v{S+i}, v{S+i}")
        e("s_nop 0")
        e(f"v_add_f32 v{VT}, v{S}, v{S+1}")
        e(f"v_add_f32 v{VT2}, v{S+2}, v{S+3}")
        e(f"v_add_f32 v{VD}, v{S+4}, v{S+5}")
        e(f"v_add_f32 v{VL}, v{VL}, v{VT}")
        e(f"v_add_f32 v{VT}, v{S+6}, v{S+7}")
        e(f"v_add_f32 v{VT2}, v{VT2}, v{VD}")
        e(f"v_add_f32 v{VL}, v{VL}, v{VT}")
        e(f"v_add_f32 v{VL}, v{VL}, v{VT2}")
        for k in range(4):
            e(f"v_cvt_pk_bf16_f32 v{P+k}, v{S+2*k}, v{S+2*k+1}")
        e("s_waitcnt vmcnt(24)")
        perm_mfma(e, V, TMP, O, P, 40, 41)
        loadV(st, "s47")
        e(f"s_add_u32 s44, s44, {step}")
    e("s_sub_u32 s46, s46, 1")
    e("s_cmp_lg_u32 s46, 0")
    e("s_cbranch_scc1 L_a_loop")
    e(f"v_mov_b32 v{VT}, v{VL}")
    e(f"v_mov_b32 v{VT2}, v{VL}")
    e("s_nop 1")
    e(f"v_permlane16_swap_b32 v{VT}, v{VT2}")
    e("s_nop 0")
    e(f"v_add_f32 v{VT}, v{VT}, v{VT2}")
    e(f"v_mov_b32 v{VT2}, v{VT}")
    e("s_nop 1")
    e(f"v_permlane32_swap_b32 v{VT}, v{VT2}")
    e("s_nop 0")
    e(f"v_add_f32 v{VL}, v{VT}, v{VT2}")
    e(f"v_mov_b32 v{VT}, v{VM}")
    e(f"v_mov_b32 v{VT2}, v{VL}")
    e("v_and_b32 v11, 63, v0")
    e("v_lshlrev_b32 v12, 3, v11")
    e("s_lshl_b32 s18, s16, 5")
    e(f"s_add_u32 s18, s18, {LDS_ML}")
    e("v_add_u32 v12, s18, v12")
    e("v_lshlrev_b32 v13, 5, v11")
    e("s_lshl_b32 s18, s16, 11")
    e("v_add_u32 v13, s18, v13")
    e("s_nop 4")
    e("s_mov_b64 s[34:35], exec")
    e("s_mov_b64 exec, 0xf")
    e(f"ds_write_b64 v12, v[{VT}:{VT2}]")
    e("s_mov_b64 exec, 0xffff")
    for i in range(8):
        for r in range(4):
            e(f"ds_write_b32 v13, v{O+4*i+r} offset:{LDS_O + r*512 + i*4}")
    e("s_mov_b64 exec, s[34:35]")
    e("s_waitcnt vmcnt(0) lgkmcnt(0)")
    e("s_barrier")
    for u in range(nq):
        e(f"v_add_u32 v14, {u*NW*64}, v0")
        e("v_lshrrev_b32 v15, 7, v14")
        e("v_lshlrev_b32 v16, 3, v15")
        e("v_lshlrev_b32 v17, 2, v14")
        for w in range(NW):
            e(f"ds_read_b64 {vr(72+2*w,2)}, v16 offset:{LDS_ML + w*32}")
        for w in range(NW):
            e(f"ds_read_b32 v{104+w}, v17 offset:{LDS_O + w*2048}")
        e("s_waitcnt lgkmcnt(0)")
        e(f"v_max_f32 v18, v72, v74")
        for w in range(2, NW):
            e(f"v_max_f32 v18, v18, v{72+2*w}")
        e("v_mov_b32 v19, 0")
        e("v_mov_b32 v20, 0")
        for w in range(NW):
            e(f"v_sub_f32 v21, v{72+2*w}, v18")
            e("v_mul_f32 v21, s42, v21")
            e("v_exp_f32 v21, v21")
            e("s_nop 0")
            e(f"v_fmac_f32 v19, v21, v{73+2*w}")
            e(f"v_fmac_f32 v20, v21, v{104+w}")
        e("s_lshl_b32 s18, s3, 6")
        e("s_add_u32 s18, s18, s14")
        e(f"s_mul_i32 s19, s18, {4*NSPLIT*512}")
        e("s_lshl_b32 s36, s15, 9")
        e("s_add_u32 s19, s19, s36")
        e(f"s_add_u32 s19, s19, {WS_O}")
        e("v_and_b32 v22, 127, v14")
        e("v_lshlrev_b32 v22, 2, v22")
        e(f"v_mul_u32_u24 v23, {NSPLIT*512}, v15")
        e("v_add_u32 v22, v22, v23")
        e("buffer_store_dword v20, v22, s[28:31], s19 offen")
        e(f"s_mul_i32 s19, s18, {4*NSPLIT*8}")
        e("s_lshl_b32 s36, s15, 3")
        e("s_add_u32 s19, s19, s36")
        e(f"s_add_u32 s19, s19, {WS_ML}")
        e(f"v_mul_u32_u24 v23, {NSPLIT*8}, v15")
        e("v_and_b32 v22, 127, v14")
        e("v_cmp_eq_u32 vcc, 0, v22")
        e("s_and_saveexec_b64 s[34:35], vcc")
        e("buffer_store_dwordx2 v[18:19], v23, s[28:31], s19 offen")
        e("s_mov_b64 exec, s[34:35]")
    e.label("L_a_end")
    e("s_endpgm")
    return name, NV, LDS_TOTAL, NWG

def gen_oproj(e, cfg):
    name = "oproj_kernel"
    NSPLIT = cfg.NSPLIT
    cscale = (128 ** -0.5) * math.log2(math.e)
    kernel_begin(e, name)
    e("s_cmp_ge_u32 s2, 256")
    e("s_cbranch_scc1 L_o_end")
    e("s_lshr_b32 s3, s2, 7")
    e("s_lshr_b32 s14, s2, 5")
    e("s_and_b32 s14, s14, 3")
    e("s_and_b32 s15, s2, 31")
    e("s_mul_i32 s4, s3, 40")
    e("s_add_u32 s6, s0, s4")
    e("s_addc_u32 s7, s1, 0")
    e("s_load_dwordx2 s[8:9], s[6:7], 32")
    e("s_load_dwordx4 s[52:55], s[0:1], 80")
    e("s_load_dwordx2 s[12:13], s[0:1], 96")
    e("v_and_b32 v1, 63, v0")
    e("v_lshrrev_b32 v2, 6, v0")
    e("v_and_b32 v3, 15, v1")
    e("v_lshrrev_b32 v4, 4, v1")
    e("s_mov_b32 s40, 0x05040100")
    e("s_mov_b32 s41, 0x07060302")
    e(f"s_mov_b32 s42, {f2u(cscale):#x}")
    e("s_lshl_b32 s16, s15, 7")
    e("v_lshl_add_u32 v5, v2, 5, s16")
    e("v_lshl_add_u32 v5, v4, 3, v5")
    e("s_waitcnt lgkmcnt(0)")
    srd(e, 24, 8, 9, 4194304)
    srd(e, 28, 12, 13, 0x220000)
    OP_P = 8 * 32 * NSPLIT * 512
    ML_P = 8 * 32 * NSPLIT * 8
    e(f"s_mul_i32 s17, s3, {OP_P}")
    e(f"s_add_u32 s17, s17, {WS_O}")
    e("s_add_u32 s18, s12, s17")
    e("s_addc_u32 s19, s13, 0")
    srd(e, 20, 18, 19, OP_P)
    e(f"s_mul_i32 s17, s3, {ML_P}")
    e(f"s_add_u32 s17, s17, {WS_ML}")
    e("s_add_u32 s18, s12, s17")
    e("s_addc_u32 s19, s13, 0")
    srd(e, 56, 18, 19, ML_P)
    e("v_lshlrev_b32 v7, 10, v5")
    e("v_lshl_add_u32 v7, v3, 4, v7")
    e("s_lshl_b32 s17, s14, 8")
    e("v_add_u32 v7, s17, v7")
    e("v_add_u32 v8, 0x1000, v7")
    for t in range(8):
        vo = 8 if t >= 4 else 7
        e(f"buffer_load_dwordx4 {vr(16+4*t,4)}, v{vo}, s[24:27], 0 offen offset:{(t&3)*1024}")
    e(f"v_mul_u32_u24 v9, {32*NSPLIT*512}, v3")
    e("v_lshl_add_u32 v9, v2, 7, v9")
    e("v_lshl_add_u32 v9, v4, 5, v9")
    e(f"s_mul_i32 s17, s15, {NSPLIT*512}")
    PB = 112
    for s in range(NSPLIT):
        e(f"buffer_load_dwordx4 {vr(PB+8*s,4)}, v9, s[20:23], s17 offen offset:{s*512}")
        e(f"buffer_load_dwordx4 {vr(PB+8*s+4,4)}, v9, s[20:23], s17 offen offset:{s*512+16}")
    MB = PB + 8 * NSPLIT
    e(f"v_mul_u32_u24 v10, {32*NSPLIT*8}, v3")
    e(f"s_mul_i32 s17, s15, {NSPLIT*8}")
    for s in range(NSPLIT):
        e(f"buffer_load_dwordx2 {vr(MB+2*s,2)}, v10, s[56:59], s17 offen offset:{s*8}")
    e("s_waitcnt vmcnt(0)")
    e(f"v_mov_b32 v11, v{MB}")
    for s in range(1, NSPLIT):
        e(f"v_max_f32 v11, v11, v{MB+2*s}")
    for s in range(NSPLIT):
        e(f"v_sub_f32 v{MB+2*s}, v{MB+2*s}, v11")
        e(f"v_mul_f32 v{MB+2*s}, s42, v{MB+2*s}")
        e(f"v_exp_f32 v{MB+2*s}, v{MB+2*s}")
    e("s_nop 0")
    e(f"v_mul_f32 v11, v{MB}, v{MB+1}")
    for s in range(1, NSPLIT):
        e(f"v_fmac_f32 v11, v{MB+2*s}, v{MB+2*s+1}")
    e("v_rcp_f32 v11, v11")
    e("s_nop 0")
    for s in range(NSPLIT):
        e(f"v_mul_f32 v{MB+2*s}, v{MB+2*s}, v11")
    for k in range(8):
        e(f"v_mul_f32 v{PB+k}, v{PB+k}, v{MB}")
        for s in range(1, NSPLIT):
            e(f"v_fmac_f32 v{PB+k}, v{PB+8*s+k}, v{MB+2*s}")
    for k in range(4):
        e(f"v_cvt_pk_bf16_f32 v{12+k}, v{PB+2*k}, v{PB+2*k+1}")
    perm_mfma(e, 16, 48, 80, 12, 40, 41, first=True)
    e("v_lshlrev_b32 v5, 12, v2")
    e("v_lshl_add_u32 v5, v4, 11, v5")
    e("v_lshl_add_u32 v5, v3, 5, v5")
    e("s_nop 7")
    e("s_mov_b64 s[34:35], exec")
    e("s_mov_b32 exec_lo, -1")
    e("s_mov_b32 exec_hi, 0")
    for i in range(8):
        for r in range(4):
            e(f"ds_write_b32 v5, v{80+4*i+r} offset:{r*512+i*4}")
    e("s_mov_b64 exec, s[34:35]")
    e("s_waitcnt lgkmcnt(0)")
    e("s_barrier")
    e("v_lshlrev_b32 v5, 2, v0")
    for u in range(4):
        for w in range(4):
            e(f"ds_read_b32 v{16+4*u+w}, v5 offset:{w*4096+u*1024}")
    e("s_waitcnt lgkmcnt(0)")
    for u in range(4):
        e(f"v_add_f32 v{16+4*u}, v{16+4*u}, v{17+4*u}")
        e(f"v_add_f32 v{18+4*u}, v{18+4*u}, v{19+4*u}")
    for u in range(4):
        e(f"v_add_f32 v{16+4*u}, v{16+4*u}, v{18+4*u}")
    e("v_lshrrev_b32 v6, 7, v0")
    e("v_and_b32 v7, 127, v0")
    e("v_lshlrev_b32 v6, 12, v6")
    e("v_lshl_add_u32 v6, v7, 2, v6")
    e("s_lshl_b32 s17, s3, 11")
    e("s_lshl_b32 s18, s14, 9")
    e("s_add_u32 s17, s17, s18")
    e(f"s_add_u32 s17, s17, {WS_ACC}")
    e("s_mov_b32 s18, s17")
    for u in range(4):
        e(f"buffer_atomic_add_f32 v{16+4*u}, v6, s[28:31], s18 offen")
        if u < 3:
            e("s_add_u32 s18, s18, 8192")
    e("s_waitcnt vmcnt(0)")
    e("s_barrier")
    e("v_readfirstlane_b32 s19, v2")
    e("s_cmp_lg_u32 s19, 0")
    e("s_cbranch_scc1 L_o_end")
    srd(e, 60, 54, 55, 256)
    e("s_lshl_b32 s19, s3, 2")
    e("s_add_u32 s19, s19, s14")
    e("s_lshl_b32 s19, s19, 2")
    e("v_mov_b32 v8, 1")
    e("v_mov_b32 v9, 0")
    e("s_mov_b64 exec, 1")
    e("buffer_atomic_add v8, v9, s[60:63], s19 offen sc0")
    e("s_waitcnt vmcnt(0)")
    e("s_mov_b64 exec, -1")
    e("v_readfirstlane_b32 s19, v8")
    e("s_cmp_lg_u32 s19, 31")
    e("s_cbranch_scc1 L_o_end")
    e("v_lshlrev_b32 v6, 3, v1")
    for i in range(8):
        e(f"v_mov_b32 v{16+2*i}, 0")
        e(f"v_mov_b32 v{17+2*i}, 0")
    e("s_mov_b32 s18, s17")
    for i in range(8):
        e(f"buffer_atomic_add_f32 v{16+2*i}, v6, s[28:31], s18 offen sc0")
        e(f"buffer_atomic_add_f32 v{17+2*i}, v6, s[28:31], s18 offen offset:4 sc0")
        if i < 7:
            e("s_add_u32 s18, s18, 4096")
    srd(e, 64, 52, 53, 16384)
    e("s_lshl_b32 s18, s3, 10")
    e("s_lshl_b32 s19, s14, 8")
    e("s_add_u32 s18, s18, s19")
    e("v_lshlrev_b32 v7, 2, v1")
    e("s_waitcnt vmcnt(0)")
    for i in range(8):
        e(f"v_cvt_pk_bf16_f32 v{16+2*i}, v{16+2*i}, v{17+2*i}")
        e(f"buffer_store_dword v{16+2*i}, v7, s[64:67], s18 offen")
        if i < 7:
            e("s_add_u32 s18, s18, 2048")
    e.label("L_o_end")
    e("s_endpgm")
    return name, 144


def poll(e, tag, dbg_srd, soff, target, vtmp, vzero):
    e(f"s_mov_b32 s38, 400000")
    e.label(f"L_poll_{tag}")
    e(f"buffer_load_dword v{vtmp}, v{vzero}, s[{dbg_srd}:{dbg_srd+3}], {soff} offen sc1")
    e("s_waitcnt vmcnt(0)")
    e(f"v_readfirstlane_b32 s39, v{vtmp}")
    e(f"s_cmp_ge_u32 s39, {target}")
    e(f"s_cbranch_scc1 L_polld_{tag}")
    e("s_sub_u32 s38, s38, 1")
    e("s_cmp_lg_u32 s38, 0")
    e(f"s_cbranch_scc1 L_poll_{tag}")
    e.label(f"L_polld_{tag}")

def gen_fused(e, cfg):
    name = NAME + "_kernel"
    NW, NSPLIT = 8, 2
    NWG = 256
    KEYS_WG = 4096
    KEYS_W = KEYS_WG // NW
    NIT = KEYS_W // 32
    cscale = (128 ** -0.5) * math.log2(math.e)
    VKO0, VKO1, VVO0, VVO1 = 1, 2, 3, 4
    VM, VL, VMC, VT, VT2, VD = 5, 6, 7, 8, 9, 10
    VLANE = 11
    Q = 12; S = 28; P = 36; O = 40
    KB = [72, 104]; VB = [136, 168]; TMP = 200
    VC, VG, VZ = 232, 233, 234
    NV = 236
    LDS_O = 0
    LDS_ML = 16384
    LDS_Q = LDS_ML + 256
    LDS_TOTAL = LDS_Q + 1024
    CQ, CO, CF, CZ = 0, 64, 128, 160
    kernel_begin(e, name)
    e(f"s_cmp_ge_u32 s2, {NWG}")
    e("s_cbranch_scc1 L_end")
    e("s_lshr_b32 s3, s2, 7")
    e("s_lshr_b32 s14, s2, 1")
    e("s_and_b32 s14, s14, 63")
    e("s_and_b32 s15, s2, 1")
    e("s_mul_i32 s4, s3, 40")
    e("s_add_u32 s6, s0, s4")
    e("s_addc_u32 s7, s1, 0")
    e("s_load_dwordx8 s[68:75], s[6:7], 0")
    e("s_load_dwordx2 s[76:77], s[6:7], 32")
    e("s_load_dwordx4 s[52:55], s[0:1], 80")
    e("s_load_dwordx2 s[12:13], s[0:1], 96")
    e(f"v_and_b32 v{VLANE}, 63, v0")
    e("v_lshrrev_b32 v5, 6, v0")
    e("s_nop 0")
    e("v_readfirstlane_b32 s16, v5")
    e(f"v_and_b32 v{VC}, 15, v{VLANE}")
    e(f"v_lshrrev_b32 v{VG}, 4, v{VLANE}")
    e(f"v_mov_b32 v{VZ}, 0")
    e(f"v_and_b32 v8, 3, v{VC}")
    e(f"v_lshrrev_b32 v9, 2, v{VC}")
    e("v_lshl_add_u32 v8, v8, 2, v9")
    e("v_lshlrev_b32 v8, 8, v8")
    e(f"v_lshl_add_u32 v{VKO0}, v{VG}, 4, v8")
    e(f"v_add_u32 v{VKO1}, 0x1000, v{VKO0}")
    e(f"v_lshlrev_b32 v{VVO0}, 4, v{VLANE}")
    e(f"v_add_u32 v{VVO1}, 0x1000, v{VVO0}")
    e("s_mov_b32 s40, 0x05040100")
    e("s_mov_b32 s41, 0x07060302")
    e(f"s_mov_b32 s42, {f2u(cscale):#x}")
    e("s_and_b32 s78, s14, 7")
    e("s_lshr_b32 s79, s14, 3")
    e("s_lshl_b32 s80, s79, 1")
    e("s_add_u32 s80, s80, s15")
    e("s_lshl_b32 s81, s3, 3")
    e("s_add_u32 s81, s81, s78")
    e("s_lshl_b32 s82, s81, 2")
    e("s_lshl_b32 s17, s14, 21")
    e(f"s_mul_i32 s18, s15, {KEYS_WG*256}")
    e("s_add_u32 s17, s17, s18")
    e("s_lshl_b32 s44, s16, 13")
    step = NW * 8192
    e("s_waitcnt lgkmcnt(0)")
    e("s_add_u32 s8, s70, s17")
    e("s_addc_u32 s9, s71, 0")
    e("s_add_u32 s10, s72, s17")
    e("s_addc_u32 s11, s73, 0")
    srd(e, 20, 8, 9, KEYS_WG * 256)
    srd(e, 24, 10, 11, KEYS_WG * 256)
    srd(e, 28, 12, 13, 0x220000)
    srd(e, 60, 54, 55, 256)
    def loadK(st, soff):
        for T in range(2):
            for j in range(4):
                vo = VKO1 if T else VKO0
                e(f"buffer_load_dwordx4 {vr(KB[st]+16*T+4*j,4)}, v{vo}, s[20:23], {soff} offen offset:{j*64}{cfg.NT}")
    def loadV(st, soff):
        for t in range(8):
            vo = VVO1 if t >= 4 else VVO0
            e(f"buffer_load_dwordx4 {vr(VB[st]+4*t,4)}, v{vo}, s[24:27], {soff} offen offset:{(t&3)*1024}{cfg.NT}")
    def prefetch():
        loadK(0, "s44"); loadV(0, "s44")
        e(f"s_add_u32 s45, s44, {step}")
        loadK(1, "s45"); loadV(1, "s45")
        e(f"s_add_u32 s44, s45, {step}")
    e("s_cmp_lt_u32 s16, 4")
    e("s_cbranch_scc1 L_qrole")
    prefetch()
    e("s_barrier")
    e("s_barrier")
    e("s_branch L_qjoin")
    e.label("L_qrole")
    srd(e, 84, 68, 69, 8192)
    srd(e, 88, 74, 75, 4194304)
    e("s_lshr_b32 s83, s80, 2")
    e("s_and_b32 s92, s80, 3")
    e("s_lshl_b32 s93, s78, 2")
    e("s_add_u32 s92, s92, s93")
    e("s_lshl_b32 s17, s83, 7")
    e("s_lshl_b32 s18, s16, 5")
    e("s_add_u32 s17, s17, s18")
    e(f"v_lshl_add_u32 v8, v{VG}, 3, s17")
    e(f"v_lshlrev_b32 v9, 10, v{VC}")
    e("v_lshl_add_u32 v9, v8, 1, v9")
    e(f"buffer_load_dwordx4 {vr(P,4)}, v9, s[84:87], 0 offen")
    e("v_lshlrev_b32 v9, 13, v8")
    e(f"v_lshl_add_u32 v9, v{VC}, 4, v9")
    e("s_lshl_b32 s17, s92, 8")
    for t in range(8):
        e(f"buffer_load_dwordx4 {vr(KB[0]+4*t,4)}, v9, s[88:91], s17 offen")
        if t < 7:
            e("s_add_u32 s17, s17, 8192")
    e("s_lshl_b32 s18, s16, 12")
    e(f"v_lshl_add_u32 v8, v{VG}, 11, s18")
    e(f"v_lshl_add_u32 v8, v{VC}, 5, v8")
    e("s_waitcnt vmcnt(0)")
    perm_mfma(e, KB[0], TMP, O, P, 40, 41, first=True)
    e("s_nop 7")
    e("s_mov_b32 exec_lo, -1")
    e("s_mov_b32 exec_hi, 0")
    for i in range(8):
        for r in range(4):
            e(f"ds_write_b32 v8, v{O+4*i+r} offset:{LDS_O + r*512+i*4}")
    e("s_mov_b64 exec, -1")
    e("s_waitcnt lgkmcnt(0)")
    e("s_barrier")
    e("v_lshlrev_b32 v8, 4, v0")
    for w in range(4):
        e(f"ds_read_b128 {vr(TMP+4*w,4)}, v8 offset:{LDS_O + w*4096}")
    e("v_lshrrev_b32 v9, 5, v0")
    e("v_and_b32 v10, 31, v0")
    e("v_lshlrev_b32 v9, 14, v9")
    e("v_lshl_add_u32 v9, v10, 4, v9")
    e("s_lshl_b32 s18, s83, 1")
    e("s_add_u32 s18, s18, s3")
    e("s_lshl_b32 s18, s18, 17")
    e("s_lshl_b32 s19, s92, 9")
    e("s_add_u32 s18, s18, s19")
    e(f"s_add_u32 s18, s18, {WS_Q}")
    e("s_waitcnt lgkmcnt(0)")
    for k in range(4):
        e(f"v_add_f32 v{TMP+k}, v{TMP+k}, v{TMP+4+k}")
        e(f"v_add_f32 v{TMP+8+k}, v{TMP+8+k}, v{TMP+12+k}")
    for k in range(4):
        e(f"v_add_f32 v{TMP+k}, v{TMP+k}, v{TMP+8+k}")
    e(f"buffer_store_dwordx4 {vr(TMP,4)}, v9, s[28:31], s18 offen sc1")
    e("s_cmp_ge_u32 s2, 8")
    e("s_cbranch_scc1 L_nozero")
    for k in range(4):
        e(f"v_mov_b32 v{TMP+16+k}, 0")
    e("s_lshl_b32 s18, s2, 12")
    e(f"s_add_u32 s18, s18, {WS_ACC}")
    e(f"buffer_store_dwordx4 {vr(TMP+16,4)}, v8, s[28:31], s18 offen sc1")
    e.label("L_nozero")
    e("s_waitcnt vmcnt(0)")
    e("s_barrier")
    e("s_cmp_eq_u32 s16, 0")
    e("s_cbranch_scc1 L_qwave")
    prefetch()
    e("s_branch L_qjoin")
    e.label("L_qwave")
    e("v_mov_b32 v8, 1")
    e("s_mov_b64 exec, 1")
    e(f"s_add_u32 s17, s82, {CQ}")
    e(f"buffer_atomic_add v8, v{VZ}, s[60:63], s17 offen")
    e("s_cmp_ge_u32 s2, 8")
    e("s_cbranch_scc1 L_nozero2")
    e(f"buffer_atomic_add v8, v{VZ}, s[60:63], 0 offen offset:{CZ}")
    e.label("L_nozero2")
    e("s_mov_b64 exec, -1")
    poll(e, "q", 60, "s17", 16, 9, VZ)
    e("s_lshl_b32 s18, s14, 11")
    e("s_lshl_b32 s19, s3, 17")
    e("s_add_u32 s18, s18, s19")
    e(f"s_add_u32 s18, s18, {WS_Q}")
    e(f"v_lshlrev_b32 v8, 5, v{VLANE}")
    for ks in range(4):
        e(f"buffer_load_dwordx4 {vr(TMP+8*ks,4)}, v8, s[28:31], s18 offen sc1")
        e(f"buffer_load_dwordx4 {vr(TMP+8*ks+4,4)}, v8, s[28:31], s18 offen offset:16 sc1")
        if ks < 3:
            e("s_add_u32 s18, s18, 0x40000")
    prefetch()
    e("s_waitcnt vmcnt(32)")
    for k in range(8):
        e(f"v_add_f32 v{TMP+k}, v{TMP+k}, v{TMP+8+k}")
        e(f"v_add_f32 v{TMP+16+k}, v{TMP+16+k}, v{TMP+24+k}")
    for k in range(8):
        e(f"v_add_f32 v{TMP+k}, v{TMP+k}, v{TMP+16+k}")
    for k in range(4):
        e(f"v_cvt_pk_bf16_f32 v{TMP+k}, v{TMP+2*k}, v{TMP+2*k+1}")
    e(f"v_lshlrev_b32 v8, 4, v{VLANE}")
    e(f"ds_write_b128 v8, {vr(TMP,4)} offset:{LDS_Q}")
    e("s_waitcnt lgkmcnt(0)")
    e.label("L_qjoin")
    e("s_barrier")
    for i in range(32):
        e(f"v_mov_b32 v{O+i}, 0")
    for i in range(16):
        e(f"v_mov_b32 v{Q+i}, 0")
    e(f"v_lshlrev_b32 v8, 8, v{VC}")
    e(f"v_lshl_add_u32 v8, v{VG}, 4, v8")
    e(f"v_cmp_gt_u32 vcc, 4, v{VC}")
    e("s_and_saveexec_b64 s[34:35], vcc")
    for j in range(4):
        e(f"ds_read_b128 {vr(Q+4*j,4)}, v8 offset:{LDS_Q + j*64}")
    e("s_mov_b64 exec, s[34:35]")
    e(f"s_mov_b32 s46, {NIT//2}")
    e(f"v_mov_b32 v{VM}, 0xff800000")
    e(f"v_mov_b32 v{VL}, 0")
    e(f"v_mov_b32 v{VMC}, 0")
    e("s_waitcnt lgkmcnt(0)")
    e.label("L_loop")
    for st in range(2):
        K, V = KB[st], VB[st]
        e("s_waitcnt vmcnt(24)")
        for j in range(4):
            for T in range(2):
                c = "0" if j == 0 else vr(S+4*T, 4)
                e(f"v_mfma_f32_16x16x32_bf16 {vr(S+4*T,4)}, {vr(K+16*T+4*j,4)}, {vr(Q+4*j,4)}, {c}")
        e("s_cmp_gt_u32 s46, 1")
        e("s_cselect_b32 s47, s44, 0x40000000")
        loadK(st, "s47")
        e(f"v_max3_f32 v{VT}, v{S}, v{S+1}, v{S+2}")
        e(f"v_max3_f32 v{VT}, v{VT}, v{S+3}, v{S+4}")
        e(f"v_max3_f32 v{VT}, v{VT}, v{S+5}, v{S+6}")
        e(f"v_max3_f32 v{VT}, v{VT}, v{S+7}, v{VM}")
        e(f"v_mov_b32 v{VT2}, v{VT}")
        e("s_nop 1")
        e(f"v_permlane16_swap_b32 v{VT}, v{VT2}")
        e("s_nop 0")
        e(f"v_max_f32 v{VT}, v{VT}, v{VT2}")
        e(f"v_mov_b32 v{VT2}, v{VT}")
        e("s_nop 1")
        e(f"v_permlane32_swap_b32 v{VT}, v{VT2}")
        e("s_nop 0")
        e(f"v_max_f32 v{VT}, v{VT}, v{VT2}")
        e(f"v_cmp_gt_f32 vcc, v{VT}, v{VM}")
        e(f"s_cbranch_vccz L_skip{st}")
        e(f"v_sub_f32 v{VD}, v{VM}, v{VT}")
        e(f"v_mul_f32 v{VD}, s42, v{VD}")
        e(f"v_exp_f32 v{VD}, v{VD}")
        e(f"v_mov_b32 v{VM}, v{VT}")
        e(f"v_mul_f32 v{VMC}, s42, v{VT}")
        e(f"v_mul_f32 v{VL}, v{VL}, v{VD}")
        for h in range(4):
            e(f"v_readlane_b32 s{48+h}, v{VD}, {h}")
        e("s_nop 1")
        for i in range(8):
            for r in range(4):
                e(f"v_mul_f32 v{O+4*i+r}, s{48+r}, v{O+4*i+r}")
        e.label(f"L_skip{st}")
        for i in range(8):
            e(f"v_fma_f32 v{S+i}, v{S+i}, s42, -v{VMC}")
        for i in range(8):
            e(f"v_exp_f32 v{S+i}, v{S+i}")
        e("s_nop 0")
        e(f"v_add_f32 v{VT}, v{S}, v{S+1}")
        e(f"v_add_f32 v{VT2}, v{S+2}, v{S+3}")
        e(f"v_add_f32 v{VD}, v{S+4}, v{S+5}")
        e(f"v_add_f32 v{VL}, v{VL}, v{VT}")
        e(f"v_add_f32 v{VT}, v{S+6}, v{S+7}")
        e(f"v_add_f32 v{VT2}, v{VT2}, v{VD}")
        e(f"v_add_f32 v{VL}, v{VL}, v{VT}")
        e(f"v_add_f32 v{VL}, v{VL}, v{VT2}")
        for k in range(4):
            e(f"v_cvt_pk_bf16_f32 v{P+k}, v{S+2*k}, v{S+2*k+1}")
        e("s_waitcnt vmcnt(24)")
        perm_mfma(e, V, TMP, O, P, 40, 41)
        loadV(st, "s47")
        e(f"s_add_u32 s44, s44, {step}")
    e("s_sub_u32 s46, s46, 1")
    e("s_cmp_lg_u32 s46, 0")
    e("s_cbranch_scc1 L_loop")
    e(f"v_mov_b32 v{VT}, v{VL}")
    e(f"v_mov_b32 v{VT2}, v{VL}")
    e("s_nop 1")
    e(f"v_permlane16_swap_b32 v{VT}, v{VT2}")
    e("s_nop 0")
    e(f"v_add_f32 v{VT}, v{VT}, v{VT2}")
    e(f"v_mov_b32 v{VT2}, v{VT}")
    e("s_nop 1")
    e(f"v_permlane32_swap_b32 v{VT}, v{VT2}")
    e("s_nop 0")
    e(f"v_add_f32 v{VT2}, v{VT}, v{VT2}")
    e(f"v_mov_b32 v{VT}, v{VM}")
    e(f"v_lshlrev_b32 v12, 3, v{VLANE}")
    e("s_lshl_b32 s18, s16, 5")
    e(f"s_add_u32 s18, s18, {LDS_ML}")
    e("v_add_u32 v12, s18, v12")
    e(f"v_lshlrev_b32 v13, 5, v{VLANE}")
    e("s_lshl_b32 s18, s16, 11")
    e("v_add_u32 v13, s18, v13")
    e("s_mov_b64 exec, 0xf")
    e(f"ds_write_b64 v12, v[{VT}:{VT2}]")
    e("s_mov_b64 exec, 0xffff")
    for i in range(8):
        for r in range(4):
            e(f"ds_write_b32 v13, v{O+4*i+r} offset:{LDS_O + r*512 + i*4}")
    e("s_mov_b64 exec, -1")
    e("s_lshr_b32 s94, s80, 2")
    e("s_lshl_b32 s93, s78, 2")
    e("s_add_u32 s94, s94, s93")
    e("s_and_b32 s95, s80, 3")
    e("s_waitcnt vmcnt(0)")
    e("s_cmp_lt_u32 s16, 4")
    e("s_cbranch_scc1 L_pub")
    srd(e, 88, 76, 77, 4194304)
    e("s_sub_u32 s96, s16, 4")
    e("s_lshl_b32 s17, s94, 7")
    e("s_lshl_b32 s18, s96, 5")
    e("s_add_u32 s17, s17, s18")
    e(f"v_lshl_add_u32 v14, v{VG}, 3, s17")
    e("v_lshlrev_b32 v14, 10, v14")
    e(f"v_lshl_add_u32 v14, v{VC}, 4, v14")
    e("s_lshl_b32 s17, s95, 8")
    e("v_add_u32 v14, s17, v14")
    e("v_add_u32 v15, 0x1000, v14")
    for t in range(8):
        vo = 15 if t >= 4 else 14
        e(f"buffer_load_dwordx4 {vr(KB[0]+4*t,4)}, v{vo}, s[88:91], 0 offen offset:{(t&3)*1024}")
    OP_P = 8 * 32 * NSPLIT * 512
    ML_P = 8 * 32 * NSPLIT * 8
    e(f"s_mul_i32 s17, s3, {OP_P}")
    e(f"s_add_u32 s17, s17, {WS_O}")
    e("s_add_u32 s18, s12, s17")
    e("s_addc_u32 s19, s13, 0")
    srd(e, 84, 18, 19, OP_P)
    e(f"s_mul_i32 s17, s3, {ML_P}")
    e(f"s_add_u32 s17, s17, {WS_ML}")
    e("s_add_u32 s18, s12, s17")
    e("s_addc_u32 s19, s13, 0")
    srd(e, 56, 18, 19, ML_P)
    e(f"v_mul_u32_u24 v16, {32*NSPLIT*512}, v{VC}")
    e("s_lshl_b32 s17, s96, 7")
    e("v_add_u32 v16, s17, v16")
    e(f"v_lshl_add_u32 v16, v{VG}, 5, v16")
    e(f"v_mul_u32_u24 v17, {32*NSPLIT*8}, v{VC}")
    e("s_lshl_b32 s18, s96, 12")
    e(f"v_lshl_add_u32 v18, v{VG}, 11, s18")
    e(f"v_lshl_add_u32 v18, v{VC}, 5, v18")
    e("s_waitcnt lgkmcnt(0)")
    e("s_barrier")
    e("s_barrier")
    e("s_barrier")
    PB = KB[1]
    MB = PB + 16
    e(f"s_mul_i32 s17, s94, {NSPLIT*512}")
    for s_ in range(NSPLIT):
        e(f"buffer_load_dwordx4 {vr(PB+8*s_,4)}, v16, s[84:87], s17 offen offset:{s_*512} sc1")
        e(f"buffer_load_dwordx4 {vr(PB+8*s_+4,4)}, v16, s[84:87], s17 offen offset:{s_*512+16} sc1")
    e(f"s_mul_i32 s17, s94, {NSPLIT*8}")
    e(f"buffer_load_dwordx4 {vr(MB,4)}, v17, s[56:59], s17 offen sc1")
    e("s_waitcnt vmcnt(0)")
    e(f"v_max_f32 v19, v{MB}, v{MB+2}")
    for s_ in range(NSPLIT):
        e(f"v_sub_f32 v{MB+2*s_}, v{MB+2*s_}, v19")
        e(f"v_mul_f32 v{MB+2*s_}, s42, v{MB+2*s_}")
        e(f"v_exp_f32 v{MB+2*s_}, v{MB+2*s_}")
    e("s_nop 0")
    e(f"v_mul_f32 v19, v{MB}, v{MB+1}")
    e(f"v_fmac_f32 v19, v{MB+2}, v{MB+3}")
    e("v_rcp_f32 v19, v19")
    e("s_nop 0")
    for s_ in range(NSPLIT):
        e(f"v_mul_f32 v{MB+2*s_}, v{MB+2*s_}, v19")
    for k in range(8):
        e(f"v_mul_f32 v{PB+k}, v{PB+k}, v{MB}")
        e(f"v_fmac_f32 v{PB+k}, v{PB+8+k}, v{MB+2}")
    for k in range(4):
        e(f"v_cvt_pk_bf16_f32 v{P+k}, v{PB+2*k}, v{PB+2*k+1}")
    perm_mfma(e, KB[0], TMP, O, P, 40, 41, first=True)
    e("s_nop 7")
    e("s_mov_b32 exec_lo, -1")
    e("s_mov_b32 exec_hi, 0")
    for i in range(8):
        for r in range(4):
            e(f"ds_write_b32 v18, v{O+4*i+r} offset:{LDS_O + r*512+i*4}")
    e("s_mov_b64 exec, -1")
    e("s_waitcnt lgkmcnt(0)")
    e("s_branch L_ojoin")
    e.label("L_pub")
    e("s_waitcnt lgkmcnt(0)")
    e("s_barrier")
    e("s_lshl_b32 s17, s16, 3")
    e(f"v_mov_b32 v16, s17")
    e("s_lshl_b32 s17, s16, 9")
    e(f"v_lshl_add_u32 v17, v{VLANE}, 3, s17")
    for w in range(NW):
        e(f"ds_read_b64 {vr(72+2*w,2)}, v16 offset:{LDS_ML + w*32}")
    for w in range(NW):
        e(f"ds_read_b64 {vr(104+2*w,2)}, v17 offset:{LDS_O + w*2048}")
    e("s_waitcnt lgkmcnt(0)")
    e("v_max_f32 v18, v72, v74")
    for w in range(2, NW):
        e(f"v_max_f32 v18, v18, v{72+2*w}")
    e("v_mov_b32 v19, 0")
    e("v_mov_b32 v20, 0")
    e("v_mov_b32 v21, 0")
    for w in range(NW):
        e(f"v_sub_f32 v22, v{72+2*w}, v18")
        e("v_mul_f32 v22, s42, v22")
        e("v_exp_f32 v22, v22")
        e("s_nop 0")
        e(f"v_fmac_f32 v19, v22, v{73+2*w}")
        e(f"v_fmac_f32 v20, v22, v{104+2*w}")
        e(f"v_fmac_f32 v21, v22, v{105+2*w}")
    e("s_lshl_b32 s18, s3, 6")
    e("s_add_u32 s18, s18, s14")
    e("s_lshl_b32 s18, s18, 2")
    e("s_add_u32 s18, s18, s16")
    e(f"s_mul_i32 s19, s18, {NSPLIT*512}")
    e("s_lshl_b32 s36, s15, 9")
    e("s_add_u32 s19, s19, s36")
    e(f"s_add_u32 s19, s19, {WS_O}")
    e(f"v_lshlrev_b32 v22, 3, v{VLANE}")
    e("buffer_store_dwordx2 v[20:21], v22, s[28:31], s19 offen sc1")
    e(f"s_mul_i32 s19, s18, {NSPLIT*8}")
    e("s_lshl_b32 s36, s15, 3")
    e("s_add_u32 s19, s19, s36")
    e(f"s_add_u32 s19, s19, {WS_ML}")
    e("s_mov_b64 exec, 1")
    e(f"buffer_store_dwordx2 v[18:19], v{VZ}, s[28:31], s19 offen sc1")
    e("s_mov_b64 exec, -1")
    e("s_waitcnt vmcnt(0)")
    e("s_barrier")
    e("s_cmp_lg_u32 s16, 0")
    e("s_cbranch_scc1 L_pub_np")
    e("v_mov_b32 v8, 1")
    e("s_mov_b64 exec, 1")
    e(f"s_add_u32 s17, s82, {CO}")
    e(f"buffer_atomic_add v8, v{VZ}, s[60:63], s17 offen")
    e("s_mov_b64 exec, -1")
    poll(e, "o", 60, "s17", 16, 9, VZ)
    e(f"s_mov_b32 s17, {CZ}")
    poll(e, "z", 60, "s17", 8, 9, VZ)
    e.label("L_pub_np")
    e("s_barrier")
    e.label("L_ojoin")
    e("s_barrier")
    e("v_lshlrev_b32 v8, 2, v0")
    for u in range(2):
        for w in range(4):
            e(f"ds_read_b32 v{72+4*u+w}, v8 offset:{LDS_O + w*4096+u*2048}")
    e("v_lshrrev_b32 v9, 7, v0")
    e("v_and_b32 v10, 127, v0")
    e("v_lshlrev_b32 v9, 12, v9")
    e("v_lshl_add_u32 v9, v10, 2, v9")
    e("s_lshl_b32 s17, s3, 11")
    e("s_lshl_b32 s18, s95, 9")
    e("s_add_u32 s17, s17, s18")
    e(f"s_add_u32 s17, s17, {WS_ACC}")
    e("s_add_u32 s18, s17, 16384")
    e("s_waitcnt lgkmcnt(0)")
    for u in range(2):
        e(f"v_add_f32 v{72+4*u}, v{72+4*u}, v{73+4*u}")
        e(f"v_add_f32 v{74+4*u}, v{74+4*u}, v{75+4*u}")
    for u in range(2):
        e(f"v_add_f32 v{72+4*u}, v{72+4*u}, v{74+4*u}")
    e("buffer_atomic_add_f32 v72, v9, s[28:31], s17 offen")
    e("buffer_atomic_add_f32 v76, v9, s[28:31], s18 offen")
    e("s_waitcnt vmcnt(0)")
    e("s_barrier")
    e("s_cmp_lg_u32 s16, 0")
    e("s_cbranch_scc1 L_end")
    e("s_lshl_b32 s19, s3, 2")
    e("s_add_u32 s19, s19, s95")
    e("s_lshl_b32 s19, s19, 2")
    e(f"s_add_u32 s19, s19, {CF}")
    e("v_mov_b32 v8, 1")
    e("s_mov_b64 exec, 1")
    e(f"buffer_atomic_add v8, v{VZ}, s[60:63], s19 offen sc0")
    e("s_waitcnt vmcnt(0)")
    e("s_mov_b64 exec, -1")
    e("v_readfirstlane_b32 s19, v8")
    e("s_cmp_lg_u32 s19, 31")
    e("s_cbranch_scc1 L_end")
    e(f"v_lshlrev_b32 v9, 3, v{VLANE}")
    for i in range(16):
        e(f"v_mov_b32 v{72+i}, 0")
    e("s_mov_b32 s18, s17")
    for i in range(8):
        e(f"buffer_atomic_add_f32 v{72+2*i}, v9, s[28:31], s18 offen sc0")
        e(f"buffer_atomic_add_f32 v{73+2*i}, v9, s[28:31], s18 offen offset:4 sc0")
        if i < 7:
            e("s_add_u32 s18, s18, 4096")
    srd(e, 64, 52, 53, 16384)
    e("s_lshl_b32 s18, s3, 10")
    e("s_lshl_b32 s19, s95, 8")
    e("s_add_u32 s18, s18, s19")
    e(f"v_lshlrev_b32 v10, 2, v{VLANE}")
    e("s_waitcnt vmcnt(0)")
    for i in range(8):
        e(f"v_cvt_pk_bf16_f32 v{72+2*i}, v{72+2*i}, v{73+2*i}")
        e(f"buffer_store_dword v{72+2*i}, v10, s[64:67], s18 offen")
        if i < 7:
            e("s_add_u32 s18, s18, 2048")
    e.label("L_end")
    e("s_endpgm")
    return name, NV, LDS_TOTAL, NWG

def main():
    cfg = Cfg()
    out = f"cdna_kernels/{NAME}.s"
    for a in sys.argv[1:]:
        if "=" in a:
            k, v = a.split("=", 1)
            if k == "out":
                out = v
            elif k == "NT":
                cfg.NT = " " + v if v else ""
            else:
                setattr(cfg, k, int(v))
    e = Emitter()
    e.raw('.amdgcn_target "amdgcn-amd-amdhsa--gfx950"')
    e.raw(".text")
    if cfg.FUSED:
        n, nv, lds, nwg = gen_fused(e, cfg)
        e.raw('.section .rodata,"a"')
        e.raw(".p2align 6")
        kernel_desc(e, n, nv)
        hdr = HEADER + f"; @launch grid=({nwg},1,1) block=(512,1,1) lds={lds}\n"
        open(out, "w").write(hdr + e.text())
        return
    n1, nv1 = gen_qproj(e)
    n2, nv2, lds2, nwg2 = gen_attn(e, cfg)
    n3, nv3 = gen_oproj(e, cfg)
    e.raw('.section .rodata,"a"')
    for n, nv in ((n1, nv1), (n2, nv2), (n3, nv3)):
        e.raw(".p2align 6")
        kernel_desc(e, n, nv)
    hdr = HEADER
    hdr += f"; @launch kernel={n1} grid=(256,1,1) block=(256,1,1) lds=16384\n"
    hdr += f"; @launch kernel={n2} grid=({nwg2},1,1) block=({cfg.NW*64},1,1) lds={lds2}\n"
    hdr += f"; @launch kernel={n3} grid=(256,1,1) block=(256,1,1) lds=16384\n"
    open(out, "w").write(hdr + e.text())

main()
```

```python
import sys, math, struct

NAME = "concat_heads__gqa_block_cached__gqa_block_cached__decode"

def f2u(f):
    return struct.unpack("<I", struct.pack("<f", f))[0]

class Cfg:
    NW = 8
    NSPLIT = 2
    NT = ""
    FUSED = 0
    SLEEP = 8
    STAMP = 0
    INTERLEAVE = 0

WS_Q = 0x000000
WS_O = 0x100000
WS_ML = 0x200000
WS_ACC = 0x210000

HEADER = """; Kernarg layout for this problem (104 bytes, ptrs only, base s[0:1]):
;   offset  80: d_out     shape=(8, 1, 1024) dtype=bfloat16 (2 bytes/elem)
"""

class Emitter:
    def __init__(self):
        self.lines = []
    def __call__(self, s):
        if s.startswith("buffer_") and "offset:" in s:
            o = int(s.split("offset:")[1].split()[0])
            assert 0 <= o <= 4095, s
        if s.startswith("ds_") and "offset:" in s:
            o = int(s.split("offset:")[1].split()[0])
            assert 0 <= o <= 65535, s
        self.lines.append("    " + s)
    def label(self, s):
        self.lines.append(s + ":")
    def raw(self, s):
        self.lines.append(s)
    def text(self):
        return "\n".join(self.lines) + "\n"

def vr(b, n):
    return f"v[{b}:{b+n-1}]" if n > 1 else f"v{b}"

def kernel_begin(e, name):
    e.raw(f".globl {name}")
    e.raw(".p2align 8")
    e.raw(f".type {name},@function")
    e.label(name)

def kernel_desc(e, name, nv, ns=102):
    acc = (nv + 3) // 4 * 4
    e.raw(f".amdhsa_kernel {name}")
    e.raw(f"  .amdhsa_next_free_vgpr {nv}")
    e.raw(f"  .amdhsa_next_free_sgpr {ns}")
    e.raw(f"  .amdhsa_accum_offset {acc}")
    e.raw("  .amdhsa_group_segment_fixed_size 0")
    e.raw("  .amdhsa_kernarg_size 104")
    e.raw("  .amdhsa_user_sgpr_count 2")
    e.raw("  .amdhsa_user_sgpr_kernarg_segment_ptr 1")
    e.raw("  .amdhsa_system_sgpr_workgroup_id_x 1")
    e.raw("  .amdhsa_float_denorm_mode_32 3")
    e.raw(".end_amdhsa_kernel")

def srd(e, d, ptr_lo, ptr_hi, nbytes):
    e(f"s_mov_b32 s{d}, s{ptr_lo}")
    e(f"s_and_b32 s{d+1}, s{ptr_hi}, 0xffff")
    e(f"s_mov_b32 s{d+2}, {nbytes}")
    e(f"s_mov_b32 s{d+3}, 0x00020000")

def perm_mfma(e, src, tmp, acc, afrag, selLo, selHi, first=False):
    for i in range(8):
        w = i >> 1
        sel = selHi if (i & 1) else selLo
        for tp in range(4):
            a = src + 4 * (2 * tp) + w
            b = src + 4 * (2 * tp + 1) + w
            e(f"v_perm_b32 v{tmp + 4*i + tp}, v{b}, v{a}, s{sel}")
        if i >= 1:
            j = i - 1
            c = "0" if first else vr(acc + 4*j, 4)
            e(f"v_mfma_f32_16x16x32_bf16 {vr(acc+4*j,4)}, {vr(afrag,4)}, {vr(tmp+4*j,4)}, {c}")
    e("s_nop 1")
    j = 7
    c = "0" if first else vr(acc + 4*j, 4)
    e(f"v_mfma_f32_16x16x32_bf16 {vr(acc+4*j,4)}, {vr(afrag,4)}, {vr(tmp+4*j,4)}, {c}")

def gen_qproj(e):
    name = "qproj_kernel"
    kernel_begin(e, name)
    e("s_cmp_ge_u32 s2, 256")
    e("s_cbranch_scc1 L_q_end")
    e("s_lshr_b32 s3, s2, 7")
    e("s_mul_i32 s4, s3, 40")
    e("s_add_u32 s6, s0, s4")
    e("s_addc_u32 s7, s1, 0")
    e("s_load_dwordx2 s[8:9], s[6:7], 0")
    e("s_load_dwordx2 s[10:11], s[6:7], 24")
    e("s_load_dwordx2 s[12:13], s[0:1], 96")
    e("s_lshr_b32 s14, s2, 2")
    e("s_and_b32 s14, s14, 31")
    e("s_and_b32 s15, s2, 3")
    e("v_and_b32 v1, 63, v0")
    e("v_lshrrev_b32 v2, 6, v0")
    e("v_and_b32 v3, 15, v1")
    e("v_lshrrev_b32 v4, 4, v1")
    e("s_lshl_b32 s16, s15, 7")
    e("v_lshl_add_u32 v5, v2, 5, s16")
    e("v_lshl_add_u32 v5, v4, 3, v5")
    e("s_mov_b32 s40, 0x05040100")
    e("s_mov_b32 s41, 0x07060302")
    for t in range(1, 8):
        e(f"s_mov_b32 s{41+t}, {t*8192}")
    e("s_waitcnt lgkmcnt(0)")
    srd(e, 20, 8, 9, 8192)
    srd(e, 24, 10, 11, 4194304)
    srd(e, 28, 12, 13, 0x220000)
    e("v_lshlrev_b32 v6, 10, v3")
    e("v_lshl_add_u32 v6, v5, 1, v6")
    e("buffer_load_dwordx4 v[12:15], v6, s[20:23], 0 offen")
    e("v_lshlrev_b32 v7, 13, v5")
    e("v_lshl_add_u32 v7, v3, 4, v7")
    e("s_lshl_b32 s17, s14, 8")
    e("v_add_u32 v7, s17, v7")
    for t in range(8):
        so = "0" if t == 0 else f"s{41+t}"
        e(f"buffer_load_dwordx4 {vr(16+4*t,4)}, v7, s[24:27], {so} offen")
    e("s_cmp_ge_u32 s2, 8")
    e("s_cbranch_scc1 L_q_nozero")
    e("v_mov_b32 v8, 0")
    e("v_mov_b32 v9, 0")
    e("v_mov_b32 v10, 0")
    e("v_mov_b32 v11, 0")
    e("s_lshl_b32 s18, s2, 12")
    e(f"s_add_u32 s18, s18, {WS_ACC}")
    e("v_lshlrev_b32 v5, 4, v0")
    e("buffer_store_dwordx4 v[8:11], v5, s[28:31], s18 offen")
    e.label("L_q_nozero")
    e("s_waitcnt vmcnt(0)")
    perm_mfma(e, 16, 48, 80, 12, 40, 41, first=True)
    e("v_lshlrev_b32 v5, 12, v2")
    e("v_lshl_add_u32 v5, v4, 11, v5")
    e("v_lshl_add_u32 v5, v3, 5, v5")
    e("s_nop 7")
    e("s_mov_b64 s[34:35], exec")
    e("s_mov_b32 exec_lo, -1")
    e("s_mov_b32 exec_hi, 0")
    for i in range(8):
        for r in range(4):
            e(f"ds_write_b32 v5, v{80+4*i+r} offset:{r*512+i*4}")
    e("s_mov_b64 exec, s[34:35]")
    e("s_waitcnt lgkmcnt(0)")
    e("s_barrier")
    e("v_lshlrev_b32 v5, 4, v0")
    for w in range(4):
        e(f"ds_read_b128 {vr(16+4*w,4)}, v5 offset:{w*4096}")
    e("s_waitcnt lgkmcnt(0)")
    for k in range(4):
        e(f"v_add_f32 v{16+k}, v{16+k}, v{20+k}")
        e(f"v_add_f32 v{24+k}, v{24+k}, v{28+k}")
    for k in range(4):
        e(f"v_add_f32 v{16+k}, v{16+k}, v{24+k}")
    e("v_lshrrev_b32 v6, 5, v0")
    e("v_and_b32 v7, 31, v0")
    e("v_lshlrev_b32 v6, 14, v6")
    e("v_lshl_add_u32 v6, v7, 4, v6")
    e("s_lshl_b32 s18, s15, 1")
    e("s_add_u32 s18, s18, s3")
    e("s_lshl_b32 s18, s18, 17")
    e("s_lshl_b32 s19, s14, 9")
    e("s_add_u32 s18, s18, s19")
    e(f"s_add_u32 s18, s18, {WS_Q}")
    e("buffer_store_dwordx4 v[16:19], v6, s[28:31], s18 offen")
    e.label("L_q_end")
    e("s_endpgm")
    return name, 112

def gen_attn(e, cfg):
    name = "attn_kernel"
    NW, NSPLIT = cfg.NW, cfg.NSPLIT
    NWG = 128 * NSPLIT
    KEYS_WG = 8192 // NSPLIT
    KEYS_W = KEYS_WG // NW
    NIT = KEYS_W // 32
    assert NIT % 2 == 0
    cscale = (128 ** -0.5) * math.log2(math.e)
    VKO0, VKO1, VVO0, VVO1 = 1, 2, 3, 4
    VM, VL, VMC, VT, VT2, VD = 5, 6, 7, 8, 9, 10
    Q = 12
    S = 28
    P = 36
    O = 40
    KB = [72, 104]
    VB = [136, 168]
    TMP = 200
    NV = 232
    LDS_O = 0
    LDS_ML = NW * 2048
    LDS_Q = LDS_ML + NW * 32
    LDS_TOTAL = LDS_Q + 1024
    kernel_begin(e, name)
    e(f"s_cmp_ge_u32 s2, {NWG}")
    e("s_cbranch_scc1 L_a_end")
    lg = int(math.log2(NSPLIT))
    e(f"s_lshr_b32 s3, s2, {6+lg}")
    e(f"s_lshr_b32 s14, s2, {lg}")
    e("s_and_b32 s14, s14, 63")
    e(f"s_and_b32 s15, s2, {NSPLIT-1}")
    e("s_mul_i32 s4, s3, 40")
    e("s_add_u32 s6, s0, s4")
    e("s_addc_u32 s7, s1, 0")
    e("s_load_dwordx4 s[8:11], s[6:7], 8")
    e("s_load_dwordx2 s[12:13], s[0:1], 96")
    e("v_and_b32 v11, 63, v0")
    e("v_lshrrev_b32 v5, 6, v0")
    e("s_nop 0")
    e("v_readfirstlane_b32 s16, v5")
    e("v_and_b32 v6, 15, v11")
    e("v_lshrrev_b32 v7, 4, v11")
    e("v_and_b32 v8, 3, v6")
    e("v_lshrrev_b32 v9, 2, v6")
    e("v_lshl_add_u32 v8, v8, 2, v9")
    e("v_lshlrev_b32 v8, 8, v8")
    e(f"v_lshl_add_u32 v{VKO0}, v7, 4, v8")
    e(f"v_add_u32 v{VKO1}, 0x1000, v{VKO0}")
    e(f"v_lshlrev_b32 v{VVO0}, 4, v11")
    e(f"v_add_u32 v{VVO1}, 0x1000, v{VVO0}")
    e("s_mov_b32 s40, 0x05040100")
    e("s_mov_b32 s41, 0x07060302")
    e(f"s_mov_b32 s42, {f2u(cscale):#x}")
    e("s_lshl_b32 s17, s14, 21")
    e(f"s_mul_i32 s18, s15, {KEYS_WG*256}")
    e("s_add_u32 s17, s17, s18")
    e("s_waitcnt lgkmcnt(0)")
    e("s_add_u32 s8, s8, s17")
    e("s_addc_u32 s9, s9, 0")
    e("s_add_u32 s10, s10, s17")
    e("s_addc_u32 s11, s11, 0")
    srd(e, 20, 8, 9, KEYS_WG * 256)
    srd(e, 24, 10, 11, KEYS_WG * 256)
    srd(e, 28, 12, 13, 0x220000)
    e("s_lshl_b32 s18, s14, 11")
    e("s_lshl_b32 s19, s3, 17")
    e("s_add_u32 s18, s18, s19")
    e(f"s_add_u32 s18, s18, {WS_Q}")
    nq = 512 // (NW * 64)
    assert nq >= 1
    e("v_lshlrev_b32 v8, 2, v0")
    qt = TMP
    for ks in range(4):
        for u in range(nq):
            e(f"buffer_load_dword v{qt + ks*nq + u}, v8, s[28:31], s18 offen offset:{u*NW*64*4}")
        if ks < 3:
            e("s_add_u32 s18, s18, 0x40000")
    if cfg.INTERLEAVE:
        e("s_lshl_b32 s44, s16, 13")
        step = NW * 8192
    else:
        e(f"s_mul_i32 s44, s16, {KEYS_W*256}")
        step = 8192
    def loadK(st, soff):
        for T in range(2):
            for j in range(4):
                vo = VKO1 if T else VKO0
                e(f"buffer_load_dwordx4 {vr(KB[st]+16*T+4*j,4)}, v{vo}, s[20:23], {soff} offen offset:{j*64}{cfg.NT}")
    def loadV(st, soff):
        for t in range(8):
            vo = VVO1 if t >= 4 else VVO0
            e(f"buffer_load_dwordx4 {vr(VB[st]+4*t,4)}, v{vo}, s[24:27], {soff} offen offset:{(t&3)*1024}{cfg.NT}")
    loadK(0, "s44"); loadV(0, "s44")
    e(f"s_add_u32 s45, s44, {step}")
    loadK(1, "s45"); loadV(1, "s45")
    e(f"s_add_u32 s44, s45, {step}")
    for i in range(32):
        e(f"v_mov_b32 v{O+i}, 0")
    for i in range(16):
        e(f"v_mov_b32 v{Q+i}, 0")
    e("s_waitcnt vmcnt(32)")
    for u in range(nq):
        e(f"v_add_f32 v{qt+u}, v{qt+u}, v{qt+nq+u}")
        e(f"v_add_f32 v{qt+2*nq+u}, v{qt+2*nq+u}, v{qt+3*nq+u}")
        e(f"v_add_f32 v{qt+u}, v{qt+u}, v{qt+2*nq+u}")
        e(f"v_cvt_pk_bf16_f32 v{qt+u}, v{qt+u}, v{qt+u}")
    e("v_lshlrev_b32 v8, 1, v0")
    for u in range(nq):
        e(f"ds_write_b16 v8, v{qt+u} offset:{LDS_Q + u*NW*64*2}")
    e("s_waitcnt lgkmcnt(0)")
    e("s_barrier")
    e("v_lshlrev_b32 v8, 8, v6")
    e("v_lshl_add_u32 v8, v7, 4, v8")
    e("v_cmp_gt_u32 vcc, 4, v6")
    e("s_and_saveexec_b64 s[34:35], vcc")
    for j in range(4):
        e(f"ds_read_b128 {vr(Q+4*j,4)}, v8 offset:{LDS_Q + j*64}")
    e("s_mov_b64 exec, s[34:35]")
    e(f"s_mov_b32 s46, {NIT//2}")
    e(f"v_mov_b32 v{VM}, 0xff800000")
    e(f"v_mov_b32 v{VL}, 0")
    e(f"v_mov_b32 v{VMC}, 0")
    e("s_waitcnt lgkmcnt(0)")
    endoff = KEYS_WG * 256 if cfg.INTERLEAVE else None
    e.label("L_a_loop")
    for st in range(2):
        K, V = KB[st], VB[st]
        e("s_waitcnt vmcnt(24)")
        for j in range(4):
            for T in range(2):
                c = "0" if j == 0 else vr(S+4*T, 4)
                e(f"v_mfma_f32_16x16x32_bf16 {vr(S+4*T,4)}, {vr(K+16*T+4*j,4)}, {vr(Q+4*j,4)}, {c}")
        e("s_cmp_gt_u32 s46, 1")
        e("s_cselect_b32 s47, s44, 0x40000000")
        loadK(st, "s47")
        e(f"v_max3_f32 v{VT}, v{S}, v{S+1}, v{S+2}")
        e(f"v_max3_f32 v{VT}, v{VT}, v{S+3}, v{S+4}")
        e(f"v_max3_f32 v{VT}, v{VT}, v{S+5}, v{S+6}")
        e(f"v_max3_f32 v{VT}, v{VT}, v{S+7}, v{VM}")
        e(f"v_mov_b32 v{VT2}, v{VT}")
        e("s_nop 1")
        e(f"v_permlane16_swap_b32 v{VT}, v{VT2}")
        e("s_nop 0")
        e(f"v_max_f32 v{VT}, v{VT}, v{VT2}")
        e(f"v_mov_b32 v{VT2}, v{VT}")
        e("s_nop 1")
        e(f"v_permlane32_swap_b32 v{VT}, v{VT2}")
        e("s_nop 0")
        e(f"v_max_f32 v{VT}, v{VT}, v{VT2}")
        e(f"v_cmp_gt_f32 vcc, v{VT}, v{VM}")
        e(f"s_cbranch_vccz L_a_skip{st}")
        e(f"v_sub_f32 v{VD}, v{VM}, v{VT}")
        e(f"v_mul_f32 v{VD}, s42, v{VD}")
        e(f"v_exp_f32 v{VD}, v{VD}")
        e(f"v_mov_b32 v{VM}, v{VT}")
        e(f"v_mul_f32 v{VMC}, s42, v{VT}")
        e(f"v_mul_f32 v{VL}, v{VL}, v{VD}")
        for h in range(4):
            e(f"v_readlane_b32 s{48+h}, v{VD}, {h}")
        e("s_nop 1")
        for i in range(8):
            for r in range(4):
                e(f"v_mul_f32 v{O+4*i+r}, s{48+r}, v{O+4*i+r}")
        e.label(f"L_a_skip{st}")
        for i in range(8):
            e(f"v_fma_f32 v{S+i}, v{S+i}, s42, -v{VMC}")
        for i in range(8):
            e(f"v_exp_f32 v{S+i}, v{S+i}")
        e("s_nop 0")
        e(f"v_add_f32 v{VT}, v{S}, v{S+1}")
        e(f"v_add_f32 v{VT2}, v{S+2}, v{S+3}")
        e(f"v_add_f32 v{VD}, v{S+4}, v{S+5}")
        e(f"v_add_f32 v{VL}, v{VL}, v{VT}")
        e(f"v_add_f32 v{VT}, v{S+6}, v{S+7}")
        e(f"v_add_f32 v{VT2}, v{VT2}, v{VD}")
        e(f"v_add_f32 v{VL}, v{VL}, v{VT}")
        e(f"v_add_f32 v{VL}, v{VL}, v{VT2}")
        for k in range(4):
            e(f"v_cvt_pk_bf16_f32 v{P+k}, v{S+2*k}, v{S+2*k+1}")
        e("s_waitcnt vmcnt(24)")
        perm_mfma(e, V, TMP, O, P, 40, 41)
        loadV(st, "s47")
        e(f"s_add_u32 s44, s44, {step}")
    e("s_sub_u32 s46, s46, 1")
    e("s_cmp_lg_u32 s46, 0")
    e("s_cbranch_scc1 L_a_loop")
    e(f"v_mov_b32 v{VT}, v{VL}")
    e(f"v_mov_b32 v{VT2}, v{VL}")
    e("s_nop 1")
    e(f"v_permlane16_swap_b32 v{VT}, v{VT2}")
    e("s_nop 0")
    e(f"v_add_f32 v{VT}, v{VT}, v{VT2}")
    e(f"v_mov_b32 v{VT2}, v{VT}")
    e("s_nop 1")
    e(f"v_permlane32_swap_b32 v{VT}, v{VT2}")
    e("s_nop 0")
    e(f"v_add_f32 v{VL}, v{VT}, v{VT2}")
    e(f"v_mov_b32 v{VT}, v{VM}")
    e(f"v_mov_b32 v{VT2}, v{VL}")
    e("v_and_b32 v11, 63, v0")
    e("v_lshlrev_b32 v12, 3, v11")
    e("s_lshl_b32 s18, s16, 5")
    e(f"s_add_u32 s18, s18, {LDS_ML}")
    e("v_add_u32 v12, s18, v12")
    e("v_lshlrev_b32 v13, 5, v11")
    e("s_lshl_b32 s18, s16, 11")
    e("v_add_u32 v13, s18, v13")
    e("s_nop 4")
    e("s_mov_b64 s[34:35], exec")
    e("s_mov_b64 exec, 0xf")
    e(f"ds_write_b64 v12, v[{VT}:{VT2}]")
    e("s_mov_b64 exec, 0xffff")
    for i in range(8):
        for r in range(4):
            e(f"ds_write_b32 v13, v{O+4*i+r} offset:{LDS_O + r*512 + i*4}")
    e("s_mov_b64 exec, s[34:35]")
    e("s_waitcnt vmcnt(0) lgkmcnt(0)")
    e("s_barrier")
    for u in range(nq):
        e(f"v_add_u32 v14, {u*NW*64}, v0")
        e("v_lshrrev_b32 v15, 7, v14")
        e("v_lshlrev_b32 v16, 3, v15")
        e("v_lshlrev_b32 v17, 2, v14")
        for w in range(NW):
            e(f"ds_read_b64 {vr(72+2*w,2)}, v16 offset:{LDS_ML + w*32}")
        for w in range(NW):
            e(f"ds_read_b32 v{104+w}, v17 offset:{LDS_O + w*2048}")
        e("s_waitcnt lgkmcnt(0)")
        e(f"v_max_f32 v18, v72, v74")
        for w in range(2, NW):
            e(f"v_max_f32 v18, v18, v{72+2*w}")
        e("v_mov_b32 v19, 0")
        e("v_mov_b32 v20, 0")
        for w in range(NW):
            e(f"v_sub_f32 v21, v{72+2*w}, v18")
            e("v_mul_f32 v21, s42, v21")
            e("v_exp_f32 v21, v21")
            e("s_nop 0")
            e(f"v_fmac_f32 v19, v21, v{73+2*w}")
            e(f"v_fmac_f32 v20, v21, v{104+w}")
        e("s_lshl_b32 s18, s3, 6")
        e("s_add_u32 s18, s18, s14")
        e(f"s_mul_i32 s19, s18, {4*NSPLIT*512}")
        e("s_lshl_b32 s36, s15, 9")
        e("s_add_u32 s19, s19, s36")
        e(f"s_add_u32 s19, s19, {WS_O}")
        e("v_and_b32 v22, 127, v14")
        e("v_lshlrev_b32 v22, 2, v22")
        e(f"v_mul_u32_u24 v23, {NSPLIT*512}, v15")
        e("v_add_u32 v22, v22, v23")
        e("buffer_store_dword v20, v22, s[28:31], s19 offen")
        e(f"s_mul_i32 s19, s18, {4*NSPLIT*8}")
        e("s_lshl_b32 s36, s15, 3")
        e("s_add_u32 s19, s19, s36")
        e(f"s_add_u32 s19, s19, {WS_ML}")
        e(f"v_mul_u32_u24 v23, {NSPLIT*8}, v15")
        e("v_and_b32 v22, 127, v14")
        e("v_cmp_eq_u32 vcc, 0, v22")
        e("s_and_saveexec_b64 s[34:35], vcc")
        e("buffer_store_dwordx2 v[18:19], v23, s[28:31], s19 offen")
        e("s_mov_b64 exec, s[34:35]")
    e.label("L_a_end")
    e("s_endpgm")
    return name, NV, LDS_TOTAL, NWG

def gen_oproj(e, cfg):
    name = "oproj_kernel"
    NSPLIT = cfg.NSPLIT
    cscale = (128 ** -0.5) * math.log2(math.e)
    kernel_begin(e, name)
    e("s_cmp_ge_u32 s2, 256")
    e("s_cbranch_scc1 L_o_end")
    e("s_lshr_b32 s3, s2, 7")
    e("s_lshr_b32 s14, s2, 5")
    e("s_and_b32 s14, s14, 3")
    e("s_and_b32 s15, s2, 31")
    e("s_mul_i32 s4, s3, 40")
    e("s_add_u32 s6, s0, s4")
    e("s_addc_u32 s7, s1, 0")
    e("s_load_dwordx2 s[8:9], s[6:7], 32")
    e("s_load_dwordx4 s[52:55], s[0:1], 80")
    e("s_load_dwordx2 s[12:13], s[0:1], 96")
    e("v_and_b32 v1, 63, v0")
    e("v_lshrrev_b32 v2, 6, v0")
    e("v_and_b32 v3, 15, v1")
    e("v_lshrrev_b32 v4, 4, v1")
    e("s_mov_b32 s40, 0x05040100")
    e("s_mov_b32 s41, 0x07060302")
    e(f"s_mov_b32 s42, {f2u(cscale):#x}")
    e("s_lshl_b32 s16, s15, 7")
    e("v_lshl_add_u32 v5, v2, 5, s16")
    e("v_lshl_add_u32 v5, v4, 3, v5")
    e("s_waitcnt lgkmcnt(0)")
    srd(e, 24, 8, 9, 4194304)
    srd(e, 28, 12, 13, 0x220000)
    OP_P = 8 * 32 * NSPLIT * 512
    ML_P = 8 * 32 * NSPLIT * 8
    e(f"s_mul_i32 s17, s3, {OP_P}")
    e(f"s_add_u32 s17, s17, {WS_O}")
    e("s_add_u32 s18, s12, s17")
    e("s_addc_u32 s19, s13, 0")
    srd(e, 20, 18, 19, OP_P)
    e(f"s_mul_i32 s17, s3, {ML_P}")
    e(f"s_add_u32 s17, s17, {WS_ML}")
    e("s_add_u32 s18, s12, s17")
    e("s_addc_u32 s19, s13, 0")
    srd(e, 56, 18, 19, ML_P)
    e("v_lshlrev_b32 v7, 10, v5")
    e("v_lshl_add_u32 v7, v3, 4, v7")
    e("s_lshl_b32 s17, s14, 8")
    e("v_add_u32 v7, s17, v7")
    e("v_add_u32 v8, 0x1000, v7")
    for t in range(8):
        vo = 8 if t >= 4 else 7
        e(f"buffer_load_dwordx4 {vr(16+4*t,4)}, v{vo}, s[24:27], 0 offen offset:{(t&3)*1024}")
    e(f"v_mul_u32_u24 v9, {32*NSPLIT*512}, v3")
    e("v_lshl_add_u32 v9, v2, 7, v9")
    e("v_lshl_add_u32 v9, v4, 5, v9")
    e(f"s_mul_i32 s17, s15, {NSPLIT*512}")
    PB = 112
    for s in range(NSPLIT):
        e(f"buffer_load_dwordx4 {vr(PB+8*s,4)}, v9, s[20:23], s17 offen offset:{s*512}")
        e(f"buffer_load_dwordx4 {vr(PB+8*s+4,4)}, v9, s[20:23], s17 offen offset:{s*512+16}")
    MB = PB + 8 * NSPLIT
    e(f"v_mul_u32_u24 v10, {32*NSPLIT*8}, v3")
    e(f"s_mul_i32 s17, s15, {NSPLIT*8}")
    for s in range(NSPLIT):
        e(f"buffer_load_dwordx2 {vr(MB+2*s,2)}, v10, s[56:59], s17 offen offset:{s*8}")
    e("s_waitcnt vmcnt(0)")
    e(f"v_mov_b32 v11, v{MB}")
    for s in range(1, NSPLIT):
        e(f"v_max_f32 v11, v11, v{MB+2*s}")
    for s in range(NSPLIT):
        e(f"v_sub_f32 v{MB+2*s}, v{MB+2*s}, v11")
        e(f"v_mul_f32 v{MB+2*s}, s42, v{MB+2*s}")
        e(f"v_exp_f32 v{MB+2*s}, v{MB+2*s}")
    e("s_nop 0")
    e(f"v_mul_f32 v11, v{MB}, v{MB+1}")
    for s in range(1, NSPLIT):
        e(f"v_fmac_f32 v11, v{MB+2*s}, v{MB+2*s+1}")
    e("v_rcp_f32 v11, v11")
    e("s_nop 0")
    for s in range(NSPLIT):
        e(f"v_mul_f32 v{MB+2*s}, v{MB+2*s}, v11")
    for k in range(8):
        e(f"v_mul_f32 v{PB+k}, v{PB+k}, v{MB}")
        for s in range(1, NSPLIT):
            e(f"v_fmac_f32 v{PB+k}, v{PB+8*s+k}, v{MB+2*s}")
    for k in range(4):
        e(f"v_cvt_pk_bf16_f32 v{12+k}, v{PB+2*k}, v{PB+2*k+1}")
    perm_mfma(e, 16, 48, 80, 12, 40, 41, first=True)
    e("v_lshlrev_b32 v5, 12, v2")
    e("v_lshl_add_u32 v5, v4, 11, v5")
    e("v_lshl_add_u32 v5, v3, 5, v5")
    e("s_nop 7")
    e("s_mov_b64 s[34:35], exec")
    e("s_mov_b32 exec_lo, -1")
    e("s_mov_b32 exec_hi, 0")
    for i in range(8):
        for r in range(4):
            e(f"ds_write_b32 v5, v{80+4*i+r} offset:{r*512+i*4}")
    e("s_mov_b64 exec, s[34:35]")
    e("s_waitcnt lgkmcnt(0)")
    e("s_barrier")
    e("v_lshlrev_b32 v5, 2, v0")
    for u in range(4):
        for w in range(4):
            e(f"ds_read_b32 v{16+4*u+w}, v5 offset:{w*4096+u*1024}")
    e("s_waitcnt lgkmcnt(0)")
    for u in range(4):
        e(f"v_add_f32 v{16+4*u}, v{16+4*u}, v{17+4*u}")
        e(f"v_add_f32 v{18+4*u}, v{18+4*u}, v{19+4*u}")
    for u in range(4):
        e(f"v_add_f32 v{16+4*u}, v{16+4*u}, v{18+4*u}")
    e("v_lshrrev_b32 v6, 7, v0")
    e("v_and_b32 v7, 127, v0")
    e("v_lshlrev_b32 v6, 12, v6")
    e("v_lshl_add_u32 v6, v7, 2, v6")
    e("s_lshl_b32 s17, s3, 11")
    e("s_lshl_b32 s18, s14, 9")
    e("s_add_u32 s17, s17, s18")
    e(f"s_add_u32 s17, s17, {WS_ACC}")
    e("s_mov_b32 s18, s17")
    for u in range(4):
        e(f"buffer_atomic_add_f32 v{16+4*u}, v6, s[28:31], s18 offen")
        if u < 3:
            e("s_add_u32 s18, s18, 8192")
    e("s_waitcnt vmcnt(0)")
    e("s_barrier")
    e("v_readfirstlane_b32 s19, v2")
    e("s_cmp_lg_u32 s19, 0")
    e("s_cbranch_scc1 L_o_end")
    srd(e, 60, 54, 55, 256)
    e("s_lshl_b32 s19, s3, 2")
    e("s_add_u32 s19, s19, s14")
    e("s_lshl_b32 s19, s19, 2")
    e("v_mov_b32 v8, 1")
    e("v_mov_b32 v9, 0")
    e("s_mov_b64 exec, 1")
    e("buffer_atomic_add v8, v9, s[60:63], s19 offen sc0")
    e("s_waitcnt vmcnt(0)")
    e("s_mov_b64 exec, -1")
    e("v_readfirstlane_b32 s19, v8")
    e("s_cmp_lg_u32 s19, 31")
    e("s_cbranch_scc1 L_o_end")
    e("v_lshlrev_b32 v6, 3, v1")
    for i in range(8):
        e(f"v_mov_b32 v{16+2*i}, 0")
        e(f"v_mov_b32 v{17+2*i}, 0")
    e("s_mov_b32 s18, s17")
    for i in range(8):
        e(f"buffer_atomic_add_f32 v{16+2*i}, v6, s[28:31], s18 offen sc0")
        e(f"buffer_atomic_add_f32 v{17+2*i}, v6, s[28:31], s18 offen offset:4 sc0")
        if i < 7:
            e("s_add_u32 s18, s18, 4096")
    srd(e, 64, 52, 53, 16384)
    e("s_lshl_b32 s18, s3, 10")
    e("s_lshl_b32 s19, s14, 8")
    e("s_add_u32 s18, s18, s19")
    e("v_lshlrev_b32 v7, 2, v1")
    e("s_waitcnt vmcnt(0)")
    for i in range(8):
        e(f"v_cvt_pk_bf16_f32 v{16+2*i}, v{16+2*i}, v{17+2*i}")
        e(f"buffer_store_dword v{16+2*i}, v7, s[64:67], s18 offen")
        if i < 7:
            e("s_add_u32 s18, s18, 2048")
    e.label("L_o_end")
    e("s_endpgm")
    return name, 144


def poll(e, tag, dbg_srd, soff, target, vtmp, vzero):
    e(f"s_mov_b32 s38, 400000")
    e.label(f"L_poll_{tag}")
    e(f"buffer_load_dword v{vtmp}, v{vzero}, s[{dbg_srd}:{dbg_srd+3}], {soff} offen sc1")
    e("s_waitcnt vmcnt(0)")
    e(f"v_readfirstlane_b32 s39, v{vtmp}")
    e(f"s_cmp_ge_u32 s39, {target}")
    e(f"s_cbranch_scc1 L_polld_{tag}")
    e("s_sub_u32 s38, s38, 1")
    e("s_cmp_lg_u32 s38, 0")
    e(f"s_cbranch_scc1 L_poll_{tag}")
    e.label(f"L_polld_{tag}")

def gen_fused(e, cfg):
    name = NAME + "_kernel"
    NW, NSPLIT = 8, 2
    NWG = 256
    KEYS_WG = 4096
    KEYS_W = KEYS_WG // NW
    NIT = KEYS_W // 32
    cscale = (128 ** -0.5) * math.log2(math.e)
    VKO0, VKO1, VVO0, VVO1 = 1, 2, 3, 4
    VM, VL, VMC, VT, VT2, VD = 5, 6, 7, 8, 9, 10
    VLANE = 11
    Q = 12; S = 28; P = 36; O = 40
    KB = [72, 104]; VB = [136, 168]; TMP = 200
    VC, VG, VZ = 232, 233, 234
    NV = 236
    LDS_O = 0
    LDS_ML = 16384
    LDS_Q = LDS_ML + 256
    LDS_TOTAL = LDS_Q + 1024
    CQ, CO, CF, CZ = 0, 64, 128, 160
    VST = 235
    def stamp(i):
        if cfg.STAMP:
            e("s_memrealtime s[98:99]")
            e("s_waitcnt lgkmcnt(0)")
            e(f"v_writelane_b32 v{VST}, s98, {i}")
    kernel_begin(e, name)
    e(f"s_cmp_ge_u32 s2, {NWG}")
    e("s_cbranch_scc1 L_end")
    if cfg.STAMP:
        e(f"v_mov_b32 v{VST}, 0")
    stamp(0)
    e("s_lshr_b32 s3, s2, 7")
    e("s_lshr_b32 s14, s2, 1")
    e("s_and_b32 s14, s14, 63")
    e("s_and_b32 s15, s2, 1")
    e("s_mul_i32 s4, s3, 40")
    e("s_add_u32 s6, s0, s4")
    e("s_addc_u32 s7, s1, 0")
    e("s_load_dwordx8 s[68:75], s[6:7], 0")
    e("s_load_dwordx2 s[76:77], s[6:7], 32")
    e("s_load_dwordx4 s[52:55], s[0:1], 80")
    e("s_load_dwordx2 s[12:13], s[0:1], 96")
    e(f"v_and_b32 v{VLANE}, 63, v0")
    e("v_lshrrev_b32 v5, 6, v0")
    e("s_nop 0")
    e("v_readfirstlane_b32 s16, v5")
    e(f"v_and_b32 v{VC}, 15, v{VLANE}")
    e(f"v_lshrrev_b32 v{VG}, 4, v{VLANE}")
    e(f"v_mov_b32 v{VZ}, 0")
    e(f"v_and_b32 v8, 3, v{VC}")
    e(f"v_lshrrev_b32 v9, 2, v{VC}")
    e("v_lshl_add_u32 v8, v8, 2, v9")
    e("v_lshlrev_b32 v8, 8, v8")
    e(f"v_lshl_add_u32 v{VKO0}, v{VG}, 4, v8")
    e(f"v_add_u32 v{VKO1}, 0x1000, v{VKO0}")
    e(f"v_lshlrev_b32 v{VVO0}, 4, v{VLANE}")
    e(f"v_add_u32 v{VVO1}, 0x1000, v{VVO0}")
    e("s_mov_b32 s40, 0x05040100")
    e("s_mov_b32 s41, 0x07060302")
    e(f"s_mov_b32 s42, {f2u(cscale):#x}")
    e("s_and_b32 s78, s14, 7")
    e("s_lshr_b32 s79, s14, 3")
    e("s_lshl_b32 s80, s79, 1")
    e("s_add_u32 s80, s80, s15")
    e("s_lshl_b32 s81, s3, 3")
    e("s_add_u32 s81, s81, s78")
    e("s_lshl_b32 s82, s81, 2")
    e("s_lshl_b32 s17, s14, 21")
    e(f"s_mul_i32 s18, s15, {KEYS_WG*256}")
    e("s_add_u32 s17, s17, s18")
    e("s_lshl_b32 s44, s16, 13")
    step = NW * 8192
    e("s_waitcnt lgkmcnt(0)")
    e("s_add_u32 s8, s70, s17")
    e("s_addc_u32 s9, s71, 0")
    e("s_add_u32 s10, s72, s17")
    e("s_addc_u32 s11, s73, 0")
    srd(e, 20, 8, 9, KEYS_WG * 256)
    srd(e, 24, 10, 11, KEYS_WG * 256)
    srd(e, 28, 12, 13, 0x220000)
    srd(e, 60, 54, 55, 256)
    def loadK(st, soff):
        for T in range(2):
            for j in range(4):
                vo = VKO1 if T else VKO0
                e(f"buffer_load_dwordx4 {vr(KB[st]+16*T+4*j,4)}, v{vo}, s[20:23], {soff} offen offset:{j*64}{cfg.NT}")
    def loadV(st, soff):
        for t in range(8):
            vo = VVO1 if t >= 4 else VVO0
            e(f"buffer_load_dwordx4 {vr(VB[st]+4*t,4)}, v{vo}, s[24:27], {soff} offen offset:{(t&3)*1024}{cfg.NT}")
    def prefetch():
        loadK(0, "s44"); loadV(0, "s44")
        e(f"s_add_u32 s45, s44, {step}")
        loadK(1, "s45"); loadV(1, "s45")
        e(f"s_add_u32 s44, s45, {step}")
    e("s_cmp_lt_u32 s16, 4")
    e("s_cbranch_scc1 L_qrole")
    prefetch()
    e("s_barrier")
    e("s_barrier")
    e("s_branch L_qjoin")
    e.label("L_qrole")
    srd(e, 84, 68, 69, 8192)
    srd(e, 88, 74, 75, 4194304)
    e("s_lshr_b32 s83, s80, 2")
    e("s_and_b32 s92, s80, 3")
    e("s_lshl_b32 s93, s78, 2")
    e("s_add_u32 s92, s92, s93")
    e("s_lshl_b32 s17, s83, 7")
    e("s_lshl_b32 s18, s16, 5")
    e("s_add_u32 s17, s17, s18")
    e(f"v_lshl_add_u32 v8, v{VG}, 3, s17")
    e(f"v_lshlrev_b32 v9, 10, v{VC}")
    e("v_lshl_add_u32 v9, v8, 1, v9")
    e(f"buffer_load_dwordx4 {vr(P,4)}, v9, s[84:87], 0 offen")
    e("v_lshlrev_b32 v9, 13, v8")
    e(f"v_lshl_add_u32 v9, v{VC}, 4, v9")
    e("s_lshl_b32 s17, s92, 8")
    for t in range(8):
        e(f"buffer_load_dwordx4 {vr(KB[0]+4*t,4)}, v9, s[88:91], s17 offen")
        if t < 7:
            e("s_add_u32 s17, s17, 8192")
    e("s_lshl_b32 s18, s16, 12")
    e(f"v_lshl_add_u32 v8, v{VG}, 11, s18")
    e(f"v_lshl_add_u32 v8, v{VC}, 5, v8")
    e("s_waitcnt vmcnt(0)")
    stamp(1)
    perm_mfma(e, KB[0], TMP, O, P, 40, 41, first=True)
    e("s_nop 7")
    e("s_mov_b32 exec_lo, -1")
    e("s_mov_b32 exec_hi, 0")
    for i in range(8):
        for r in range(4):
            e(f"ds_write_b32 v8, v{O+4*i+r} offset:{LDS_O + r*512+i*4}")
    e("s_mov_b64 exec, -1")
    e("s_waitcnt lgkmcnt(0)")
    e("s_barrier")
    e("v_lshlrev_b32 v8, 4, v0")
    for w in range(4):
        e(f"ds_read_b128 {vr(TMP+4*w,4)}, v8 offset:{LDS_O + w*4096}")
    e("v_lshrrev_b32 v9, 5, v0")
    e("v_and_b32 v10, 31, v0")
    e("v_lshlrev_b32 v9, 14, v9")
    e("v_lshl_add_u32 v9, v10, 4, v9")
    e("s_lshl_b32 s18, s83, 1")
    e("s_add_u32 s18, s18, s3")
    e("s_lshl_b32 s18, s18, 17")
    e("s_lshl_b32 s19, s92, 9")
    e("s_add_u32 s18, s18, s19")
    e(f"s_add_u32 s18, s18, {WS_Q}")
    e("s_waitcnt lgkmcnt(0)")
    for k in range(4):
        e(f"v_add_f32 v{TMP+k}, v{TMP+k}, v{TMP+4+k}")
        e(f"v_add_f32 v{TMP+8+k}, v{TMP+8+k}, v{TMP+12+k}")
    for k in range(4):
        e(f"v_add_f32 v{TMP+k}, v{TMP+k}, v{TMP+8+k}")
    e(f"buffer_store_dwordx4 {vr(TMP,4)}, v9, s[28:31], s18 offen sc1")
    e("s_cmp_ge_u32 s2, 8")
    e("s_cbranch_scc1 L_nozero")
    for k in range(4):
        e(f"v_mov_b32 v{TMP+16+k}, 0")
    e("s_lshl_b32 s18, s2, 12")
    e(f"s_add_u32 s18, s18, {WS_ACC}")
    e(f"buffer_store_dwordx4 {vr(TMP+16,4)}, v8, s[28:31], s18 offen sc1")
    e.label("L_nozero")
    e("s_waitcnt vmcnt(0)")
    e("s_barrier")
    stamp(2)
    e("s_cmp_eq_u32 s16, 0")
    e("s_cbranch_scc1 L_qwave")
    prefetch()
    e("s_branch L_qjoin")
    e.label("L_qwave")
    e("v_mov_b32 v8, 1")
    e("s_mov_b64 exec, 1")
    e(f"s_add_u32 s17, s82, {CQ}")
    e(f"buffer_atomic_add v8, v{VZ}, s[60:63], s17 offen")
    e("s_cmp_ge_u32 s2, 8")
    e("s_cbranch_scc1 L_nozero2")
    e(f"buffer_atomic_add v8, v{VZ}, s[60:63], 0 offen offset:{CZ}")
    e.label("L_nozero2")
    e("s_mov_b64 exec, -1")
    poll(e, "q", 60, "s17", 16, 9, VZ)
    stamp(3)
    e("s_lshl_b32 s18, s14, 11")
    e("s_lshl_b32 s19, s3, 17")
    e("s_add_u32 s18, s18, s19")
    e(f"s_add_u32 s18, s18, {WS_Q}")
    e(f"v_lshlrev_b32 v8, 5, v{VLANE}")
    for ks in range(4):
        e(f"buffer_load_dwordx4 {vr(TMP+8*ks,4)}, v8, s[28:31], s18 offen sc1")
        e(f"buffer_load_dwordx4 {vr(TMP+8*ks+4,4)}, v8, s[28:31], s18 offen offset:16 sc1")
        if ks < 3:
            e("s_add_u32 s18, s18, 0x40000")
    prefetch()
    e("s_waitcnt vmcnt(32)")
    for k in range(8):
        e(f"v_add_f32 v{TMP+k}, v{TMP+k}, v{TMP+8+k}")
        e(f"v_add_f32 v{TMP+16+k}, v{TMP+16+k}, v{TMP+24+k}")
    for k in range(8):
        e(f"v_add_f32 v{TMP+k}, v{TMP+k}, v{TMP+16+k}")
    for k in range(4):
        e(f"v_cvt_pk_bf16_f32 v{TMP+k}, v{TMP+2*k}, v{TMP+2*k+1}")
    e(f"v_lshlrev_b32 v8, 4, v{VLANE}")
    e(f"ds_write_b128 v8, {vr(TMP,4)} offset:{LDS_Q}")
    e("s_waitcnt lgkmcnt(0)")
    e.label("L_qjoin")
    e("s_barrier")
    stamp(4)
    for i in range(32):
        e(f"v_mov_b32 v{O+i}, 0")
    for i in range(16):
        e(f"v_mov_b32 v{Q+i}, 0")
    e(f"v_lshlrev_b32 v8, 8, v{VC}")
    e(f"v_lshl_add_u32 v8, v{VG}, 4, v8")
    e(f"v_cmp_gt_u32 vcc, 4, v{VC}")
    e("s_and_saveexec_b64 s[34:35], vcc")
    for j in range(4):
        e(f"ds_read_b128 {vr(Q+4*j,4)}, v8 offset:{LDS_Q + j*64}")
    e("s_mov_b64 exec, s[34:35]")
    e(f"s_mov_b32 s46, {NIT//2}")
    e(f"v_mov_b32 v{VM}, 0xff800000")
    e(f"v_mov_b32 v{VL}, 0")
    e(f"v_mov_b32 v{VMC}, 0")
    e("s_waitcnt lgkmcnt(0)")
    e.label("L_loop")
    for st in range(2):
        K, V = KB[st], VB[st]
        e("s_waitcnt vmcnt(24)")
        for j in range(4):
            for T in range(2):
                c = "0" if j == 0 else vr(S+4*T, 4)
                e(f"v_mfma_f32_16x16x32_bf16 {vr(S+4*T,4)}, {vr(K+16*T+4*j,4)}, {vr(Q+4*j,4)}, {c}")
        e("s_cmp_gt_u32 s46, 1")
        e("s_cselect_b32 s47, s44, 0x40000000")
        loadK(st, "s47")
        e(f"v_max3_f32 v{VT}, v{S}, v{S+1}, v{S+2}")
        e(f"v_max3_f32 v{VT}, v{VT}, v{S+3}, v{S+4}")
        e(f"v_max3_f32 v{VT}, v{VT}, v{S+5}, v{S+6}")
        e(f"v_max3_f32 v{VT}, v{VT}, v{S+7}, v{VM}")
        e(f"v_mov_b32 v{VT2}, v{VT}")
        e("s_nop 1")
        e(f"v_permlane16_swap_b32 v{VT}, v{VT2}")
        e("s_nop 0")
        e(f"v_max_f32 v{VT}, v{VT}, v{VT2}")
        e(f"v_mov_b32 v{VT2}, v{VT}")
        e("s_nop 1")
        e(f"v_permlane32_swap_b32 v{VT}, v{VT2}")
        e("s_nop 0")
        e(f"v_max_f32 v{VT}, v{VT}, v{VT2}")
        e(f"v_cmp_gt_f32 vcc, v{VT}, v{VM}")
        e(f"s_cbranch_vccz L_skip{st}")
        e(f"v_sub_f32 v{VD}, v{VM}, v{VT}")
        e(f"v_mul_f32 v{VD}, s42, v{VD}")
        e(f"v_exp_f32 v{VD}, v{VD}")
        e(f"v_mov_b32 v{VM}, v{VT}")
        e(f"v_mul_f32 v{VMC}, s42, v{VT}")
        e(f"v_mul_f32 v{VL}, v{VL}, v{VD}")
        for h in range(4):
            e(f"v_readlane_b32 s{48+h}, v{VD}, {h}")
        e("s_nop 1")
        for i in range(8):
            for r in range(4):
                e(f"v_mul_f32 v{O+4*i+r}, s{48+r}, v{O+4*i+r}")
        e.label(f"L_skip{st}")
        for i in range(8):
            e(f"v_fma_f32 v{S+i}, v{S+i}, s42, -v{VMC}")
        for i in range(8):
            e(f"v_exp_f32 v{S+i}, v{S+i}")
        e("s_nop 0")
        e(f"v_add_f32 v{VT}, v{S}, v{S+1}")
        e(f"v_add_f32 v{VT2}, v{S+2}, v{S+3}")
        e(f"v_add_f32 v{VD}, v{S+4}, v{S+5}")
        e(f"v_add_f32 v{VL}, v{VL}, v{VT}")
        e(f"v_add_f32 v{VT}, v{S+6}, v{S+7}")
        e(f"v_add_f32 v{VT2}, v{VT2}, v{VD}")
        e(f"v_add_f32 v{VL}, v{VL}, v{VT}")
        e(f"v_add_f32 v{VL}, v{VL}, v{VT2}")
        for k in range(4):
            e(f"v_cvt_pk_bf16_f32 v{P+k}, v{S+2*k}, v{S+2*k+1}")
        e("s_waitcnt vmcnt(24)")
        perm_mfma(e, V, TMP, O, P, 40, 41)
        loadV(st, "s47")
        e(f"s_add_u32 s44, s44, {step}")
    e("s_sub_u32 s46, s46, 1")
    e("s_cmp_lg_u32 s46, 0")
    e("s_cbranch_scc1 L_loop")
    stamp(5)
    e(f"v_mov_b32 v{VT}, v{VL}")
    e(f"v_mov_b32 v{VT2}, v{VL}")
    e("s_nop 1")
    e(f"v_permlane16_swap_b32 v{VT}, v{VT2}")
    e("s_nop 0")
    e(f"v_add_f32 v{VT}, v{VT}, v{VT2}")
    e(f"v_mov_b32 v{VT2}, v{VT}")
    e("s_nop 1")
    e(f"v_permlane32_swap_b32 v{VT}, v{VT2}")
    e("s_nop 0")
    e(f"v_add_f32 v{VT2}, v{VT}, v{VT2}")
    e(f"v_mov_b32 v{VT}, v{VM}")
    e(f"v_lshlrev_b32 v12, 3, v{VLANE}")
    e("s_lshl_b32 s18, s16, 5")
    e(f"s_add_u32 s18, s18, {LDS_ML}")
    e("v_add_u32 v12, s18, v12")
    e(f"v_lshlrev_b32 v13, 5, v{VLANE}")
    e("s_lshl_b32 s18, s16, 11")
    e("v_add_u32 v13, s18, v13")
    e("s_mov_b64 exec, 0xf")
    e(f"ds_write_b64 v12, v[{VT}:{VT2}]")
    e("s_mov_b64 exec, 0xffff")
    for i in range(8):
        for r in range(4):
            e(f"ds_write_b32 v13, v{O+4*i+r} offset:{LDS_O + r*512 + i*4}")
    e("s_mov_b64 exec, -1")
    e("s_lshr_b32 s94, s80, 2")
    e("s_lshl_b32 s93, s78, 2")
    e("s_add_u32 s94, s94, s93")
    e("s_and_b32 s95, s80, 3")
    e("s_waitcnt vmcnt(0)")
    e("s_cmp_lt_u32 s16, 4")
    e("s_cbranch_scc1 L_pub")
    srd(e, 88, 76, 77, 4194304)
    e("s_sub_u32 s96, s16, 4")
    e("s_lshl_b32 s17, s94, 7")
    e("s_lshl_b32 s18, s96, 5")
    e("s_add_u32 s17, s17, s18")
    e(f"v_lshl_add_u32 v14, v{VG}, 3, s17")
    e("v_lshlrev_b32 v14, 10, v14")
    e(f"v_lshl_add_u32 v14, v{VC}, 4, v14")
    e("s_lshl_b32 s17, s95, 8")
    e("v_add_u32 v14, s17, v14")
    e("v_add_u32 v15, 0x1000, v14")
    for t in range(8):
        vo = 15 if t >= 4 else 14
        e(f"buffer_load_dwordx4 {vr(KB[0]+4*t,4)}, v{vo}, s[88:91], 0 offen offset:{(t&3)*1024}")
    OP_P = 8 * 32 * NSPLIT * 512
    ML_P = 8 * 32 * NSPLIT * 8
    e(f"s_mul_i32 s17, s3, {OP_P}")
    e(f"s_add_u32 s17, s17, {WS_O}")
    e("s_add_u32 s18, s12, s17")
    e("s_addc_u32 s19, s13, 0")
    srd(e, 84, 18, 19, OP_P)
    e(f"s_mul_i32 s17, s3, {ML_P}")
    e(f"s_add_u32 s17, s17, {WS_ML}")
    e("s_add_u32 s18, s12, s17")
    e("s_addc_u32 s19, s13, 0")
    srd(e, 56, 18, 19, ML_P)
    e(f"v_mul_u32_u24 v16, {32*NSPLIT*512}, v{VC}")
    e("s_lshl_b32 s17, s96, 7")
    e("v_add_u32 v16, s17, v16")
    e(f"v_lshl_add_u32 v16, v{VG}, 5, v16")
    e(f"v_mul_u32_u24 v17, {32*NSPLIT*8}, v{VC}")
    e("s_lshl_b32 s18, s96, 12")
    e(f"v_lshl_add_u32 v18, v{VG}, 11, s18")
    e(f"v_lshl_add_u32 v18, v{VC}, 5, v18")
    e("s_waitcnt lgkmcnt(0)")
    e("s_barrier")
    e("s_barrier")
    e("s_barrier")
    PB = KB[1]
    MB = PB + 16
    e(f"s_mul_i32 s17, s94, {NSPLIT*512}")
    for s_ in range(NSPLIT):
        e(f"buffer_load_dwordx4 {vr(PB+8*s_,4)}, v16, s[84:87], s17 offen offset:{s_*512} sc1")
        e(f"buffer_load_dwordx4 {vr(PB+8*s_+4,4)}, v16, s[84:87], s17 offen offset:{s_*512+16} sc1")
    e(f"s_mul_i32 s17, s94, {NSPLIT*8}")
    e(f"buffer_load_dwordx4 {vr(MB,4)}, v17, s[56:59], s17 offen sc1")
    e("s_waitcnt vmcnt(0)")
    e(f"v_max_f32 v19, v{MB}, v{MB+2}")
    for s_ in range(NSPLIT):
        e(f"v_sub_f32 v{MB+2*s_}, v{MB+2*s_}, v19")
        e(f"v_mul_f32 v{MB+2*s_}, s42, v{MB+2*s_}")
        e(f"v_exp_f32 v{MB+2*s_}, v{MB+2*s_}")
    e("s_nop 0")
    e(f"v_mul_f32 v19, v{MB}, v{MB+1}")
    e(f"v_fmac_f32 v19, v{MB+2}, v{MB+3}")
    e("v_rcp_f32 v19, v19")
    e("s_nop 0")
    for s_ in range(NSPLIT):
        e(f"v_mul_f32 v{MB+2*s_}, v{MB+2*s_}, v19")
    for k in range(8):
        e(f"v_mul_f32 v{PB+k}, v{PB+k}, v{MB}")
        e(f"v_fmac_f32 v{PB+k}, v{PB+8+k}, v{MB+2}")
    for k in range(4):
        e(f"v_cvt_pk_bf16_f32 v{P+k}, v{PB+2*k}, v{PB+2*k+1}")
    perm_mfma(e, KB[0], TMP, O, P, 40, 41, first=True)
    e("s_nop 7")
    e("s_mov_b32 exec_lo, -1")
    e("s_mov_b32 exec_hi, 0")
    for i in range(8):
        for r in range(4):
            e(f"ds_write_b32 v18, v{O+4*i+r} offset:{LDS_O + r*512+i*4}")
    e("s_mov_b64 exec, -1")
    e("s_waitcnt lgkmcnt(0)")
    e("s_branch L_ojoin")
    e.label("L_pub")
    e("s_waitcnt lgkmcnt(0)")
    e("s_barrier")
    e("s_lshl_b32 s17, s16, 3")
    e(f"v_mov_b32 v16, s17")
    e("s_lshl_b32 s17, s16, 9")
    e(f"v_lshl_add_u32 v17, v{VLANE}, 3, s17")
    for w in range(NW):
        e(f"ds_read_b64 {vr(72+2*w,2)}, v16 offset:{LDS_ML + w*32}")
    for w in range(NW):
        e(f"ds_read_b64 {vr(104+2*w,2)}, v17 offset:{LDS_O + w*2048}")
    e("s_waitcnt lgkmcnt(0)")
    e("v_max_f32 v18, v72, v74")
    for w in range(2, NW):
        e(f"v_max_f32 v18, v18, v{72+2*w}")
    e("v_mov_b32 v19, 0")
    e("v_mov_b32 v20, 0")
    e("v_mov_b32 v21, 0")
    for w in range(NW):
        e(f"v_sub_f32 v22, v{72+2*w}, v18")
        e("v_mul_f32 v22, s42, v22")
        e("v_exp_f32 v22, v22")
        e("s_nop 0")
        e(f"v_fmac_f32 v19, v22, v{73+2*w}")
        e(f"v_fmac_f32 v20, v22, v{104+2*w}")
        e(f"v_fmac_f32 v21, v22, v{105+2*w}")
    e("s_lshl_b32 s18, s3, 6")
    e("s_add_u32 s18, s18, s14")
    e("s_lshl_b32 s18, s18, 2")
    e("s_add_u32 s18, s18, s16")
    e(f"s_mul_i32 s19, s18, {NSPLIT*512}")
    e("s_lshl_b32 s36, s15, 9")
    e("s_add_u32 s19, s19, s36")
    e(f"s_add_u32 s19, s19, {WS_O}")
    e(f"v_lshlrev_b32 v22, 3, v{VLANE}")
    e("buffer_store_dwordx2 v[20:21], v22, s[28:31], s19 offen sc1")
    e(f"s_mul_i32 s19, s18, {NSPLIT*8}")
    e("s_lshl_b32 s36, s15, 3")
    e("s_add_u32 s19, s19, s36")
    e(f"s_add_u32 s19, s19, {WS_ML}")
    e("s_mov_b64 exec, 1")
    e(f"buffer_store_dwordx2 v[18:19], v{VZ}, s[28:31], s19 offen sc1")
    e("s_mov_b64 exec, -1")
    e("s_waitcnt vmcnt(0)")
    e("s_barrier")
    stamp(6)
    e("s_cmp_lg_u32 s16, 0")
    e("s_cbranch_scc1 L_pub_np")
    e("v_mov_b32 v8, 1")
    e("s_mov_b64 exec, 1")
    e(f"s_add_u32 s17, s82, {CO}")
    e(f"buffer_atomic_add v8, v{VZ}, s[60:63], s17 offen")
    e("s_mov_b64 exec, -1")
    poll(e, "o", 60, "s17", 16, 9, VZ)
    e(f"s_mov_b32 s17, {CZ}")
    poll(e, "z", 60, "s17", 8, 9, VZ)
    stamp(7)
    e.label("L_pub_np")
    e("s_barrier")
    e.label("L_ojoin")
    e("s_barrier")
    stamp(8)
    e("v_lshlrev_b32 v8, 2, v0")
    for u in range(2):
        for w in range(4):
            e(f"ds_read_b32 v{72+4*u+w}, v8 offset:{LDS_O + w*4096+u*2048}")
    e("v_lshrrev_b32 v9, 7, v0")
    e("v_and_b32 v10, 127, v0")
    e("v_lshlrev_b32 v9, 12, v9")
    e("v_lshl_add_u32 v9, v10, 2, v9")
    e("s_lshl_b32 s17, s3, 11")
    e("s_lshl_b32 s18, s95, 9")
    e("s_add_u32 s17, s17, s18")
    e(f"s_add_u32 s17, s17, {WS_ACC}")
    e("s_add_u32 s18, s17, 16384")
    e("s_waitcnt lgkmcnt(0)")
    for u in range(2):
        e(f"v_add_f32 v{72+4*u}, v{72+4*u}, v{73+4*u}")
        e(f"v_add_f32 v{74+4*u}, v{74+4*u}, v{75+4*u}")
    for u in range(2):
        e(f"v_add_f32 v{72+4*u}, v{72+4*u}, v{74+4*u}")
    e("buffer_atomic_add_f32 v72, v9, s[28:31], s17 offen")
    e("buffer_atomic_add_f32 v76, v9, s[28:31], s18 offen")
    e("s_waitcnt vmcnt(0)")
    e("s_barrier")
    stamp(9)
    e("s_cmp_lg_u32 s16, 0")
    e("s_cbranch_scc1 L_fin")
    e("s_lshl_b32 s19, s3, 2")
    e("s_add_u32 s19, s19, s95")
    e("s_lshl_b32 s19, s19, 2")
    e(f"s_add_u32 s19, s19, {CF}")
    e("v_mov_b32 v8, 1")
    e("s_mov_b64 exec, 1")
    e(f"buffer_atomic_add v8, v{VZ}, s[60:63], s19 offen sc0")
    e("s_waitcnt vmcnt(0)")
    e("s_mov_b64 exec, -1")
    e("v_readfirstlane_b32 s19, v8")
    stamp(10)
    e("s_cmp_lg_u32 s19, 31")
    e("s_cbranch_scc1 L_fin")
    e(f"v_lshlrev_b32 v9, 3, v{VLANE}")
    for i in range(16):
        e(f"v_mov_b32 v{72+i}, 0")
    e("s_mov_b32 s18, s17")
    for i in range(8):
        e(f"buffer_atomic_add_f32 v{72+2*i}, v9, s[28:31], s18 offen sc0")
        e(f"buffer_atomic_add_f32 v{73+2*i}, v9, s[28:31], s18 offen offset:4 sc0")
        if i < 7:
            e("s_add_u32 s18, s18, 4096")
    srd(e, 64, 52, 53, 16384)
    e("s_lshl_b32 s18, s3, 10")
    e("s_lshl_b32 s19, s95, 8")
    e("s_add_u32 s18, s18, s19")
    e(f"v_lshlrev_b32 v10, 2, v{VLANE}")
    e("s_waitcnt vmcnt(0)")
    for i in range(8):
        e(f"v_cvt_pk_bf16_f32 v{72+2*i}, v{72+2*i}, v{73+2*i}")
        e(f"buffer_store_dword v{72+2*i}, v10, s[64:67], s18 offen")
        if i < 7:
            e("s_add_u32 s18, s18, 2048")
    stamp(11)
    e.label("L_fin")
    if cfg.STAMP:
        srd(e, 28, 12, 13, 0x800000)
        e("s_lshl_b32 s18, s2, 3")
        e("s_add_u32 s18, s18, s16")
        e("s_lshl_b32 s18, s18, 8")
        e("s_add_u32 s18, s18, 0x400000")
        e(f"v_lshlrev_b32 v9, 2, v{VLANE}")
        e(f"buffer_store_dword v{VST}, v9, s[28:31], s18 offen")
    e.label("L_end")
    e("s_endpgm")
    return name, NV, LDS_TOTAL, NWG


def poll2(e, tag, dbg_srd, soff, target, vtmp, vzero, sleep):
    e(f"s_mov_b32 s38, 400000")
    e.label(f"L_poll_{tag}")
    e(f"buffer_load_dword v{vtmp}, v{vzero}, s[{dbg_srd}:{dbg_srd+3}], {soff} offen sc1")
    e("s_waitcnt vmcnt(0)")
    e(f"v_readfirstlane_b32 s39, v{vtmp}")
    e(f"s_cmp_ge_u32 s39, {target}")
    e(f"s_cbranch_scc1 L_polld_{tag}")
    if sleep:
        e(f"s_sleep {sleep}")
    e("s_sub_u32 s38, s38, 1")
    e("s_cmp_lg_u32 s38, 0")
    e(f"s_cbranch_scc1 L_poll_{tag}")
    e.label(f"L_polld_{tag}")

def gen_fused2(e, cfg):
    name = NAME + "_kernel"
    NW, NSPLIT = 8, 2
    NWG = 256
    KEYS_WG = 4096
    NTILE = KEYS_WG // 32
    cscale = (128 ** -0.5) * math.log2(math.e)
    VKO0, VKO1, VVO0, VVO1 = 1, 2, 3, 4
    VM, VL, VMC, VT, VT2, VD = 5, 6, 7, 8, 9, 10
    VLANE = 11
    Q = 12; S = 28; P = 36; O = 40
    KB = [72, 104]; VB = [136, 168]; TMP = 200
    VC, VG, VZ, VST, VTK, VONE = 232, 233, 234, 235, 236, 237
    NV = 238
    LDS_O = 0
    LDS_ML = 16384
    LDS_Q = LDS_ML + 256
    LDS_TK = LDS_Q + 1024
    LDS_TOTAL = LDS_TK + 16
    CQ, CO, CF, CZ = 0, 64, 128, 160
    def stamp(i):
        if cfg.STAMP:
            e("s_memrealtime s[98:99]")
            e("s_waitcnt lgkmcnt(0)")
            e(f"v_writelane_b32 v{VST}, s98, {i}")
    kernel_begin(e, name)
    e(f"s_cmp_ge_u32 s2, {NWG}")
    e("s_cbranch_scc1 L_end")
    if cfg.STAMP:
        e(f"v_mov_b32 v{VST}, 0")
    stamp(0)
    e("s_lshr_b32 s3, s2, 7")
    e("s_lshr_b32 s14, s2, 1")
    e("s_and_b32 s14, s14, 63")
    e("s_and_b32 s15, s2, 1")
    e("s_mul_i32 s4, s3, 40")
    e("s_add_u32 s6, s0, s4")
    e("s_addc_u32 s7, s1, 0")
    e("s_load_dwordx8 s[68:75], s[6:7], 0")
    e("s_load_dwordx2 s[76:77], s[6:7], 32")
    e("s_load_dwordx4 s[52:55], s[0:1], 80")
    e("s_load_dwordx2 s[12:13], s[0:1], 96")
    e(f"v_and_b32 v{VLANE}, 63, v0")
    e("v_lshrrev_b32 v5, 6, v0")
    e("s_nop 0")
    e("v_readfirstlane_b32 s16, v5")
    e(f"v_and_b32 v{VC}, 15, v{VLANE}")
    e(f"v_lshrrev_b32 v{VG}, 4, v{VLANE}")
    e(f"v_mov_b32 v{VZ}, 0")
    e(f"v_mov_b32 v{VONE}, 1")
    e(f"v_and_b32 v8, 3, v{VC}")
    e(f"v_lshrrev_b32 v9, 2, v{VC}")
    e("v_lshl_add_u32 v8, v8, 2, v9")
    e("v_lshlrev_b32 v8, 8, v8")
    e(f"v_lshl_add_u32 v{VKO0}, v{VG}, 4, v8")
    e(f"v_add_u32 v{VKO1}, 0x1000, v{VKO0}")
    e(f"v_lshlrev_b32 v{VVO0}, 4, v{VLANE}")
    e(f"v_add_u32 v{VVO1}, 0x1000, v{VVO0}")
    e("s_mov_b32 s40, 0x05040100")
    e("s_mov_b32 s41, 0x07060302")
    e(f"s_mov_b32 s42, {f2u(cscale):#x}")
    e("s_and_b32 s78, s14, 7")
    e("s_lshr_b32 s79, s14, 3")
    e("s_lshl_b32 s80, s79, 1")
    e("s_add_u32 s80, s80, s15")
    e("s_lshl_b32 s81, s3, 3")
    e("s_add_u32 s81, s81, s78")
    e("s_lshl_b32 s82, s81, 2")
    e("s_lshl_b32 s17, s14, 21")
    e(f"s_mul_i32 s18, s15, {KEYS_WG*256}")
    e("s_add_u32 s17, s17, s18")
    e("s_add_u32 s44, s16, 4")
    e("s_and_b32 s44, s44, 7")
    e("s_cmp_lt_u32 s16, 4")
    e("s_cselect_b32 s45, 4, 0")
    e("s_add_u32 s44, s44, s45")
    e("s_add_u32 s45, s44, 4")
    e("s_waitcnt lgkmcnt(0)")
    e("s_add_u32 s8, s70, s17")
    e("s_addc_u32 s9, s71, 0")
    e("s_add_u32 s10, s72, s17")
    e("s_addc_u32 s11, s73, 0")
    srd(e, 20, 8, 9, KEYS_WG * 256)
    srd(e, 24, 10, 11, KEYS_WG * 256)
    srd(e, 28, 12, 13, 0x220000)
    srd(e, 60, 54, 55, 256)
    def loadK(st, soff):
        for T in range(2):
            for j in range(4):
                vo = VKO1 if T else VKO0
                e(f"buffer_load_dwordx4 {vr(KB[st]+16*T+4*j,4)}, v{vo}, s[20:23], {soff} offen offset:{j*64}{cfg.NT}")
    def loadV(st, soff):
        for t in range(8):
            vo = VVO1 if t >= 4 else VVO0
            e(f"buffer_load_dwordx4 {vr(VB[st]+4*t,4)}, v{vo}, s[24:27], {soff} offen offset:{(t&3)*1024}{cfg.NT}")
    def prefetch():
        e("s_lshl_b32 s47, s44, 13")
        loadK(0, "s47"); loadV(0, "s47")
        e("s_lshl_b32 s47, s45, 13")
        loadK(1, "s47"); loadV(1, "s47")
    e("s_cmp_lt_u32 s16, 4")
    e("s_cbranch_scc1 L_qrole")
    prefetch()
    e("s_branch L_qjoin")
    e.label("L_qrole")
    e("s_lshl_b32 s17, s79, 10")
    e("s_add_u32 s18, s68, s17")
    e("s_addc_u32 s19, s69, 0")
    srd(e, 84, 18, 19, 1024)
    srd(e, 88, 74, 75, 4194304)
    e("s_cmp_ge_u32 s2, 8")
    e("s_cbranch_scc1 L_nozero")
    for k in range(4):
        e(f"v_mov_b32 v{S+k}, 0")
    e("v_lshlrev_b32 v8, 4, v0")
    e("s_lshl_b32 s18, s2, 12")
    e(f"s_add_u32 s18, s18, {WS_ACC}")
    e(f"buffer_store_dwordx4 {vr(S,4)}, v8, s[28:31], s18 offen sc1")
    e.label("L_nozero")
    e(f"v_lshlrev_b32 v8, 10, v{VC}")
    e(f"v_lshl_add_u32 v8, v{VG}, 4, v8")
    e(f"v_lshlrev_b32 v9, 16, v{VG}")
    e(f"v_lshl_add_u32 v9, v{VC}, 4, v9")
    e("s_lshl_b32 s17, s78, 10")
    e("s_lshl_b32 s18, s16, 8")
    e("s_add_u32 s17, s17, s18")
    bufs = [KB[0], KB[1], VB[0], VB[1]]
    def qload(T):
        bq = bufs[T & 3]
        e(f"buffer_load_dwordx4 {vr(Q+4*(T&3),4)}, v8, s[84:87], 0 offen offset:{T*64}")
        for t in range(8):
            e(f"buffer_load_dwordx4 {vr(bq+4*t,4)}, v9, s[88:91], s17 offen")
            e("s_add_u32 s17, s17, 8192")
        e(f"s_add_u32 s17, s17, {24*8192}")
    for T in range(4):
        qload(T)
    for T in range(16):
        rem = min(3, 15 - T)
        e(f"s_waitcnt vmcnt({9*rem})")
        perm_mfma(e, bufs[T & 3], TMP, O, Q + 4*(T & 3), 40, 41, first=(T == 0))
        if T + 4 < 16:
            qload(T + 4)
    stamp(1)
    e("s_nop 7")
    for k in range(4):
        e(f"v_cvt_pk_bf16_f32 v{S+k}, v{O+8*k}, v{O+8*k+4}")
    e(f"v_lshlrev_b32 v8, 4, v{VLANE}")
    e("s_lshl_b32 s18, s16, 8")
    e("v_add_u32 v8, s18, v8")
    e("s_mov_b64 exec, 0xffff")
    e(f"ds_write_b128 v8, {vr(S,4)} offset:{LDS_Q}")
    e("s_mov_b64 exec, 1")
    e("v_mov_b32 v9, 16")
    e(f"ds_write_b32 v{VZ}, v9 offset:{LDS_TK}")
    e("s_mov_b64 exec, -1")
    prefetch()
    e("s_waitcnt lgkmcnt(0)")
    e.label("L_qjoin")
    e("s_barrier")
    stamp(4)
    e("s_cmp_ge_u32 s2, 8")
    e("s_cbranch_scc1 L_nozero2")
    e("s_cmp_lg_u32 s16, 0")
    e("s_cbranch_scc1 L_nozero2")
    e("s_mov_b64 exec, 1")
    e(f"buffer_atomic_add v{VONE}, v{VZ}, s[60:63], 0 offen offset:{CZ}")
    e("s_mov_b64 exec, -1")
    e("s_waitcnt vmcnt(0)")
    e.label("L_nozero2")
    for i in range(32):
        e(f"v_mov_b32 v{O+i}, 0")
    for i in range(16):
        e(f"v_mov_b32 v{Q+i}, 0")
    e(f"v_lshlrev_b32 v8, 8, v{VC}")
    e(f"v_lshl_add_u32 v8, v{VG}, 4, v8")
    e(f"v_cmp_gt_u32 vcc, 4, v{VC}")
    e("s_and_saveexec_b64 s[34:35], vcc")
    for j in range(4):
        e(f"ds_read_b128 {vr(Q+4*j,4)}, v8 offset:{LDS_Q + j*64}")
    e("s_mov_b64 exec, s[34:35]")
    e(f"v_mov_b32 v{VM}, 0xff800000")
    e(f"v_mov_b32 v{VL}, 0")
    e(f"v_mov_b32 v{VMC}, 0")
    e("s_waitcnt lgkmcnt(0)")
    e.label("L_loop")
    for st in range(2):
        K, V = KB[st], VB[st]
        tk = 44 + st
        e(f"s_cmp_ge_u32 s{tk}, {NTILE}")
        e("s_cbranch_scc1 L_loopend")
        e("s_mov_b64 exec, 1")
        e(f"ds_add_rtn_u32 v{VTK}, v{VZ}, v{VONE} offset:{LDS_TK}")
        e("s_mov_b64 exec, -1")
        e("s_waitcnt vmcnt(24)")
        for j in range(4):
            for T in range(2):
                c = "0" if j == 0 else vr(S+4*T, 4)
                e(f"v_mfma_f32_16x16x32_bf16 {vr(S+4*T,4)}, {vr(K+16*T+4*j,4)}, {vr(Q+4*j,4)}, {c}")
        e("s_waitcnt lgkmcnt(0)")
        e(f"v_readfirstlane_b32 s{tk}, v{VTK}")
        e(f"s_lshl_b32 s47, s{tk}, 13")
        e(f"s_cmp_ge_u32 s{tk}, {NTILE}")
        e("s_cselect_b32 s47, 0x40000000, s47")
        loadK(st, "s47")
        e(f"v_max3_f32 v{VT}, v{S}, v{S+1}, v{S+2}")
        e(f"v_max3_f32 v{VT}, v{VT}, v{S+3}, v{S+4}")
        e(f"v_max3_f32 v{VT}, v{VT}, v{S+5}, v{S+6}")
        e(f"v_max3_f32 v{VT}, v{VT}, v{S+7}, v{VM}")
        e(f"v_mov_b32 v{VT2}, v{VT}")
        e("s_nop 1")
        e(f"v_permlane16_swap_b32 v{VT}, v{VT2}")
        e("s_nop 0")
        e(f"v_max_f32 v{VT}, v{VT}, v{VT2}")
        e(f"v_mov_b32 v{VT2}, v{VT}")
        e("s_nop 1")
        e(f"v_permlane32_swap_b32 v{VT}, v{VT2}")
        e("s_nop 0")
        e(f"v_max_f32 v{VT}, v{VT}, v{VT2}")
        e(f"v_cmp_gt_f32 vcc, v{VT}, v{VM}")
        e(f"s_cbranch_vccz L_skip{st}")
        e(f"v_sub_f32 v{VD}, v{VM}, v{VT}")
        e(f"v_mul_f32 v{VD}, s42, v{VD}")
        e(f"v_exp_f32 v{VD}, v{VD}")
        e(f"v_mov_b32 v{VM}, v{VT}")
        e(f"v_mul_f32 v{VMC}, s42, v{VT}")
        e(f"v_mul_f32 v{VL}, v{VL}, v{VD}")
        for h in range(4):
            e(f"v_readlane_b32 s{48+h}, v{VD}, {h}")
        e("s_nop 1")
        for i in range(8):
            for r in range(4):
                e(f"v_mul_f32 v{O+4*i+r}, s{48+r}, v{O+4*i+r}")
        e.label(f"L_skip{st}")
        for i in range(8):
            e(f"v_fma_f32 v{S+i}, v{S+i}, s42, -v{VMC}")
        for i in range(8):
            e(f"v_exp_f32 v{S+i}, v{S+i}")
        e("s_nop 0")
        e(f"v_add_f32 v{VT}, v{S}, v{S+1}")
        e(f"v_add_f32 v{VT2}, v{S+2}, v{S+3}")
        e(f"v_add_f32 v{VD}, v{S+4}, v{S+5}")
        e(f"v_add_f32 v{VL}, v{VL}, v{VT}")
        e(f"v_add_f32 v{VT}, v{S+6}, v{S+7}")
        e(f"v_add_f32 v{VT2}, v{VT2}, v{VD}")
        e(f"v_add_f32 v{VL}, v{VL}, v{VT}")
        e(f"v_add_f32 v{VL}, v{VL}, v{VT2}")
        for k in range(4):
            e(f"v_cvt_pk_bf16_f32 v{P+k}, v{S+2*k}, v{S+2*k+1}")
        e("s_waitcnt vmcnt(24)")
        perm_mfma(e, V, TMP, O, P, 40, 41)
        loadV(st, "s47")
    e("s_branch L_loop")
    e.label("L_loopend")
    stamp(5)
    e(f"v_mov_b32 v{VT}, v{VL}")
    e(f"v_mov_b32 v{VT2}, v{VL}")
    e("s_nop 1")
    e(f"v_permlane16_swap_b32 v{VT}, v{VT2}")
    e("s_nop 0")
    e(f"v_add_f32 v{VT}, v{VT}, v{VT2}")
    e(f"v_mov_b32 v{VT2}, v{VT}")
    e("s_nop 1")
    e(f"v_permlane32_swap_b32 v{VT}, v{VT2}")
    e("s_nop 0")
    e(f"v_add_f32 v{VT2}, v{VT}, v{VT2}")
    e(f"v_mov_b32 v{VT}, v{VM}")
    e(f"v_lshlrev_b32 v12, 3, v{VLANE}")
    e("s_lshl_b32 s18, s16, 5")
    e(f"s_add_u32 s18, s18, {LDS_ML}")
    e("v_add_u32 v12, s18, v12")
    e(f"v_lshlrev_b32 v13, 5, v{VLANE}")
    e("s_lshl_b32 s18, s16, 11")
    e("v_add_u32 v13, s18, v13")
    e("s_mov_b64 exec, 0xf")
    e(f"ds_write_b64 v12, v[{VT}:{VT2}]")
    e("s_mov_b64 exec, 0xffff")
    for i in range(8):
        for r in range(4):
            e(f"ds_write_b32 v13, v{O+4*i+r} offset:{LDS_O + r*512 + i*4}")
    e("s_mov_b64 exec, -1")
    e("s_lshr_b32 s94, s80, 2")
    e("s_lshl_b32 s93, s78, 2")
    e("s_add_u32 s94, s94, s93")
    e("s_and_b32 s95, s80, 3")
    e("s_waitcnt vmcnt(0)")
    e("s_cmp_lt_u32 s16, 4")
    e("s_cbranch_scc1 L_pub")
    srd(e, 88, 76, 77, 4194304)
    e("s_sub_u32 s96, s16, 4")
    e("s_lshl_b32 s17, s94, 7")
    e("s_lshl_b32 s18, s96, 5")
    e("s_add_u32 s17, s17, s18")
    e(f"v_lshl_add_u32 v14, v{VG}, 3, s17")
    e("v_lshlrev_b32 v14, 10, v14")
    e(f"v_lshl_add_u32 v14, v{VC}, 4, v14")
    e("s_lshl_b32 s17, s95, 8")
    e("v_add_u32 v14, s17, v14")
    e("v_add_u32 v15, 0x1000, v14")
    for t in range(8):
        vo = 15 if t >= 4 else 14
        e(f"buffer_load_dwordx4 {vr(KB[0]+4*t,4)}, v{vo}, s[88:91], 0 offen offset:{(t&3)*1024}")
    OP_P = 8 * 32 * NSPLIT * 512
    ML_P = 8 * 32 * NSPLIT * 8
    e(f"s_mul_i32 s17, s3, {OP_P}")
    e(f"s_add_u32 s17, s17, {WS_O}")
    e("s_add_u32 s18, s12, s17")
    e("s_addc_u32 s19, s13, 0")
    srd(e, 84, 18, 19, OP_P)
    e(f"s_mul_i32 s17, s3, {ML_P}")
    e(f"s_add_u32 s17, s17, {WS_ML}")
    e("s_add_u32 s18, s12, s17")
    e("s_addc_u32 s19, s13, 0")
    srd(e, 56, 18, 19, ML_P)
    e(f"v_mul_u32_u24 v16, {32*NSPLIT*512}, v{VC}")
    e("s_lshl_b32 s17, s96, 7")
    e("v_add_u32 v16, s17, v16")
    e(f"v_lshl_add_u32 v16, v{VG}, 5, v16")
    e(f"v_mul_u32_u24 v17, {32*NSPLIT*8}, v{VC}")
    e("s_lshl_b32 s18, s96, 12")
    e(f"v_lshl_add_u32 v18, v{VG}, 11, s18")
    e(f"v_lshl_add_u32 v18, v{VC}, 5, v18")
    e("s_waitcnt lgkmcnt(0)")
    e("s_barrier")
    e("s_barrier")
    e("s_barrier")
    PB = KB[1]
    MB = PB + 16
    e(f"s_mul_i32 s17, s94, {NSPLIT*512}")
    for s_ in range(NSPLIT):
        e(f"buffer_load_dwordx4 {vr(PB+8*s_,4)}, v16, s[84:87], s17 offen offset:{s_*512} sc1")
        e(f"buffer_load_dwordx4 {vr(PB+8*s_+4,4)}, v16, s[84:87], s17 offen offset:{s_*512+16} sc1")
    e(f"s_mul_i32 s17, s94, {NSPLIT*8}")
    e(f"buffer_load_dwordx4 {vr(MB,4)}, v17, s[56:59], s17 offen sc1")
    e("s_waitcnt vmcnt(0)")
    e(f"v_max_f32 v19, v{MB}, v{MB+2}")
    for s_ in range(NSPLIT):
        e(f"v_sub_f32 v{MB+2*s_}, v{MB+2*s_}, v19")
        e(f"v_mul_f32 v{MB+2*s_}, s42, v{MB+2*s_}")
        e(f"v_exp_f32 v{MB+2*s_}, v{MB+2*s_}")
    e("s_nop 0")
    e(f"v_mul_f32 v19, v{MB}, v{MB+1}")
    e(f"v_fmac_f32 v19, v{MB+2}, v{MB+3}")
    e("v_rcp_f32 v19, v19")
    e("s_nop 0")
    for s_ in range(NSPLIT):
        e(f"v_mul_f32 v{MB+2*s_}, v{MB+2*s_}, v19")
    for k in range(8):
        e(f"v_mul_f32 v{PB+k}, v{PB+k}, v{MB}")
        e(f"v_fmac_f32 v{PB+k}, v{PB+8+k}, v{MB+2}")
    for k in range(4):
        e(f"v_cvt_pk_bf16_f32 v{P+k}, v{PB+2*k}, v{PB+2*k+1}")
    perm_mfma(e, KB[0], TMP, O, P, 40, 41, first=True)
    e("s_nop 7")
    e("s_mov_b32 exec_lo, -1")
    e("s_mov_b32 exec_hi, 0")
    for i in range(8):
        for r in range(4):
            e(f"ds_write_b32 v18, v{O+4*i+r} offset:{LDS_O + r*512+i*4}")
    e("s_mov_b64 exec, -1")
    e("s_waitcnt lgkmcnt(0)")
    e("s_branch L_ojoin")
    e.label("L_pub")
    e("s_waitcnt lgkmcnt(0)")
    e("s_barrier")
    e("s_lshl_b32 s17, s16, 3")
    e(f"v_mov_b32 v16, s17")
    e("s_lshl_b32 s17, s16, 9")
    e(f"v_lshl_add_u32 v17, v{VLANE}, 3, s17")
    for w in range(NW):
        e(f"ds_read_b64 {vr(72+2*w,2)}, v16 offset:{LDS_ML + w*32}")
    for w in range(NW):
        e(f"ds_read_b64 {vr(104+2*w,2)}, v17 offset:{LDS_O + w*2048}")
    e("s_waitcnt lgkmcnt(0)")
    e("v_max_f32 v18, v72, v74")
    for w in range(2, NW):
        e(f"v_max_f32 v18, v18, v{72+2*w}")
    e("v_mov_b32 v19, 0")
    e("v_mov_b32 v20, 0")
    e("v_mov_b32 v21, 0")
    for w in range(NW):
        e(f"v_sub_f32 v22, v{72+2*w}, v18")
        e("v_mul_f32 v22, s42, v22")
        e("v_exp_f32 v22, v22")
        e("s_nop 0")
        e(f"v_fmac_f32 v19, v22, v{73+2*w}")
        e(f"v_fmac_f32 v20, v22, v{104+2*w}")
        e(f"v_fmac_f32 v21, v22, v{105+2*w}")
    e("s_lshl_b32 s18, s3, 6")
    e("s_add_u32 s18, s18, s14")
    e("s_lshl_b32 s18, s18, 2")
    e("s_add_u32 s18, s18, s16")
    e(f"s_mul_i32 s19, s18, {NSPLIT*512}")
    e("s_lshl_b32 s36, s15, 9")
    e("s_add_u32 s19, s19, s36")
    e(f"s_add_u32 s19, s19, {WS_O}")
    e(f"v_lshlrev_b32 v22, 3, v{VLANE}")
    e("buffer_store_dwordx2 v[20:21], v22, s[28:31], s19 offen sc1")
    e(f"s_mul_i32 s19, s18, {NSPLIT*8}")
    e("s_lshl_b32 s36, s15, 3")
    e("s_add_u32 s19, s19, s36")
    e(f"s_add_u32 s19, s19, {WS_ML}")
    e("s_mov_b64 exec, 1")
    e(f"buffer_store_dwordx2 v[18:19], v{VZ}, s[28:31], s19 offen sc1")
    e("s_mov_b64 exec, -1")
    e("s_waitcnt vmcnt(0)")
    e("s_barrier")
    stamp(6)
    e("s_cmp_lg_u32 s16, 0")
    e("s_cbranch_scc1 L_pub_np")
    e("s_mov_b64 exec, 1")
    e(f"s_add_u32 s17, s82, {CO}")
    e(f"buffer_atomic_add v{VONE}, v{VZ}, s[60:63], s17 offen")
    e("s_mov_b64 exec, -1")
    poll2(e, "o", 60, "s17", 16, 9, VZ, cfg.SLEEP)
    e(f"s_mov_b32 s17, {CZ}")
    poll2(e, "z", 60, "s17", 8, 9, VZ, cfg.SLEEP)
    stamp(7)
    e.label("L_pub_np")
    e("s_barrier")
    e.label("L_ojoin")
    e("s_barrier")
    stamp(8)
    e("v_lshlrev_b32 v8, 2, v0")
    for u in range(2):
        for w in range(4):
            e(f"ds_read_b32 v{72+4*u+w}, v8 offset:{LDS_O + w*4096+u*2048}")
    e("v_lshrrev_b32 v9, 7, v0")
    e("v_and_b32 v10, 127, v0")
    e("v_lshlrev_b32 v9, 12, v9")
    e("v_lshl_add_u32 v9, v10, 2, v9")
    e("s_lshl_b32 s17, s3, 11")
    e("s_lshl_b32 s18, s95, 9")
    e("s_add_u32 s17, s17, s18")
    e(f"s_add_u32 s17, s17, {WS_ACC}")
    e("s_add_u32 s18, s17, 16384")
    e("s_waitcnt lgkmcnt(0)")
    for u in range(2):
        e(f"v_add_f32 v{72+4*u}, v{72+4*u}, v{73+4*u}")
        e(f"v_add_f32 v{74+4*u}, v{74+4*u}, v{75+4*u}")
    for u in range(2):
        e(f"v_add_f32 v{72+4*u}, v{72+4*u}, v{74+4*u}")
    e("buffer_atomic_add_f32 v72, v9, s[28:31], s17 offen")
    e("buffer_atomic_add_f32 v76, v9, s[28:31], s18 offen")
    e("s_waitcnt vmcnt(0)")
    e("s_barrier")
    stamp(9)
    e("s_cmp_lg_u32 s16, 0")
    e("s_cbranch_scc1 L_fin")
    e("s_lshl_b32 s19, s3, 2")
    e("s_add_u32 s19, s19, s95")
    e("s_lshl_b32 s19, s19, 2")
    e(f"s_add_u32 s19, s19, {CF}")
    e("v_mov_b32 v8, 1")
    e("s_mov_b64 exec, 1")
    e(f"buffer_atomic_add v8, v{VZ}, s[60:63], s19 offen sc0")
    e("s_waitcnt vmcnt(0)")
    e("s_mov_b64 exec, -1")
    e("v_readfirstlane_b32 s19, v8")
    stamp(10)
    e("s_cmp_lg_u32 s19, 31")
    e("s_cbranch_scc1 L_fin")
    e(f"v_lshlrev_b32 v9, 3, v{VLANE}")
    for i in range(16):
        e(f"v_mov_b32 v{72+i}, 0")
    e("s_mov_b32 s18, s17")
    for i in range(8):
        e(f"buffer_atomic_add_f32 v{72+2*i}, v9, s[28:31], s18 offen sc0")
        e(f"buffer_atomic_add_f32 v{73+2*i}, v9, s[28:31], s18 offen offset:4 sc0")
        if i < 7:
            e("s_add_u32 s18, s18, 4096")
    srd(e, 64, 52, 53, 16384)
    e("s_lshl_b32 s18, s3, 10")
    e("s_lshl_b32 s19, s95, 8")
    e("s_add_u32 s18, s18, s19")
    e(f"v_lshlrev_b32 v10, 2, v{VLANE}")
    e("s_waitcnt vmcnt(0)")
    for i in range(8):
        e(f"v_cvt_pk_bf16_f32 v{72+2*i}, v{72+2*i}, v{73+2*i}")
        e(f"buffer_store_dword v{72+2*i}, v10, s[64:67], s18 offen")
        if i < 7:
            e("s_add_u32 s18, s18, 2048")
    stamp(11)
    e.label("L_fin")
    if cfg.STAMP:
        srd(e, 28, 12, 13, 0x800000)
        e("s_lshl_b32 s18, s2, 3")
        e("s_add_u32 s18, s18, s16")
        e("s_lshl_b32 s18, s18, 8")
        e("s_add_u32 s18, s18, 0x400000")
        e(f"v_lshlrev_b32 v9, 2, v{VLANE}")
        e(f"buffer_store_dword v{VST}, v9, s[28:31], s18 offen")
    e.label("L_end")
    e("s_endpgm")
    return name, NV, LDS_TOTAL, NWG

def main():
    cfg = Cfg()
    out = f"cdna_kernels/{NAME}.s"
    for a in sys.argv[1:]:
        if "=" in a:
            k, v = a.split("=", 1)
            if k == "out":
                out = v
            elif k == "NT":
                cfg.NT = " " + v if v else ""
            else:
                setattr(cfg, k, int(v))
    e = Emitter()
    e.raw('.amdgcn_target "amdgcn-amd-amdhsa--gfx950"')
    e.raw(".text")
    if cfg.FUSED:
        n, nv, lds, nwg = (gen_fused2 if cfg.FUSED == 2 else gen_fused)(e, cfg)
        e.raw('.section .rodata,"a"')
        e.raw(".p2align 6")
        kernel_desc(e, n, nv)
        hdr = HEADER + f"; @launch grid=({nwg},1,1) block=(512,1,1) lds={lds}\n"
        open(out, "w").write(hdr + e.text())
        return
    n1, nv1 = gen_qproj(e)
    n2, nv2, lds2, nwg2 = gen_attn(e, cfg)
    n3, nv3 = gen_oproj(e, cfg)
    e.raw('.section .rodata,"a"')
    for n, nv in ((n1, nv1), (n2, nv2), (n3, nv3)):
        e.raw(".p2align 6")
        kernel_desc(e, n, nv)
    hdr = HEADER
    hdr += f"; @launch kernel={n1} grid=(256,1,1) block=(256,1,1) lds=16384\n"
    hdr += f"; @launch kernel={n2} grid=({nwg2},1,1) block=({cfg.NW*64},1,1) lds={lds2}\n"
    hdr += f"; @launch kernel={n3} grid=(256,1,1) block=(256,1,1) lds=16384\n"
    open(out, "w").write(hdr + e.text())

main()
```

```python
import sys, math, struct

NAME = "concat_heads__gqa_block_cached__gqa_block_cached__decode"

def f2u(f):
    return struct.unpack("<I", struct.pack("<f", f))[0]

class Cfg:
    NW = 8
    NSPLIT = 2
    NT = ""
    FUSED = 0
    SLEEP = 8
    STAMP = 0
    INTERLEAVE = 0

WS_Q = 0x000000
WS_O = 0x100000
WS_ML = 0x200000
WS_ACC = 0x210000

HEADER = """; Kernarg layout for this problem (104 bytes, ptrs only, base s[0:1]):
;   offset  80: d_out     shape=(8, 1, 1024) dtype=bfloat16 (2 bytes/elem)
"""

class Emitter:
    def __init__(self):
        self.lines = []
    def __call__(self, s):
        if s.startswith("buffer_") and "offset:" in s:
            o = int(s.split("offset:")[1].split()[0])
            assert 0 <= o <= 4095, s
        if s.startswith("ds_") and "offset:" in s:
            o = int(s.split("offset:")[1].split()[0])
            assert 0 <= o <= 65535, s
        self.lines.append("    " + s)
    def label(self, s):
        self.lines.append(s + ":")
    def raw(self, s):
        self.lines.append(s)
    def text(self):
        return "\n".join(self.lines) + "\n"

def vr(b, n):
    return f"v[{b}:{b+n-1}]" if n > 1 else f"v{b}"

def kernel_begin(e, name):
    e.raw(f".globl {name}")
    e.raw(".p2align 8")
    e.raw(f".type {name},@function")
    e.label(name)

def kernel_desc(e, name, nv, ns=102):
    acc = (nv + 3) // 4 * 4
    e.raw(f".amdhsa_kernel {name}")
    e.raw(f"  .amdhsa_next_free_vgpr {nv}")
    e.raw(f"  .amdhsa_next_free_sgpr {ns}")
    e.raw(f"  .amdhsa_accum_offset {acc}")
    e.raw("  .amdhsa_group_segment_fixed_size 0")
    e.raw("  .amdhsa_kernarg_size 104")
    e.raw("  .amdhsa_user_sgpr_count 2")
    e.raw("  .amdhsa_user_sgpr_kernarg_segment_ptr 1")
    e.raw("  .amdhsa_system_sgpr_workgroup_id_x 1")
    e.raw("  .amdhsa_float_denorm_mode_32 3")
    e.raw(".end_amdhsa_kernel")

def srd(e, d, ptr_lo, ptr_hi, nbytes):
    e(f"s_mov_b32 s{d}, s{ptr_lo}")
    e(f"s_and_b32 s{d+1}, s{ptr_hi}, 0xffff")
    e(f"s_mov_b32 s{d+2}, {nbytes}")
    e(f"s_mov_b32 s{d+3}, 0x00020000")

def perm_mfma(e, src, tmp, acc, afrag, selLo, selHi, first=False):
    for i in range(8):
        w = i >> 1
        sel = selHi if (i & 1) else selLo
        for tp in range(4):
            a = src + 4 * (2 * tp) + w
            b = src + 4 * (2 * tp + 1) + w
            e(f"v_perm_b32 v{tmp + 4*i + tp}, v{b}, v{a}, s{sel}")
        if i >= 1:
            j = i - 1
            c = "0" if first else vr(acc + 4*j, 4)
            e(f"v_mfma_f32_16x16x32_bf16 {vr(acc+4*j,4)}, {vr(afrag,4)}, {vr(tmp+4*j,4)}, {c}")
    e("s_nop 1")
    j = 7
    c = "0" if first else vr(acc + 4*j, 4)
    e(f"v_mfma_f32_16x16x32_bf16 {vr(acc+4*j,4)}, {vr(afrag,4)}, {vr(tmp+4*j,4)}, {c}")

def gen_qproj(e):
    name = "qproj_kernel"
    kernel_begin(e, name)
    e("s_cmp_ge_u32 s2, 256")
    e("s_cbranch_scc1 L_q_end")
    e("s_lshr_b32 s3, s2, 7")
    e("s_mul_i32 s4, s3, 40")
    e("s_add_u32 s6, s0, s4")
    e("s_addc_u32 s7, s1, 0")
    e("s_load_dwordx2 s[8:9], s[6:7], 0")
    e("s_load_dwordx2 s[10:11], s[6:7], 24")
    e("s_load_dwordx2 s[12:13], s[0:1], 96")
    e("s_lshr_b32 s14, s2, 2")
    e("s_and_b32 s14, s14, 31")
    e("s_and_b32 s15, s2, 3")
    e("v_and_b32 v1, 63, v0")
    e("v_lshrrev_b32 v2, 6, v0")
    e("v_and_b32 v3, 15, v1")
    e("v_lshrrev_b32 v4, 4, v1")
    e("s_lshl_b32 s16, s15, 7")
    e("v_lshl_add_u32 v5, v2, 5, s16")
    e("v_lshl_add_u32 v5, v4, 3, v5")
    e("s_mov_b32 s40, 0x05040100")
    e("s_mov_b32 s41, 0x07060302")
    for t in range(1, 8):
        e(f"s_mov_b32 s{41+t}, {t*8192}")
    e("s_waitcnt lgkmcnt(0)")
    srd(e, 20, 8, 9, 8192)
    srd(e, 24, 10, 11, 4194304)
    srd(e, 28, 12, 13, 0x220000)
    e("v_lshlrev_b32 v6, 10, v3")
    e("v_lshl_add_u32 v6, v5, 1, v6")
    e("buffer_load_dwordx4 v[12:15], v6, s[20:23], 0 offen")
    e("v_lshlrev_b32 v7, 13, v5")
    e("v_lshl_add_u32 v7, v3, 4, v7")
    e("s_lshl_b32 s17, s14, 8")
    e("v_add_u32 v7, s17, v7")
    for t in range(8):
        so = "0" if t == 0 else f"s{41+t}"
        e(f"buffer_load_dwordx4 {vr(16+4*t,4)}, v7, s[24:27], {so} offen")
    e("s_cmp_ge_u32 s2, 8")
    e("s_cbranch_scc1 L_q_nozero")
    e("v_mov_b32 v8, 0")
    e("v_mov_b32 v9, 0")
    e("v_mov_b32 v10, 0")
    e("v_mov_b32 v11, 0")
    e("s_lshl_b32 s18, s2, 12")
    e(f"s_add_u32 s18, s18, {WS_ACC}")
    e("v_lshlrev_b32 v5, 4, v0")
    e("buffer_store_dwordx4 v[8:11], v5, s[28:31], s18 offen")
    e.label("L_q_nozero")
    e("s_waitcnt vmcnt(0)")
    perm_mfma(e, 16, 48, 80, 12, 40, 41, first=True)
    e("v_lshlrev_b32 v5, 12, v2")
    e("v_lshl_add_u32 v5, v4, 11, v5")
    e("v_lshl_add_u32 v5, v3, 5, v5")
    e("s_nop 7")
    e("s_mov_b64 s[34:35], exec")
    e("s_mov_b32 exec_lo, -1")
    e("s_mov_b32 exec_hi, 0")
    for i in range(8):
        for r in range(4):
            e(f"ds_write_b32 v5, v{80+4*i+r} offset:{r*512+i*4}")
    e("s_mov_b64 exec, s[34:35]")
    e("s_waitcnt lgkmcnt(0)")
    e("s_barrier")
    e("v_lshlrev_b32 v5, 4, v0")
    for w in range(4):
        e(f"ds_read_b128 {vr(16+4*w,4)}, v5 offset:{w*4096}")
    e("s_waitcnt lgkmcnt(0)")
    for k in range(4):
        e(f"v_add_f32 v{16+k}, v{16+k}, v{20+k}")
        e(f"v_add_f32 v{24+k}, v{24+k}, v{28+k}")
    for k in range(4):
        e(f"v_add_f32 v{16+k}, v{16+k}, v{24+k}")
    e("v_lshrrev_b32 v6, 5, v0")
    e("v_and_b32 v7, 31, v0")
    e("v_lshlrev_b32 v6, 14, v6")
    e("v_lshl_add_u32 v6, v7, 4, v6")
    e("s_lshl_b32 s18, s15, 1")
    e("s_add_u32 s18, s18, s3")
    e("s_lshl_b32 s18, s18, 17")
    e("s_lshl_b32 s19, s14, 9")
    e("s_add_u32 s18, s18, s19")
    e(f"s_add_u32 s18, s18, {WS_Q}")
    e("buffer_store_dwordx4 v[16:19], v6, s[28:31], s18 offen")
    e.label("L_q_end")
    e("s_endpgm")
    return name, 112

def gen_attn(e, cfg):
    name = "attn_kernel"
    NW, NSPLIT = cfg.NW, cfg.NSPLIT
    NWG = 128 * NSPLIT
    KEYS_WG = 8192 // NSPLIT
    KEYS_W = KEYS_WG // NW
    NIT = KEYS_W // 32
    assert NIT % 2 == 0
    cscale = (128 ** -0.5) * math.log2(math.e)
    VKO0, VKO1, VVO0, VVO1 = 1, 2, 3, 4
    VM, VL, VMC, VT, VT2, VD = 5, 6, 7, 8, 9, 10
    Q = 12
    S = 28
    P = 36
    O = 40
    KB = [72, 104]
    VB = [136, 168]
    TMP = 200
    NV = 232
    LDS_O = 0
    LDS_ML = NW * 2048
    LDS_Q = LDS_ML + NW * 32
    LDS_TOTAL = LDS_Q + 1024
    kernel_begin(e, name)
    e(f"s_cmp_ge_u32 s2, {NWG}")
    e("s_cbranch_scc1 L_a_end")
    lg = int(math.log2(NSPLIT))
    e(f"s_lshr_b32 s3, s2, {6+lg}")
    e(f"s_lshr_b32 s14, s2, {lg}")
    e("s_and_b32 s14, s14, 63")
    e(f"s_and_b32 s15, s2, {NSPLIT-1}")
    e("s_mul_i32 s4, s3, 40")
    e("s_add_u32 s6, s0, s4")
    e("s_addc_u32 s7, s1, 0")
    e("s_load_dwordx4 s[8:11], s[6:7], 8")
    e("s_load_dwordx2 s[12:13], s[0:1], 96")
    e("v_and_b32 v11, 63, v0")
    e("v_lshrrev_b32 v5, 6, v0")
    e("s_nop 0")
    e("v_readfirstlane_b32 s16, v5")
    e("v_and_b32 v6, 15, v11")
    e("v_lshrrev_b32 v7, 4, v11")
    e("v_and_b32 v8, 3, v6")
    e("v_lshrrev_b32 v9, 2, v6")
    e("v_lshl_add_u32 v8, v8, 2, v9")
    e("v_lshlrev_b32 v8, 8, v8")
    e(f"v_lshl_add_u32 v{VKO0}, v7, 4, v8")
    e(f"v_add_u32 v{VKO1}, 0x1000, v{VKO0}")
    e(f"v_lshlrev_b32 v{VVO0}, 4, v11")
    e(f"v_add_u32 v{VVO1}, 0x1000, v{VVO0}")
    e("s_mov_b32 s40, 0x05040100")
    e("s_mov_b32 s41, 0x07060302")
    e(f"s_mov_b32 s42, {f2u(cscale):#x}")
    e("s_lshl_b32 s17, s14, 21")
    e(f"s_mul_i32 s18, s15, {KEYS_WG*256}")
    e("s_add_u32 s17, s17, s18")
    e("s_waitcnt lgkmcnt(0)")
    e("s_add_u32 s8, s8, s17")
    e("s_addc_u32 s9, s9, 0")
    e("s_add_u32 s10, s10, s17")
    e("s_addc_u32 s11, s11, 0")
    srd(e, 20, 8, 9, KEYS_WG * 256)
    srd(e, 24, 10, 11, KEYS_WG * 256)
    srd(e, 28, 12, 13, 0x220000)
    e("s_lshl_b32 s18, s14, 11")
    e("s_lshl_b32 s19, s3, 17")
    e("s_add_u32 s18, s18, s19")
    e(f"s_add_u32 s18, s18, {WS_Q}")
    nq = 512 // (NW * 64)
    assert nq >= 1
    e("v_lshlrev_b32 v8, 2, v0")
    qt = TMP
    for ks in range(4):
        for u in range(nq):
            e(f"buffer_load_dword v{qt + ks*nq + u}, v8, s[28:31], s18 offen offset:{u*NW*64*4}")
        if ks < 3:
            e("s_add_u32 s18, s18, 0x40000")
    if cfg.INTERLEAVE:
        e("s_lshl_b32 s44, s16, 13")
        step = NW * 8192
    else:
        e(f"s_mul_i32 s44, s16, {KEYS_W*256}")
        step = 8192
    def loadK(st, soff):
        for T in range(2):
            for j in range(4):
                vo = VKO1 if T else VKO0
                e(f"buffer_load_dwordx4 {vr(KB[st]+16*T+4*j,4)}, v{vo}, s[20:23], {soff} offen offset:{j*64}{cfg.NT}")
    def loadV(st, soff):
        for t in range(8):
            vo = VVO1 if t >= 4 else VVO0
            e(f"buffer_load_dwordx4 {vr(VB[st]+4*t,4)}, v{vo}, s[24:27], {soff} offen offset:{(t&3)*1024}{cfg.NT}")
    loadK(0, "s44"); loadV(0, "s44")
    e(f"s_add_u32 s45, s44, {step}")
    loadK(1, "s45"); loadV(1, "s45")
    e(f"s_add_u32 s44, s45, {step}")
    for i in range(32):
        e(f"v_mov_b32 v{O+i}, 0")
    for i in range(16):
        e(f"v_mov_b32 v{Q+i}, 0")
    e("s_waitcnt vmcnt(32)")
    for u in range(nq):
        e(f"v_add_f32 v{qt+u}, v{qt+u}, v{qt+nq+u}")
        e(f"v_add_f32 v{qt+2*nq+u}, v{qt+2*nq+u}, v{qt+3*nq+u}")
        e(f"v_add_f32 v{qt+u}, v{qt+u}, v{qt+2*nq+u}")
        e(f"v_cvt_pk_bf16_f32 v{qt+u}, v{qt+u}, v{qt+u}")
    e("v_lshlrev_b32 v8, 1, v0")
    for u in range(nq):
        e(f"ds_write_b16 v8, v{qt+u} offset:{LDS_Q + u*NW*64*2}")
    e("s_waitcnt lgkmcnt(0)")
    e("s_barrier")
    e("v_lshlrev_b32 v8, 8, v6")
    e("v_lshl_add_u32 v8, v7, 4, v8")
    e("v_cmp_gt_u32 vcc, 4, v6")
    e("s_and_saveexec_b64 s[34:35], vcc")
    for j in range(4):
        e(f"ds_read_b128 {vr(Q+4*j,4)}, v8 offset:{LDS_Q + j*64}")
    e("s_mov_b64 exec, s[34:35]")
    e(f"s_mov_b32 s46, {NIT//2}")
    e(f"v_mov_b32 v{VM}, 0xff800000")
    e(f"v_mov_b32 v{VL}, 0")
    e(f"v_mov_b32 v{VMC}, 0")
    e("s_waitcnt lgkmcnt(0)")
    endoff = KEYS_WG * 256 if cfg.INTERLEAVE else None
    e.label("L_a_loop")
    for st in range(2):
        K, V = KB[st], VB[st]
        e("s_waitcnt vmcnt(24)")
        for j in range(4):
            for T in range(2):
                c = "0" if j == 0 else vr(S+4*T, 4)
                e(f"v_mfma_f32_16x16x32_bf16 {vr(S+4*T,4)}, {vr(K+16*T+4*j,4)}, {vr(Q+4*j,4)}, {c}")
        e("s_cmp_gt_u32 s46, 1")
        e("s_cselect_b32 s47, s44, 0x40000000")
        loadK(st, "s47")
        e(f"v_max3_f32 v{VT}, v{S}, v{S+1}, v{S+2}")
        e(f"v_max3_f32 v{VT}, v{VT}, v{S+3}, v{S+4}")
        e(f"v_max3_f32 v{VT}, v{VT}, v{S+5}, v{S+6}")
        e(f"v_max3_f32 v{VT}, v{VT}, v{S+7}, v{VM}")
        e(f"v_mov_b32 v{VT2}, v{VT}")
        e("s_nop 1")
        e(f"v_permlane16_swap_b32 v{VT}, v{VT2}")
        e("s_nop 0")
        e(f"v_max_f32 v{VT}, v{VT}, v{VT2}")
        e(f"v_mov_b32 v{VT2}, v{VT}")
        e("s_nop 1")
        e(f"v_permlane32_swap_b32 v{VT}, v{VT2}")
        e("s_nop 0")
        e(f"v_max_f32 v{VT}, v{VT}, v{VT2}")
        e(f"v_cmp_gt_f32 vcc, v{VT}, v{VM}")
        e(f"s_cbranch_vccz L_a_skip{st}")
        e(f"v_sub_f32 v{VD}, v{VM}, v{VT}")
        e(f"v_mul_f32 v{VD}, s42, v{VD}")
        e(f"v_exp_f32 v{VD}, v{VD}")
        e(f"v_mov_b32 v{VM}, v{VT}")
        e(f"v_mul_f32 v{VMC}, s42, v{VT}")
        e(f"v_mul_f32 v{VL}, v{VL}, v{VD}")
        for h in range(4):
            e(f"v_readlane_b32 s{48+h}, v{VD}, {h}")
        e("s_nop 1")
        for i in range(8):
            for r in range(4):
                e(f"v_mul_f32 v{O+4*i+r}, s{48+r}, v{O+4*i+r}")
        e.label(f"L_a_skip{st}")
        for i in range(8):
            e(f"v_fma_f32 v{S+i}, v{S+i}, s42, -v{VMC}")
        for i in range(8):
            e(f"v_exp_f32 v{S+i}, v{S+i}")
        e("s_nop 0")
        e(f"v_add_f32 v{VT}, v{S}, v{S+1}")
        e(f"v_add_f32 v{VT2}, v{S+2}, v{S+3}")
        e(f"v_add_f32 v{VD}, v{S+4}, v{S+5}")
        e(f"v_add_f32 v{VL}, v{VL}, v{VT}")
        e(f"v_add_f32 v{VT}, v{S+6}, v{S+7}")
        e(f"v_add_f32 v{VT2}, v{VT2}, v{VD}")
        e(f"v_add_f32 v{VL}, v{VL}, v{VT}")
        e(f"v_add_f32 v{VL}, v{VL}, v{VT2}")
        for k in range(4):
            e(f"v_cvt_pk_bf16_f32 v{P+k}, v{S+2*k}, v{S+2*k+1}")
        e("s_waitcnt vmcnt(24)")
        perm_mfma(e, V, TMP, O, P, 40, 41)
        loadV(st, "s47")
        e(f"s_add_u32 s44, s44, {step}")
    e("s_sub_u32 s46, s46, 1")
    e("s_cmp_lg_u32 s46, 0")
    e("s_cbranch_scc1 L_a_loop")
    e(f"v_mov_b32 v{VT}, v{VL}")
    e(f"v_mov_b32 v{VT2}, v{VL}")
    e("s_nop 1")
    e(f"v_permlane16_swap_b32 v{VT}, v{VT2}")
    e("s_nop 0")
    e(f"v_add_f32 v{VT}, v{VT}, v{VT2}")
    e(f"v_mov_b32 v{VT2}, v{VT}")
    e("s_nop 1")
    e(f"v_permlane32_swap_b32 v{VT}, v{VT2}")
    e("s_nop 0")
    e(f"v_add_f32 v{VL}, v{VT}, v{VT2}")
    e(f"v_mov_b32 v{VT}, v{VM}")
    e(f"v_mov_b32 v{VT2}, v{VL}")
    e("v_and_b32 v11, 63, v0")
    e("v_lshlrev_b32 v12, 3, v11")
    e("s_lshl_b32 s18, s16, 5")
    e(f"s_add_u32 s18, s18, {LDS_ML}")
    e("v_add_u32 v12, s18, v12")
    e("v_lshlrev_b32 v13, 5, v11")
    e("s_lshl_b32 s18, s16, 11")
    e("v_add_u32 v13, s18, v13")
    e("s_nop 4")
    e("s_mov_b64 s[34:35], exec")
    e("s_mov_b64 exec, 0xf")
    e(f"ds_write_b64 v12, v[{VT}:{VT2}]")
    e("s_mov_b64 exec, 0xffff")
    for i in range(8):
        for r in range(4):
            e(f"ds_write_b32 v13, v{O+4*i+r} offset:{LDS_O + r*512 + i*4}")
    e("s_mov_b64 exec, s[34:35]")
    e("s_waitcnt vmcnt(0) lgkmcnt(0)")
    e("s_barrier")
    for u in range(nq):
        e(f"v_add_u32 v14, {u*NW*64}, v0")
        e("v_lshrrev_b32 v15, 7, v14")
        e("v_lshlrev_b32 v16, 3, v15")
        e("v_lshlrev_b32 v17, 2, v14")
        for w in range(NW):
            e(f"ds_read_b64 {vr(72+2*w,2)}, v16 offset:{LDS_ML + w*32}")
        for w in range(NW):
            e(f"ds_read_b32 v{104+w}, v17 offset:{LDS_O + w*2048}")
        e("s_waitcnt lgkmcnt(0)")
        e(f"v_max_f32 v18, v72, v74")
        for w in range(2, NW):
            e(f"v_max_f32 v18, v18, v{72+2*w}")
        e("v_mov_b32 v19, 0")
        e("v_mov_b32 v20, 0")
        for w in range(NW):
            e(f"v_sub_f32 v21, v{72+2*w}, v18")
            e("v_mul_f32 v21, s42, v21")
            e("v_exp_f32 v21, v21")
            e("s_nop 0")
            e(f"v_fmac_f32 v19, v21, v{73+2*w}")
            e(f"v_fmac_f32 v20, v21, v{104+w}")
        e("s_lshl_b32 s18, s3, 6")
        e("s_add_u32 s18, s18, s14")
        e(f"s_mul_i32 s19, s18, {4*NSPLIT*512}")
        e("s_lshl_b32 s36, s15, 9")
        e("s_add_u32 s19, s19, s36")
        e(f"s_add_u32 s19, s19, {WS_O}")
        e("v_and_b32 v22, 127, v14")
        e("v_lshlrev_b32 v22, 2, v22")
        e(f"v_mul_u32_u24 v23, {NSPLIT*512}, v15")
        e("v_add_u32 v22, v22, v23")
        e("buffer_store_dword v20, v22, s[28:31], s19 offen")
        e(f"s_mul_i32 s19, s18, {4*NSPLIT*8}")
        e("s_lshl_b32 s36, s15, 3")
        e("s_add_u32 s19, s19, s36")
        e(f"s_add_u32 s19, s19, {WS_ML}")
        e(f"v_mul_u32_u24 v23, {NSPLIT*8}, v15")
        e("v_and_b32 v22, 127, v14")
        e("v_cmp_eq_u32 vcc, 0, v22")
        e("s_and_saveexec_b64 s[34:35], vcc")
        e("buffer_store_dwordx2 v[18:19], v23, s[28:31], s19 offen")
        e("s_mov_b64 exec, s[34:35]")
    e.label("L_a_end")
    e("s_endpgm")
    return name, NV, LDS_TOTAL, NWG

def gen_oproj(e, cfg):
    name = "oproj_kernel"
    NSPLIT = cfg.NSPLIT
    cscale = (128 ** -0.5) * math.log2(math.e)
    kernel_begin(e, name)
    e("s_cmp_ge_u32 s2, 256")
    e("s_cbranch_scc1 L_o_end")
    e("s_lshr_b32 s3, s2, 7")
    e("s_lshr_b32 s14, s2, 5")
    e("s_and_b32 s14, s14, 3")
    e("s_and_b32 s15, s2, 31")
    e("s_mul_i32 s4, s3, 40")
    e("s_add_u32 s6, s0, s4")
    e("s_addc_u32 s7, s1, 0")
    e("s_load_dwordx2 s[8:9], s[6:7], 32")
    e("s_load_dwordx4 s[52:55], s[0:1], 80")
    e("s_load_dwordx2 s[12:13], s[0:1], 96")
    e("v_and_b32 v1, 63, v0")
    e("v_lshrrev_b32 v2, 6, v0")
    e("v_and_b32 v3, 15, v1")
    e("v_lshrrev_b32 v4, 4, v1")
    e("s_mov_b32 s40, 0x05040100")
    e("s_mov_b32 s41, 0x07060302")
    e(f"s_mov_b32 s42, {f2u(cscale):#x}")
    e("s_lshl_b32 s16, s15, 7")
    e("v_lshl_add_u32 v5, v2, 5, s16")
    e("v_lshl_add_u32 v5, v4, 3, v5")
    e("s_waitcnt lgkmcnt(0)")
    srd(e, 24, 8, 9, 4194304)
    srd(e, 28, 12, 13, 0x220000)
    OP_P = 8 * 32 * NSPLIT * 512
    ML_P = 8 * 32 * NSPLIT * 8
    e(f"s_mul_i32 s17, s3, {OP_P}")
    e(f"s_add_u32 s17, s17, {WS_O}")
    e("s_add_u32 s18, s12, s17")
    e("s_addc_u32 s19, s13, 0")
    srd(e, 20, 18, 19, OP_P)
    e(f"s_mul_i32 s17, s3, {ML_P}")
    e(f"s_add_u32 s17, s17, {WS_ML}")
    e("s_add_u32 s18, s12, s17")
    e("s_addc_u32 s19, s13, 0")
    srd(e, 56, 18, 19, ML_P)
    e("v_lshlrev_b32 v7, 10, v5")
    e("v_lshl_add_u32 v7, v3, 4, v7")
    e("s_lshl_b32 s17, s14, 8")
    e("v_add_u32 v7, s17, v7")
    e("v_add_u32 v8, 0x1000, v7")
    for t in range(8):
        vo = 8 if t >= 4 else 7
        e(f"buffer_load_dwordx4 {vr(16+4*t,4)}, v{vo}, s[24:27], 0 offen offset:{(t&3)*1024}")
    e(f"v_mul_u32_u24 v9, {32*NSPLIT*512}, v3")
    e("v_lshl_add_u32 v9, v2, 7, v9")
    e("v_lshl_add_u32 v9, v4, 5, v9")
    e(f"s_mul_i32 s17, s15, {NSPLIT*512}")
    PB = 112
    for s in range(NSPLIT):
        e(f"buffer_load_dwordx4 {vr(PB+8*s,4)}, v9, s[20:23], s17 offen offset:{s*512}")
        e(f"buffer_load_dwordx4 {vr(PB+8*s+4,4)}, v9, s[20:23], s17 offen offset:{s*512+16}")
    MB = PB + 8 * NSPLIT
    e(f"v_mul_u32_u24 v10, {32*NSPLIT*8}, v3")
    e(f"s_mul_i32 s17, s15, {NSPLIT*8}")
    for s in range(NSPLIT):
        e(f"buffer_load_dwordx2 {vr(MB+2*s,2)}, v10, s[56:59], s17 offen offset:{s*8}")
    e("s_waitcnt vmcnt(0)")
    e(f"v_mov_b32 v11, v{MB}")
    for s in range(1, NSPLIT):
        e(f"v_max_f32 v11, v11, v{MB+2*s}")
    for s in range(NSPLIT):
        e(f"v_sub_f32 v{MB+2*s}, v{MB+2*s}, v11")
        e(f"v_mul_f32 v{MB+2*s}, s42, v{MB+2*s}")
        e(f"v_exp_f32 v{MB+2*s}, v{MB+2*s}")
    e("s_nop 0")
    e(f"v_mul_f32 v11, v{MB}, v{MB+1}")
    for s in range(1, NSPLIT):
        e(f"v_fmac_f32 v11, v{MB+2*s}, v{MB+2*s+1}")
    e("v_rcp_f32 v11, v11")
    e("s_nop 0")
    for s in range(NSPLIT):
        e(f"v_mul_f32 v{MB+2*s}, v{MB+2*s}, v11")
    for k in range(8):
        e(f"v_mul_f32 v{PB+k}, v{PB+k}, v{MB}")
        for s in range(1, NSPLIT):
            e(f"v_fmac_f32 v{PB+k}, v{PB+8*s+k}, v{MB+2*s}")
    for k in range(4):
        e(f"v_cvt_pk_bf16_f32 v{12+k}, v{PB+2*k}, v{PB+2*k+1}")
    perm_mfma(e, 16, 48, 80, 12, 40, 41, first=True)
    e("v_lshlrev_b32 v5, 12, v2")
    e("v_lshl_add_u32 v5, v4, 11, v5")
    e("v_lshl_add_u32 v5, v3, 5, v5")
    e("s_nop 7")
    e("s_mov_b64 s[34:35], exec")
    e("s_mov_b32 exec_lo, -1")
    e("s_mov_b32 exec_hi, 0")
    for i in range(8):
        for r in range(4):
            e(f"ds_write_b32 v5, v{80+4*i+r} offset:{r*512+i*4}")
    e("s_mov_b64 exec, s[34:35]")
    e("s_waitcnt lgkmcnt(0)")
    e("s_barrier")
    e("v_lshlrev_b32 v5, 2, v0")
    for u in range(4):
        for w in range(4):
            e(f"ds_read_b32 v{16+4*u+w}, v5 offset:{w*4096+u*1024}")
    e("s_waitcnt lgkmcnt(0)")
    for u in range(4):
        e(f"v_add_f32 v{16+4*u}, v{16+4*u}, v{17+4*u}")
        e(f"v_add_f32 v{18+4*u}, v{18+4*u}, v{19+4*u}")
    for u in range(4):
        e(f"v_add_f32 v{16+4*u}, v{16+4*u}, v{18+4*u}")
    e("v_lshrrev_b32 v6, 7, v0")
    e("v_and_b32 v7, 127, v0")
    e("v_lshlrev_b32 v6, 12, v6")
    e("v_lshl_add_u32 v6, v7, 2, v6")
    e("s_lshl_b32 s17, s3, 11")
    e("s_lshl_b32 s18, s14, 9")
    e("s_add_u32 s17, s17, s18")
    e(f"s_add_u32 s17, s17, {WS_ACC}")
    e("s_mov_b32 s18, s17")
    for u in range(4):
        e(f"buffer_atomic_add_f32 v{16+4*u}, v6, s[28:31], s18 offen")
        if u < 3:
            e("s_add_u32 s18, s18, 8192")
    e("s_waitcnt vmcnt(0)")
    e("s_barrier")
    e("v_readfirstlane_b32 s19, v2")
    e("s_cmp_lg_u32 s19, 0")
    e("s_cbranch_scc1 L_o_end")
    srd(e, 60, 54, 55, 256)
    e("s_lshl_b32 s19, s3, 2")
    e("s_add_u32 s19, s19, s14")
    e("s_lshl_b32 s19, s19, 2")
    e("v_mov_b32 v8, 1")
    e("v_mov_b32 v9, 0")
    e("s_mov_b64 exec, 1")
    e("buffer_atomic_add v8, v9, s[60:63], s19 offen sc0")
    e("s_waitcnt vmcnt(0)")
    e("s_mov_b64 exec, -1")
    e("v_readfirstlane_b32 s19, v8")
    e("s_cmp_lg_u32 s19, 31")
    e("s_cbranch_scc1 L_o_end")
    e("v_lshlrev_b32 v6, 3, v1")
    for i in range(8):
        e(f"v_mov_b32 v{16+2*i}, 0")
        e(f"v_mov_b32 v{17+2*i}, 0")
    e("s_mov_b32 s18, s17")
    for i in range(8):
        e(f"buffer_atomic_add_f32 v{16+2*i}, v6, s[28:31], s18 offen sc0")
        e(f"buffer_atomic_add_f32 v{17+2*i}, v6, s[28:31], s18 offen offset:4 sc0")
        if i < 7:
            e("s_add_u32 s18, s18, 4096")
    srd(e, 64, 52, 53, 16384)
    e("s_lshl_b32 s18, s3, 10")
    e("s_lshl_b32 s19, s14, 8")
    e("s_add_u32 s18, s18, s19")
    e("v_lshlrev_b32 v7, 2, v1")
    e("s_waitcnt vmcnt(0)")
    for i in range(8):
        e(f"v_cvt_pk_bf16_f32 v{16+2*i}, v{16+2*i}, v{17+2*i}")
        e(f"buffer_store_dword v{16+2*i}, v7, s[64:67], s18 offen")
        if i < 7:
            e("s_add_u32 s18, s18, 2048")
    e.label("L_o_end")
    e("s_endpgm")
    return name, 144


def poll(e, tag, dbg_srd, soff, target, vtmp, vzero):
    e(f"s_mov_b32 s38, 400000")
    e.label(f"L_poll_{tag}")
    e(f"buffer_load_dword v{vtmp}, v{vzero}, s[{dbg_srd}:{dbg_srd+3}], {soff} offen sc1")
    e("s_waitcnt vmcnt(0)")
    e(f"v_readfirstlane_b32 s39, v{vtmp}")
    e(f"s_cmp_ge_u32 s39, {target}")
    e(f"s_cbranch_scc1 L_polld_{tag}")
    e("s_sub_u32 s38, s38, 1")
    e("s_cmp_lg_u32 s38, 0")
    e(f"s_cbranch_scc1 L_poll_{tag}")
    e.label(f"L_polld_{tag}")

def gen_fused(e, cfg):
    name = NAME + "_kernel"
    NW, NSPLIT = 8, 2
    NWG = 256
    KEYS_WG = 4096
    KEYS_W = KEYS_WG // NW
    NIT = KEYS_W // 32
    cscale = (128 ** -0.5) * math.log2(math.e)
    VKO0, VKO1, VVO0, VVO1 = 1, 2, 3, 4
    VM, VL, VMC, VT, VT2, VD = 5, 6, 7, 8, 9, 10
    VLANE = 11
    Q = 12; S = 28; P = 36; O = 40
    KB = [72, 104]; VB = [136, 168]; TMP = 200
    VC, VG, VZ = 232, 233, 234
    NV = 236
    LDS_O = 0
    LDS_ML = 16384
    LDS_Q = LDS_ML + 256
    LDS_TOTAL = LDS_Q + 1024
    CQ, CO, CF, CZ = 0, 64, 128, 160
    VST = 235
    def stamp(i):
        if cfg.STAMP:
            e("s_memrealtime s[98:99]")
            e("s_waitcnt lgkmcnt(0)")
            e(f"v_writelane_b32 v{VST}, s98, {i}")
    kernel_begin(e, name)
    e(f"s_cmp_ge_u32 s2, {NWG}")
    e("s_cbranch_scc1 L_end")
    if cfg.STAMP:
        e(f"v_mov_b32 v{VST}, 0")
    stamp(0)
    e("s_lshr_b32 s3, s2, 7")
    e("s_lshr_b32 s14, s2, 1")
    e("s_and_b32 s14, s14, 63")
    e("s_and_b32 s15, s2, 1")
    e("s_mul_i32 s4, s3, 40")
    e("s_add_u32 s6, s0, s4")
    e("s_addc_u32 s7, s1, 0")
    e("s_load_dwordx8 s[68:75], s[6:7], 0")
    e("s_load_dwordx2 s[76:77], s[6:7], 32")
    e("s_load_dwordx4 s[52:55], s[0:1], 80")
    e("s_load_dwordx2 s[12:13], s[0:1], 96")
    e(f"v_and_b32 v{VLANE}, 63, v0")
    e("v_lshrrev_b32 v5, 6, v0")
    e("s_nop 0")
    e("v_readfirstlane_b32 s16, v5")
    e(f"v_and_b32 v{VC}, 15, v{VLANE}")
    e(f"v_lshrrev_b32 v{VG}, 4, v{VLANE}")
    e(f"v_mov_b32 v{VZ}, 0")
    e(f"v_and_b32 v8, 3, v{VC}")
    e(f"v_lshrrev_b32 v9, 2, v{VC}")
    e("v_lshl_add_u32 v8, v8, 2, v9")
    e("v_lshlrev_b32 v8, 8, v8")
    e(f"v_lshl_add_u32 v{VKO0}, v{VG}, 4, v8")
    e(f"v_add_u32 v{VKO1}, 0x1000, v{VKO0}")
    e(f"v_lshlrev_b32 v{VVO0}, 4, v{VLANE}")
    e(f"v_add_u32 v{VVO1}, 0x1000, v{VVO0}")
    e("s_mov_b32 s40, 0x05040100")
    e("s_mov_b32 s41, 0x07060302")
    e(f"s_mov_b32 s42, {f2u(cscale):#x}")
    e("s_and_b32 s78, s14, 7")
    e("s_lshr_b32 s79, s14, 3")
    e("s_lshl_b32 s80, s79, 1")
    e("s_add_u32 s80, s80, s15")
    e("s_lshl_b32 s81, s3, 3")
    e("s_add_u32 s81, s81, s78")
    e("s_lshl_b32 s82, s81, 2")
    e("s_lshl_b32 s17, s14, 21")
    e(f"s_mul_i32 s18, s15, {KEYS_WG*256}")
    e("s_add_u32 s17, s17, s18")
    e("s_lshl_b32 s44, s16, 13")
    step = NW * 8192
    e("s_waitcnt lgkmcnt(0)")
    e("s_add_u32 s8, s70, s17")
    e("s_addc_u32 s9, s71, 0")
    e("s_add_u32 s10, s72, s17")
    e("s_addc_u32 s11, s73, 0")
    srd(e, 20, 8, 9, KEYS_WG * 256)
    srd(e, 24, 10, 11, KEYS_WG * 256)
    srd(e, 28, 12, 13, 0x220000)
    srd(e, 60, 54, 55, 256)
    def loadK(st, soff):
        for T in range(2):
            for j in range(4):
                vo = VKO1 if T else VKO0
                e(f"buffer_load_dwordx4 {vr(KB[st]+16*T+4*j,4)}, v{vo}, s[20:23], {soff} offen offset:{j*64}{cfg.NT}")
    def loadV(st, soff):
        for t in range(8):
            vo = VVO1 if t >= 4 else VVO0
            e(f"buffer_load_dwordx4 {vr(VB[st]+4*t,4)}, v{vo}, s[24:27], {soff} offen offset:{(t&3)*1024}{cfg.NT}")
    def prefetch():
        loadK(0, "s44"); loadV(0, "s44")
        e(f"s_add_u32 s45, s44, {step}")
        loadK(1, "s45"); loadV(1, "s45")
        e(f"s_add_u32 s44, s45, {step}")
    e("s_cmp_lt_u32 s16, 4")
    e("s_cbranch_scc1 L_qrole")
    prefetch()
    e("s_barrier")
    e("s_barrier")
    e("s_branch L_qjoin")
    e.label("L_qrole")
    srd(e, 84, 68, 69, 8192)
    srd(e, 88, 74, 75, 4194304)
    e("s_lshr_b32 s83, s80, 2")
    e("s_and_b32 s92, s80, 3")
    e("s_lshl_b32 s93, s78, 2")
    e("s_add_u32 s92, s92, s93")
    e("s_lshl_b32 s17, s83, 7")
    e("s_lshl_b32 s18, s16, 5")
    e("s_add_u32 s17, s17, s18")
    e(f"v_lshl_add_u32 v8, v{VG}, 3, s17")
    e(f"v_lshlrev_b32 v9, 10, v{VC}")
    e("v_lshl_add_u32 v9, v8, 1, v9")
    e(f"buffer_load_dwordx4 {vr(P,4)}, v9, s[84:87], 0 offen")
    e("v_lshlrev_b32 v9, 13, v8")
    e(f"v_lshl_add_u32 v9, v{VC}, 4, v9")
    e("s_lshl_b32 s17, s92, 8")
    for t in range(8):
        e(f"buffer_load_dwordx4 {vr(KB[0]+4*t,4)}, v9, s[88:91], s17 offen")
        if t < 7:
            e("s_add_u32 s17, s17, 8192")
    e("s_lshl_b32 s18, s16, 12")
    e(f"v_lshl_add_u32 v8, v{VG}, 11, s18")
    e(f"v_lshl_add_u32 v8, v{VC}, 5, v8")
    e("s_waitcnt vmcnt(0)")
    stamp(1)
    perm_mfma(e, KB[0], TMP, O, P, 40, 41, first=True)
    e("s_nop 7")
    e("s_mov_b32 exec_lo, -1")
    e("s_mov_b32 exec_hi, 0")
    for i in range(8):
        for r in range(4):
            e(f"ds_write_b32 v8, v{O+4*i+r} offset:{LDS_O + r*512+i*4}")
    e("s_mov_b64 exec, -1")
    e("s_waitcnt lgkmcnt(0)")
    e("s_barrier")
    e("v_lshlrev_b32 v8, 4, v0")
    for w in range(4):
        e(f"ds_read_b128 {vr(TMP+4*w,4)}, v8 offset:{LDS_O + w*4096}")
    e("v_lshrrev_b32 v9, 5, v0")
    e("v_and_b32 v10, 31, v0")
    e("v_lshlrev_b32 v9, 14, v9")
    e("v_lshl_add_u32 v9, v10, 4, v9")
    e("s_lshl_b32 s18, s83, 1")
    e("s_add_u32 s18, s18, s3")
    e("s_lshl_b32 s18, s18, 17")
    e("s_lshl_b32 s19, s92, 9")
    e("s_add_u32 s18, s18, s19")
    e(f"s_add_u32 s18, s18, {WS_Q}")
    e("s_waitcnt lgkmcnt(0)")
    for k in range(4):
        e(f"v_add_f32 v{TMP+k}, v{TMP+k}, v{TMP+4+k}")
        e(f"v_add_f32 v{TMP+8+k}, v{TMP+8+k}, v{TMP+12+k}")
    for k in range(4):
        e(f"v_add_f32 v{TMP+k}, v{TMP+k}, v{TMP+8+k}")
    e(f"buffer_store_dwordx4 {vr(TMP,4)}, v9, s[28:31], s18 offen sc1")
    e("s_cmp_ge_u32 s2, 8")
    e("s_cbranch_scc1 L_nozero")
    for k in range(4):
        e(f"v_mov_b32 v{TMP+16+k}, 0")
    e("s_lshl_b32 s18, s2, 12")
    e(f"s_add_u32 s18, s18, {WS_ACC}")
    e(f"buffer_store_dwordx4 {vr(TMP+16,4)}, v8, s[28:31], s18 offen sc1")
    e.label("L_nozero")
    e("s_waitcnt vmcnt(0)")
    e("s_barrier")
    stamp(2)
    e("s_cmp_eq_u32 s16, 0")
    e("s_cbranch_scc1 L_qwave")
    prefetch()
    e("s_branch L_qjoin")
    e.label("L_qwave")
    e("v_mov_b32 v8, 1")
    e("s_mov_b64 exec, 1")
    e(f"s_add_u32 s17, s82, {CQ}")
    e(f"buffer_atomic_add v8, v{VZ}, s[60:63], s17 offen")
    e("s_cmp_ge_u32 s2, 8")
    e("s_cbranch_scc1 L_nozero2")
    e(f"buffer_atomic_add v8, v{VZ}, s[60:63], 0 offen offset:{CZ}")
    e.label("L_nozero2")
    e("s_mov_b64 exec, -1")
    poll(e, "q", 60, "s17", 16, 9, VZ)
    stamp(3)
    e("s_lshl_b32 s18, s14, 11")
    e("s_lshl_b32 s19, s3, 17")
    e("s_add_u32 s18, s18, s19")
    e(f"s_add_u32 s18, s18, {WS_Q}")
    e(f"v_lshlrev_b32 v8, 5, v{VLANE}")
    for ks in range(4):
        e(f"buffer_load_dwordx4 {vr(TMP+8*ks,4)}, v8, s[28:31], s18 offen sc1")
        e(f"buffer_load_dwordx4 {vr(TMP+8*ks+4,4)}, v8, s[28:31], s18 offen offset:16 sc1")
        if ks < 3:
            e("s_add_u32 s18, s18, 0x40000")
    prefetch()
    e("s_waitcnt vmcnt(32)")
    for k in range(8):
        e(f"v_add_f32 v{TMP+k}, v{TMP+k}, v{TMP+8+k}")
        e(f"v_add_f32 v{TMP+16+k}, v{TMP+16+k}, v{TMP+24+k}")
    for k in range(8):
        e(f"v_add_f32 v{TMP+k}, v{TMP+k}, v{TMP+16+k}")
    for k in range(4):
        e(f"v_cvt_pk_bf16_f32 v{TMP+k}, v{TMP+2*k}, v{TMP+2*k+1}")
    e(f"v_lshlrev_b32 v8, 4, v{VLANE}")
    e(f"ds_write_b128 v8, {vr(TMP,4)} offset:{LDS_Q}")
    e("s_waitcnt lgkmcnt(0)")
    e.label("L_qjoin")
    e("s_barrier")
    stamp(4)
    for i in range(32):
        e(f"v_mov_b32 v{O+i}, 0")
    for i in range(16):
        e(f"v_mov_b32 v{Q+i}, 0")
    e(f"v_lshlrev_b32 v8, 8, v{VC}")
    e(f"v_lshl_add_u32 v8, v{VG}, 4, v8")
    e(f"v_cmp_gt_u32 vcc, 4, v{VC}")
    e("s_and_saveexec_b64 s[34:35], vcc")
    for j in range(4):
        e(f"ds_read_b128 {vr(Q+4*j,4)}, v8 offset:{LDS_Q + j*64}")
    e("s_mov_b64 exec, s[34:35]")
    e(f"s_mov_b32 s46, {NIT//2}")
    e(f"v_mov_b32 v{VM}, 0xff800000")
    e(f"v_mov_b32 v{VL}, 0")
    e(f"v_mov_b32 v{VMC}, 0")
    e("s_waitcnt lgkmcnt(0)")
    e.label("L_loop")
    for st in range(2):
        K, V = KB[st], VB[st]
        e("s_waitcnt vmcnt(24)")
        for j in range(4):
            for T in range(2):
                c = "0" if j == 0 else vr(S+4*T, 4)
                e(f"v_mfma_f32_16x16x32_bf16 {vr(S+4*T,4)}, {vr(K+16*T+4*j,4)}, {vr(Q+4*j,4)}, {c}")
        e("s_cmp_gt_u32 s46, 1")
        e("s_cselect_b32 s47, s44, 0x40000000")
        loadK(st, "s47")
        e(f"v_max3_f32 v{VT}, v{S}, v{S+1}, v{S+2}")
        e(f"v_max3_f32 v{VT}, v{VT}, v{S+3}, v{S+4}")
        e(f"v_max3_f32 v{VT}, v{VT}, v{S+5}, v{S+6}")
        e(f"v_max3_f32 v{VT}, v{VT}, v{S+7}, v{VM}")
        e(f"v_mov_b32 v{VT2}, v{VT}")
        e("s_nop 1")
        e(f"v_permlane16_swap_b32 v{VT}, v{VT2}")
        e("s_nop 0")
        e(f"v_max_f32 v{VT}, v{VT}, v{VT2}")
        e(f"v_mov_b32 v{VT2}, v{VT}")
        e("s_nop 1")
        e(f"v_permlane32_swap_b32 v{VT}, v{VT2}")
        e("s_nop 0")
        e(f"v_max_f32 v{VT}, v{VT}, v{VT2}")
        e(f"v_cmp_gt_f32 vcc, v{VT}, v{VM}")
        e(f"s_cbranch_vccz L_skip{st}")
        e(f"v_sub_f32 v{VD}, v{VM}, v{VT}")
        e(f"v_mul_f32 v{VD}, s42, v{VD}")
        e(f"v_exp_f32 v{VD}, v{VD}")
        e(f"v_mov_b32 v{VM}, v{VT}")
        e(f"v_mul_f32 v{VMC}, s42, v{VT}")
        e(f"v_mul_f32 v{VL}, v{VL}, v{VD}")
        for h in range(4):
            e(f"v_readlane_b32 s{48+h}, v{VD}, {h}")
        e("s_nop 1")
        for i in range(8):
            for r in range(4):
                e(f"v_mul_f32 v{O+4*i+r}, s{48+r}, v{O+4*i+r}")
        e.label(f"L_skip{st}")
        for i in range(8):
            e(f"v_fma_f32 v{S+i}, v{S+i}, s42, -v{VMC}")
        for i in range(8):
            e(f"v_exp_f32 v{S+i}, v{S+i}")
        e("s_nop 0")
        e(f"v_add_f32 v{VT}, v{S}, v{S+1}")
        e(f"v_add_f32 v{VT2}, v{S+2}, v{S+3}")
        e(f"v_add_f32 v{VD}, v{S+4}, v{S+5}")
        e(f"v_add_f32 v{VL}, v{VL}, v{VT}")
        e(f"v_add_f32 v{VT}, v{S+6}, v{S+7}")
        e(f"v_add_f32 v{VT2}, v{VT2}, v{VD}")
        e(f"v_add_f32 v{VL}, v{VL}, v{VT}")
        e(f"v_add_f32 v{VL}, v{VL}, v{VT2}")
        for k in range(4):
            e(f"v_cvt_pk_bf16_f32 v{P+k}, v{S+2*k}, v{S+2*k+1}")
        e("s_waitcnt vmcnt(24)")
        perm_mfma(e, V, TMP, O, P, 40, 41)
        loadV(st, "s47")
        e(f"s_add_u32 s44, s44, {step}")
    e("s_sub_u32 s46, s46, 1")
    e("s_cmp_lg_u32 s46, 0")
    e("s_cbranch_scc1 L_loop")
    stamp(5)
    e(f"v_mov_b32 v{VT}, v{VL}")
    e(f"v_mov_b32 v{VT2}, v{VL}")
    e("s_nop 1")
    e(f"v_permlane16_swap_b32 v{VT}, v{VT2}")
    e("s_nop 0")
    e(f"v_add_f32 v{VT}, v{VT}, v{VT2}")
    e(f"v_mov_b32 v{VT2}, v{VT}")
    e("s_nop 1")
    e(f"v_permlane32_swap_b32 v{VT}, v{VT2}")
    e("s_nop 0")
    e(f"v_add_f32 v{VT2}, v{VT}, v{VT2}")
    e(f"v_mov_b32 v{VT}, v{VM}")
    e(f"v_lshlrev_b32 v12, 3, v{VLANE}")
    e("s_lshl_b32 s18, s16, 5")
    e(f"s_add_u32 s18, s18, {LDS_ML}")
    e("v_add_u32 v12, s18, v12")
    e(f"v_lshlrev_b32 v13, 5, v{VLANE}")
    e("s_lshl_b32 s18, s16, 11")
    e("v_add_u32 v13, s18, v13")
    e("s_mov_b64 exec, 0xf")
    e(f"ds_write_b64 v12, v[{VT}:{VT2}]")
    e("s_mov_b64 exec, 0xffff")
    for i in range(8):
        for r in range(4):
            e(f"ds_write_b32 v13, v{O+4*i+r} offset:{LDS_O + r*512 + i*4}")
    e("s_mov_b64 exec, -1")
    e("s_lshr_b32 s94, s80, 2")
    e("s_lshl_b32 s93, s78, 2")
    e("s_add_u32 s94, s94, s93")
    e("s_and_b32 s95, s80, 3")
    e("s_waitcnt vmcnt(0)")
    e("s_cmp_lt_u32 s16, 4")
    e("s_cbranch_scc1 L_pub")
    srd(e, 88, 76, 77, 4194304)
    e("s_sub_u32 s96, s16, 4")
    e("s_lshl_b32 s17, s94, 7")
    e("s_lshl_b32 s18, s96, 5")
    e("s_add_u32 s17, s17, s18")
    e(f"v_lshl_add_u32 v14, v{VG}, 3, s17")
    e("v_lshlrev_b32 v14, 10, v14")
    e(f"v_lshl_add_u32 v14, v{VC}, 4, v14")
    e("s_lshl_b32 s17, s95, 8")
    e("v_add_u32 v14, s17, v14")
    e("v_add_u32 v15, 0x1000, v14")
    for t in range(8):
        vo = 15 if t >= 4 else 14
        e(f"buffer_load_dwordx4 {vr(KB[0]+4*t,4)}, v{vo}, s[88:91], 0 offen offset:{(t&3)*1024}")
    OP_P = 8 * 32 * NSPLIT * 512
    ML_P = 8 * 32 * NSPLIT * 8
    e(f"s_mul_i32 s17, s3, {OP_P}")
    e(f"s_add_u32 s17, s17, {WS_O}")
    e("s_add_u32 s18, s12, s17")
    e("s_addc_u32 s19, s13, 0")
    srd(e, 84, 18, 19, OP_P)
    e(f"s_mul_i32 s17, s3, {ML_P}")
    e(f"s_add_u32 s17, s17, {WS_ML}")
    e("s_add_u32 s18, s12, s17")
    e("s_addc_u32 s19, s13, 0")
    srd(e, 56, 18, 19, ML_P)
    e(f"v_mul_u32_u24 v16, {32*NSPLIT*512}, v{VC}")
    e("s_lshl_b32 s17, s96, 7")
    e("v_add_u32 v16, s17, v16")
    e(f"v_lshl_add_u32 v16, v{VG}, 5, v16")
    e(f"v_mul_u32_u24 v17, {32*NSPLIT*8}, v{VC}")
    e("s_lshl_b32 s18, s96, 12")
    e(f"v_lshl_add_u32 v18, v{VG}, 11, s18")
    e(f"v_lshl_add_u32 v18, v{VC}, 5, v18")
    e("s_waitcnt lgkmcnt(0)")
    e("s_barrier")
    e("s_barrier")
    e("s_barrier")
    PB = KB[1]
    MB = PB + 16
    e(f"s_mul_i32 s17, s94, {NSPLIT*512}")
    for s_ in range(NSPLIT):
        e(f"buffer_load_dwordx4 {vr(PB+8*s_,4)}, v16, s[84:87], s17 offen offset:{s_*512} sc1")
        e(f"buffer_load_dwordx4 {vr(PB+8*s_+4,4)}, v16, s[84:87], s17 offen offset:{s_*512+16} sc1")
    e(f"s_mul_i32 s17, s94, {NSPLIT*8}")
    e(f"buffer_load_dwordx4 {vr(MB,4)}, v17, s[56:59], s17 offen sc1")
    e("s_waitcnt vmcnt(0)")
    e(f"v_max_f32 v19, v{MB}, v{MB+2}")
    for s_ in range(NSPLIT):
        e(f"v_sub_f32 v{MB+2*s_}, v{MB+2*s_}, v19")
        e(f"v_mul_f32 v{MB+2*s_}, s42, v{MB+2*s_}")
        e(f"v_exp_f32 v{MB+2*s_}, v{MB+2*s_}")
    e("s_nop 0")
    e(f"v_mul_f32 v19, v{MB}, v{MB+1}")
    e(f"v_fmac_f32 v19, v{MB+2}, v{MB+3}")
    e("v_rcp_f32 v19, v19")
    e("s_nop 0")
    for s_ in range(NSPLIT):
        e(f"v_mul_f32 v{MB+2*s_}, v{MB+2*s_}, v19")
    for k in range(8):
        e(f"v_mul_f32 v{PB+k}, v{PB+k}, v{MB}")
        e(f"v_fmac_f32 v{PB+k}, v{PB+8+k}, v{MB+2}")
    for k in range(4):
        e(f"v_cvt_pk_bf16_f32 v{P+k}, v{PB+2*k}, v{PB+2*k+1}")
    perm_mfma(e, KB[0], TMP, O, P, 40, 41, first=True)
    e("s_nop 7")
    e("s_mov_b32 exec_lo, -1")
    e("s_mov_b32 exec_hi, 0")
    for i in range(8):
        for r in range(4):
            e(f"ds_write_b32 v18, v{O+4*i+r} offset:{LDS_O + r*512+i*4}")
    e("s_mov_b64 exec, -1")
    e("s_waitcnt lgkmcnt(0)")
    e("s_branch L_ojoin")
    e.label("L_pub")
    e("s_waitcnt lgkmcnt(0)")
    e("s_barrier")
    e("s_lshl_b32 s17, s16, 3")
    e(f"v_mov_b32 v16, s17")
    e("s_lshl_b32 s17, s16, 9")
    e(f"v_lshl_add_u32 v17, v{VLANE}, 3, s17")
    for w in range(NW):
        e(f"ds_read_b64 {vr(72+2*w,2)}, v16 offset:{LDS_ML + w*32}")
    for w in range(NW):
        e(f"ds_read_b64 {vr(104+2*w,2)}, v17 offset:{LDS_O + w*2048}")
    e("s_waitcnt lgkmcnt(0)")
    e("v_max_f32 v18, v72, v74")
    for w in range(2, NW):
        e(f"v_max_f32 v18, v18, v{72+2*w}")
    e("v_mov_b32 v19, 0")
    e("v_mov_b32 v20, 0")
    e("v_mov_b32 v21, 0")
    for w in range(NW):
        e(f"v_sub_f32 v22, v{72+2*w}, v18")
        e("v_mul_f32 v22, s42, v22")
        e("v_exp_f32 v22, v22")
        e("s_nop 0")
        e(f"v_fmac_f32 v19, v22, v{73+2*w}")
        e(f"v_fmac_f32 v20, v22, v{104+2*w}")
        e(f"v_fmac_f32 v21, v22, v{105+2*w}")
    e("s_lshl_b32 s18, s3, 6")
    e("s_add_u32 s18, s18, s14")
    e("s_lshl_b32 s18, s18, 2")
    e("s_add_u32 s18, s18, s16")
    e(f"s_mul_i32 s19, s18, {NSPLIT*512}")
    e("s_lshl_b32 s36, s15, 9")
    e("s_add_u32 s19, s19, s36")
    e(f"s_add_u32 s19, s19, {WS_O}")
    e(f"v_lshlrev_b32 v22, 3, v{VLANE}")
    e("buffer_store_dwordx2 v[20:21], v22, s[28:31], s19 offen sc1")
    e(f"s_mul_i32 s19, s18, {NSPLIT*8}")
    e("s_lshl_b32 s36, s15, 3")
    e("s_add_u32 s19, s19, s36")
    e(f"s_add_u32 s19, s19, {WS_ML}")
    e("s_mov_b64 exec, 1")
    e(f"buffer_store_dwordx2 v[18:19], v{VZ}, s[28:31], s19 offen sc1")
    e("s_mov_b64 exec, -1")
    e("s_waitcnt vmcnt(0)")
    e("s_barrier")
    stamp(6)
    e("s_cmp_lg_u32 s16, 0")
    e("s_cbranch_scc1 L_pub_np")
    e("v_mov_b32 v8, 1")
    e("s_mov_b64 exec, 1")
    e(f"s_add_u32 s17, s82, {CO}")
    e(f"buffer_atomic_add v8, v{VZ}, s[60:63], s17 offen")
    e("s_mov_b64 exec, -1")
    poll(e, "o", 60, "s17", 16, 9, VZ)
    e(f"s_mov_b32 s17, {CZ}")
    poll(e, "z", 60, "s17", 8, 9, VZ)
    stamp(7)
    e.label("L_pub_np")
    e("s_barrier")
    e.label("L_ojoin")
    e("s_barrier")
    stamp(8)
    e("v_lshlrev_b32 v8, 2, v0")
    for u in range(2):
        for w in range(4):
            e(f"ds_read_b32 v{72+4*u+w}, v8 offset:{LDS_O + w*4096+u*2048}")
    e("v_lshrrev_b32 v9, 7, v0")
    e("v_and_b32 v10, 127, v0")
    e("v_lshlrev_b32 v9, 12, v9")
    e("v_lshl_add_u32 v9, v10, 2, v9")
    e("s_lshl_b32 s17, s3, 11")
    e("s_lshl_b32 s18, s95, 9")
    e("s_add_u32 s17, s17, s18")
    e(f"s_add_u32 s17, s17, {WS_ACC}")
    e("s_add_u32 s18, s17, 16384")
    e("s_waitcnt lgkmcnt(0)")
    for u in range(2):
        e(f"v_add_f32 v{72+4*u}, v{72+4*u}, v{73+4*u}")
        e(f"v_add_f32 v{74+4*u}, v{74+4*u}, v{75+4*u}")
    for u in range(2):
        e(f"v_add_f32 v{72+4*u}, v{72+4*u}, v{74+4*u}")
    e("buffer_atomic_add_f32 v72, v9, s[28:31], s17 offen")
    e("buffer_atomic_add_f32 v76, v9, s[28:31], s18 offen")
    e("s_waitcnt vmcnt(0)")
    e("s_barrier")
    stamp(9)
    e("s_cmp_lg_u32 s16, 0")
    e("s_cbranch_scc1 L_fin")
    e("s_lshl_b32 s19, s3, 2")
    e("s_add_u32 s19, s19, s95")
    e("s_lshl_b32 s19, s19, 2")
    e(f"s_add_u32 s19, s19, {CF}")
    e("v_mov_b32 v8, 1")
    e("s_mov_b64 exec, 1")
    e(f"buffer_atomic_add v8, v{VZ}, s[60:63], s19 offen sc0")
    e("s_waitcnt vmcnt(0)")
    e("s_mov_b64 exec, -1")
    e("v_readfirstlane_b32 s19, v8")
    stamp(10)
    e("s_cmp_lg_u32 s19, 31")
    e("s_cbranch_scc1 L_fin")
    e(f"v_lshlrev_b32 v9, 3, v{VLANE}")
    for i in range(16):
        e(f"v_mov_b32 v{72+i}, 0")
    e("s_mov_b32 s18, s17")
    for i in range(8):
        e(f"buffer_atomic_add_f32 v{72+2*i}, v9, s[28:31], s18 offen sc0")
        e(f"buffer_atomic_add_f32 v{73+2*i}, v9, s[28:31], s18 offen offset:4 sc0")
        if i < 7:
            e("s_add_u32 s18, s18, 4096")
    srd(e, 64, 52, 53, 16384)
    e("s_lshl_b32 s18, s3, 10")
    e("s_lshl_b32 s19, s95, 8")
    e("s_add_u32 s18, s18, s19")
    e(f"v_lshlrev_b32 v10, 2, v{VLANE}")
    e("s_waitcnt vmcnt(0)")
    for i in range(8):
        e(f"v_cvt_pk_bf16_f32 v{72+2*i}, v{72+2*i}, v{73+2*i}")
        e(f"buffer_store_dword v{72+2*i}, v10, s[64:67], s18 offen")
        if i < 7:
            e("s_add_u32 s18, s18, 2048")
    stamp(11)
    e.label("L_fin")
    if cfg.STAMP:
        srd(e, 28, 12, 13, 0x800000)
        e("s_lshl_b32 s18, s2, 3")
        e("s_add_u32 s18, s18, s16")
        e("s_lshl_b32 s18, s18, 8")
        e("s_add_u32 s18, s18, 0x400000")
        e(f"v_lshlrev_b32 v9, 2, v{VLANE}")
        e(f"buffer_store_dword v{VST}, v9, s[28:31], s18 offen")
    e.label("L_end")
    e("s_endpgm")
    return name, NV, LDS_TOTAL, NWG


def poll2(e, tag, dbg_srd, soff, target, vtmp, vzero, sleep):
    e(f"s_mov_b32 s38, 400000")
    e.label(f"L_poll_{tag}")
    e(f"buffer_load_dword v{vtmp}, v{vzero}, s[{dbg_srd}:{dbg_srd+3}], {soff} offen sc1")
    e("s_waitcnt vmcnt(0)")
    e(f"v_readfirstlane_b32 s39, v{vtmp}")
    e(f"s_cmp_ge_u32 s39, {target}")
    e(f"s_cbranch_scc1 L_polld_{tag}")
    if sleep:
        e(f"s_sleep {sleep}")
    e("s_sub_u32 s38, s38, 1")
    e("s_cmp_lg_u32 s38, 0")
    e(f"s_cbranch_scc1 L_poll_{tag}")
    e.label(f"L_polld_{tag}")

def gen_fused2(e, cfg):
    name = NAME + "_kernel"
    NW, NSPLIT = 8, 2
    NWG = 256
    KEYS_WG = 4096
    NTILE = KEYS_WG // 32
    cscale = (128 ** -0.5) * math.log2(math.e)
    VKO0, VKO1, VVO0, VVO1 = 1, 2, 3, 4
    VM, VL, VMC, VT, VT2, VD = 5, 6, 7, 8, 9, 10
    VLANE = 11
    Q = 12; S = 28; P = 36; O = 40
    KB = [72, 104]; VB = [136, 168]; TMP = 200
    VC, VG, VZ, VST, VTK, VONE = 232, 233, 234, 235, 236, 237
    NV = 238
    LDS_O = 0
    LDS_ML = 16384
    LDS_Q = LDS_ML + 256
    LDS_TK = LDS_Q + 1024
    LDS_TOTAL = LDS_TK + 16
    CQ, CO, CF, CZ = 0, 64, 128, 160
    def stamp(i):
        if cfg.STAMP:
            e("s_memrealtime s[98:99]")
            e("s_waitcnt lgkmcnt(0)")
            e(f"v_writelane_b32 v{VST}, s98, {i}")
    kernel_begin(e, name)
    e(f"s_cmp_ge_u32 s2, {NWG}")
    e("s_cbranch_scc1 L_end")
    if cfg.STAMP:
        e(f"v_mov_b32 v{VST}, 0")
    stamp(0)
    e("s_lshr_b32 s3, s2, 7")
    e("s_lshr_b32 s14, s2, 1")
    e("s_and_b32 s14, s14, 63")
    e("s_and_b32 s15, s2, 1")
    e("s_mul_i32 s4, s3, 40")
    e("s_add_u32 s6, s0, s4")
    e("s_addc_u32 s7, s1, 0")
    e("s_load_dwordx8 s[68:75], s[6:7], 0")
    e("s_load_dwordx2 s[76:77], s[6:7], 32")
    e("s_load_dwordx4 s[52:55], s[0:1], 80")
    e("s_load_dwordx2 s[12:13], s[0:1], 96")
    e(f"v_and_b32 v{VLANE}, 63, v0")
    e("v_lshrrev_b32 v5, 6, v0")
    e("s_nop 0")
    e("v_readfirstlane_b32 s16, v5")
    e(f"v_and_b32 v{VC}, 15, v{VLANE}")
    e(f"v_lshrrev_b32 v{VG}, 4, v{VLANE}")
    e(f"v_mov_b32 v{VZ}, 0")
    e(f"v_mov_b32 v{VONE}, 1")
    e(f"v_and_b32 v8, 3, v{VC}")
    e(f"v_lshrrev_b32 v9, 2, v{VC}")
    e("v_lshl_add_u32 v8, v8, 2, v9")
    e("v_lshlrev_b32 v8, 8, v8")
    e(f"v_lshl_add_u32 v{VKO0}, v{VG}, 4, v8")
    e(f"v_add_u32 v{VKO1}, 0x1000, v{VKO0}")
    e(f"v_lshlrev_b32 v{VVO0}, 4, v{VLANE}")
    e(f"v_add_u32 v{VVO1}, 0x1000, v{VVO0}")
    e("s_mov_b32 s40, 0x05040100")
    e("s_mov_b32 s41, 0x07060302")
    e(f"s_mov_b32 s42, {f2u(cscale):#x}")
    e("s_and_b32 s78, s14, 7")
    e("s_lshr_b32 s79, s14, 3")
    e("s_lshl_b32 s80, s79, 1")
    e("s_add_u32 s80, s80, s15")
    e("s_lshl_b32 s81, s3, 3")
    e("s_add_u32 s81, s81, s78")
    e("s_lshl_b32 s82, s81, 2")
    e("s_lshl_b32 s17, s14, 21")
    e(f"s_mul_i32 s18, s15, {KEYS_WG*256}")
    e("s_add_u32 s17, s17, s18")
    e("s_add_u32 s44, s16, 4")
    e("s_and_b32 s44, s44, 7")
    e("s_cmp_lt_u32 s16, 4")
    e("s_cselect_b32 s45, 4, 0")
    e("s_add_u32 s44, s44, s45")
    e("s_add_u32 s45, s44, 4")
    e("s_waitcnt lgkmcnt(0)")
    e("s_add_u32 s8, s70, s17")
    e("s_addc_u32 s9, s71, 0")
    e("s_add_u32 s10, s72, s17")
    e("s_addc_u32 s11, s73, 0")
    srd(e, 20, 8, 9, KEYS_WG * 256)
    srd(e, 24, 10, 11, KEYS_WG * 256)
    srd(e, 28, 12, 13, 0x220000)
    srd(e, 60, 54, 55, 256)
    def loadK(st, soff):
        for T in range(2):
            for j in range(4):
                vo = VKO1 if T else VKO0
                e(f"buffer_load_dwordx4 {vr(KB[st]+16*T+4*j,4)}, v{vo}, s[20:23], {soff} offen offset:{j*64}{cfg.NT}")
    def loadV(st, soff):
        for t in range(8):
            vo = VVO1 if t >= 4 else VVO0
            e(f"buffer_load_dwordx4 {vr(VB[st]+4*t,4)}, v{vo}, s[24:27], {soff} offen offset:{(t&3)*1024}{cfg.NT}")
    def prefetch():
        e("s_lshl_b32 s47, s44, 13")
        loadK(0, "s47"); loadV(0, "s47")
        e("s_lshl_b32 s47, s45, 13")
        loadK(1, "s47"); loadV(1, "s47")
    e("s_cmp_lt_u32 s16, 4")
    e("s_cbranch_scc1 L_qrole")
    prefetch()
    e("s_branch L_qjoin")
    e.label("L_qrole")
    e("s_lshl_b32 s17, s79, 10")
    e("s_add_u32 s18, s68, s17")
    e("s_addc_u32 s19, s69, 0")
    srd(e, 84, 18, 19, 1024)
    srd(e, 88, 74, 75, 4194304)
    e("s_cmp_ge_u32 s2, 8")
    e("s_cbranch_scc1 L_nozero")
    for k in range(4):
        e(f"v_mov_b32 v{S+k}, 0")
    e("v_lshlrev_b32 v8, 4, v0")
    e("s_lshl_b32 s18, s2, 12")
    e(f"s_add_u32 s18, s18, {WS_ACC}")
    e(f"buffer_store_dwordx4 {vr(S,4)}, v8, s[28:31], s18 offen sc1")
    e.label("L_nozero")
    e(f"v_lshlrev_b32 v8, 10, v{VC}")
    e(f"v_lshl_add_u32 v8, v{VG}, 4, v8")
    e(f"v_lshlrev_b32 v9, 16, v{VG}")
    e(f"v_lshl_add_u32 v9, v{VC}, 4, v9")
    e("s_lshl_b32 s17, s78, 10")
    e("s_lshl_b32 s18, s16, 8")
    e("s_add_u32 s17, s17, s18")
    bufs = [KB[0], KB[1], VB[0], VB[1]]
    def qload(T):
        bq = bufs[T & 3]
        e(f"buffer_load_dwordx4 {vr(Q+4*(T&3),4)}, v8, s[84:87], 0 offen offset:{T*64}")
        for t in range(8):
            e(f"buffer_load_dwordx4 {vr(bq+4*t,4)}, v9, s[88:91], s17 offen")
            e("s_add_u32 s17, s17, 8192")
        e(f"s_add_u32 s17, s17, {24*8192}")
    for T in range(4):
        qload(T)
    for T in range(16):
        rem = min(3, 15 - T)
        e(f"s_waitcnt vmcnt({9*rem})")
        perm_mfma(e, bufs[T & 3], TMP, O, Q + 4*(T & 3), 40, 41, first=(T == 0))
        if T + 4 < 16:
            qload(T + 4)
    stamp(1)
    e("s_nop 7")
    for k in range(4):
        e(f"v_cvt_pk_bf16_f32 v{S+k}, v{O+8*k}, v{O+8*k+4}")
    e(f"v_lshlrev_b32 v8, 4, v{VLANE}")
    e("s_lshl_b32 s18, s16, 8")
    e("v_add_u32 v8, s18, v8")
    e("s_mov_b64 exec, 0xffff")
    e(f"ds_write_b128 v8, {vr(S,4)} offset:{LDS_Q}")
    e("s_mov_b64 exec, 1")
    e("v_mov_b32 v9, 16")
    e(f"ds_write_b32 v{VZ}, v9 offset:{LDS_TK}")
    e("s_mov_b64 exec, -1")
    prefetch()
    e("s_waitcnt lgkmcnt(0)")
    e.label("L_qjoin")
    e("s_barrier")
    stamp(4)
    e("s_cmp_ge_u32 s2, 8")
    e("s_cbranch_scc1 L_nozero2")
    e("s_cmp_lg_u32 s16, 0")
    e("s_cbranch_scc1 L_nozero2")
    e("s_mov_b64 exec, 1")
    e(f"buffer_atomic_add v{VONE}, v{VZ}, s[60:63], 0 offen offset:{CZ}")
    e("s_mov_b64 exec, -1")
    e("s_waitcnt vmcnt(0)")
    e.label("L_nozero2")
    for i in range(32):
        e(f"v_mov_b32 v{O+i}, 0")
    for i in range(16):
        e(f"v_mov_b32 v{Q+i}, 0")
    e(f"v_lshlrev_b32 v8, 8, v{VC}")
    e(f"v_lshl_add_u32 v8, v{VG}, 4, v8")
    e(f"v_cmp_gt_u32 vcc, 4, v{VC}")
    e("s_and_saveexec_b64 s[34:35], vcc")
    for j in range(4):
        e(f"ds_read_b128 {vr(Q+4*j,4)}, v8 offset:{LDS_Q + j*64}")
    e("s_mov_b64 exec, s[34:35]")
    e(f"v_mov_b32 v{VM}, 0xff800000")
    e(f"v_mov_b32 v{VL}, 0")
    e(f"v_mov_b32 v{VMC}, 0")
    e("s_waitcnt lgkmcnt(0)")
    e("s_mov_b32 s97, 0")
    e.label("L_loop")
    for st in range(2):
        K, V = KB[st], VB[st]
        tk = 44 + st
        e(f"s_cmp_ge_u32 s{tk}, {NTILE}")
        e("s_cbranch_scc1 L_loopend")
        if cfg.STAMP:
            e("s_add_u32 s97, s97, 1")
        e("s_mov_b64 exec, 1")
        e(f"ds_add_rtn_u32 v{VTK}, v{VZ}, v{VONE} offset:{LDS_TK}")
        e("s_mov_b64 exec, -1")
        e("s_waitcnt vmcnt(24)")
        for j in range(4):
            for T in range(2):
                c = "0" if j == 0 else vr(S+4*T, 4)
                e(f"v_mfma_f32_16x16x32_bf16 {vr(S+4*T,4)}, {vr(K+16*T+4*j,4)}, {vr(Q+4*j,4)}, {c}")
        e("s_waitcnt lgkmcnt(0)")
        e(f"v_readfirstlane_b32 s{tk}, v{VTK}")
        e(f"s_lshl_b32 s47, s{tk}, 13")
        e(f"s_cmp_ge_u32 s{tk}, {NTILE}")
        e("s_cselect_b32 s47, 0x40000000, s47")
        loadK(st, "s47")
        e(f"v_max3_f32 v{VT}, v{S}, v{S+1}, v{S+2}")
        e(f"v_max3_f32 v{VT}, v{VT}, v{S+3}, v{S+4}")
        e(f"v_max3_f32 v{VT}, v{VT}, v{S+5}, v{S+6}")
        e(f"v_max3_f32 v{VT}, v{VT}, v{S+7}, v{VM}")
        e(f"v_mov_b32 v{VT2}, v{VT}")
        e("s_nop 1")
        e(f"v_permlane16_swap_b32 v{VT}, v{VT2}")
        e("s_nop 0")
        e(f"v_max_f32 v{VT}, v{VT}, v{VT2}")
        e(f"v_mov_b32 v{VT2}, v{VT}")
        e("s_nop 1")
        e(f"v_permlane32_swap_b32 v{VT}, v{VT2}")
        e("s_nop 0")
        e(f"v_max_f32 v{VT}, v{VT}, v{VT2}")
        e(f"v_cmp_gt_f32 vcc, v{VT}, v{VM}")
        e(f"s_cbranch_vccz L_skip{st}")
        e(f"v_sub_f32 v{VD}, v{VM}, v{VT}")
        e(f"v_mul_f32 v{VD}, s42, v{VD}")
        e(f"v_exp_f32 v{VD}, v{VD}")
        e(f"v_mov_b32 v{VM}, v{VT}")
        e(f"v_mul_f32 v{VMC}, s42, v{VT}")
        e(f"v_mul_f32 v{VL}, v{VL}, v{VD}")
        for h in range(4):
            e(f"v_readlane_b32 s{48+h}, v{VD}, {h}")
        e("s_nop 1")
        for i in range(8):
            for r in range(4):
                e(f"v_mul_f32 v{O+4*i+r}, s{48+r}, v{O+4*i+r}")
        e.label(f"L_skip{st}")
        for i in range(8):
            e(f"v_fma_f32 v{S+i}, v{S+i}, s42, -v{VMC}")
        for i in range(8):
            e(f"v_exp_f32 v{S+i}, v{S+i}")
        e("s_nop 0")
        e(f"v_add_f32 v{VT}, v{S}, v{S+1}")
        e(f"v_add_f32 v{VT2}, v{S+2}, v{S+3}")
        e(f"v_add_f32 v{VD}, v{S+4}, v{S+5}")
        e(f"v_add_f32 v{VL}, v{VL}, v{VT}")
        e(f"v_add_f32 v{VT}, v{S+6}, v{S+7}")
        e(f"v_add_f32 v{VT2}, v{VT2}, v{VD}")
        e(f"v_add_f32 v{VL}, v{VL}, v{VT}")
        e(f"v_add_f32 v{VL}, v{VL}, v{VT2}")
        for k in range(4):
            e(f"v_cvt_pk_bf16_f32 v{P+k}, v{S+2*k}, v{S+2*k+1}")
        e("s_waitcnt vmcnt(24)")
        perm_mfma(e, V, TMP, O, P, 40, 41)
        loadV(st, "s47")
    e("s_branch L_loop")
    e.label("L_loopend")
    stamp(5)
    if cfg.STAMP:
        e(f"v_writelane_b32 v{VST}, s97, 12")
    e(f"v_mov_b32 v{VT}, v{VL}")
    e(f"v_mov_b32 v{VT2}, v{VL}")
    e("s_nop 1")
    e(f"v_permlane16_swap_b32 v{VT}, v{VT2}")
    e("s_nop 0")
    e(f"v_add_f32 v{VT}, v{VT}, v{VT2}")
    e(f"v_mov_b32 v{VT2}, v{VT}")
    e("s_nop 1")
    e(f"v_permlane32_swap_b32 v{VT}, v{VT2}")
    e("s_nop 0")
    e(f"v_add_f32 v{VT2}, v{VT}, v{VT2}")
    e(f"v_mov_b32 v{VT}, v{VM}")
    e(f"v_lshlrev_b32 v12, 3, v{VLANE}")
    e("s_lshl_b32 s18, s16, 5")
    e(f"s_add_u32 s18, s18, {LDS_ML}")
    e("v_add_u32 v12, s18, v12")
    e(f"v_lshlrev_b32 v13, 5, v{VLANE}")
    e("s_lshl_b32 s18, s16, 11")
    e("v_add_u32 v13, s18, v13")
    e("s_mov_b64 exec, 0xf")
    e(f"ds_write_b64 v12, v[{VT}:{VT2}]")
    e("s_mov_b64 exec, 0xffff")
    for i in range(8):
        for r in range(4):
            e(f"ds_write_b32 v13, v{O+4*i+r} offset:{LDS_O + r*512 + i*4}")
    e("s_mov_b64 exec, -1")
    e("s_lshr_b32 s94, s80, 2")
    e("s_lshl_b32 s93, s78, 2")
    e("s_add_u32 s94, s94, s93")
    e("s_and_b32 s95, s80, 3")
    e("s_waitcnt vmcnt(0)")
    e("s_cmp_lt_u32 s16, 4")
    e("s_cbranch_scc1 L_pub")
    srd(e, 88, 76, 77, 4194304)
    e("s_sub_u32 s96, s16, 4")
    e("s_lshl_b32 s17, s94, 7")
    e("s_lshl_b32 s18, s96, 5")
    e("s_add_u32 s17, s17, s18")
    e(f"v_lshl_add_u32 v14, v{VG}, 3, s17")
    e("v_lshlrev_b32 v14, 10, v14")
    e(f"v_lshl_add_u32 v14, v{VC}, 4, v14")
    e("s_lshl_b32 s17, s95, 8")
    e("v_add_u32 v14, s17, v14")
    e("v_add_u32 v15, 0x1000, v14")
    for t in range(8):
        vo = 15 if t >= 4 else 14
        e(f"buffer_load_dwordx4 {vr(KB[0]+4*t,4)}, v{vo}, s[88:91], 0 offen offset:{(t&3)*1024}")
    OP_P = 8 * 32 * NSPLIT * 512
    ML_P = 8 * 32 * NSPLIT * 8
    e(f"s_mul_i32 s17, s3, {OP_P}")
    e(f"s_add_u32 s17, s17, {WS_O}")
    e("s_add_u32 s18, s12, s17")
    e("s_addc_u32 s19, s13, 0")
    srd(e, 84, 18, 19, OP_P)
    e(f"s_mul_i32 s17, s3, {ML_P}")
    e(f"s_add_u32 s17, s17, {WS_ML}")
    e("s_add_u32 s18, s12, s17")
    e("s_addc_u32 s19, s13, 0")
    srd(e, 56, 18, 19, ML_P)
    e(f"v_mul_u32_u24 v16, {32*NSPLIT*512}, v{VC}")
    e("s_lshl_b32 s17, s96, 7")
    e("v_add_u32 v16, s17, v16")
    e(f"v_lshl_add_u32 v16, v{VG}, 5, v16")
    e(f"v_mul_u32_u24 v17, {32*NSPLIT*8}, v{VC}")
    e("s_lshl_b32 s18, s96, 12")
    e(f"v_lshl_add_u32 v18, v{VG}, 11, s18")
    e(f"v_lshl_add_u32 v18, v{VC}, 5, v18")
    e("s_waitcnt lgkmcnt(0)")
    e("s_barrier")
    e("s_barrier")
    e("s_barrier")
    PB = KB[1]
    MB = PB + 16
    e(f"s_mul_i32 s17, s94, {NSPLIT*512}")
    for s_ in range(NSPLIT):
        e(f"buffer_load_dwordx4 {vr(PB+8*s_,4)}, v16, s[84:87], s17 offen offset:{s_*512} sc1")
        e(f"buffer_load_dwordx4 {vr(PB+8*s_+4,4)}, v16, s[84:87], s17 offen offset:{s_*512+16} sc1")
    e(f"s_mul_i32 s17, s94, {NSPLIT*8}")
    e(f"buffer_load_dwordx4 {vr(MB,4)}, v17, s[56:59], s17 offen sc1")
    e("s_waitcnt vmcnt(0)")
    e(f"v_max_f32 v19, v{MB}, v{MB+2}")
    for s_ in range(NSPLIT):
        e(f"v_sub_f32 v{MB+2*s_}, v{MB+2*s_}, v19")
        e(f"v_mul_f32 v{MB+2*s_}, s42, v{MB+2*s_}")
        e(f"v_exp_f32 v{MB+2*s_}, v{MB+2*s_}")
    e("s_nop 0")
    e(f"v_mul_f32 v19, v{MB}, v{MB+1}")
    e(f"v_fmac_f32 v19, v{MB+2}, v{MB+3}")
    e("v_rcp_f32 v19, v19")
    e("s_nop 0")
    for s_ in range(NSPLIT):
        e(f"v_mul_f32 v{MB+2*s_}, v{MB+2*s_}, v19")
    for k in range(8):
        e(f"v_mul_f32 v{PB+k}, v{PB+k}, v{MB}")
        e(f"v_fmac_f32 v{PB+k}, v{PB+8+k}, v{MB+2}")
    for k in range(4):
        e(f"v_cvt_pk_bf16_f32 v{P+k}, v{PB+2*k}, v{PB+2*k+1}")
    perm_mfma(e, KB[0], TMP, O, P, 40, 41, first=True)
    e("s_nop 7")
    e("s_mov_b32 exec_lo, -1")
    e("s_mov_b32 exec_hi, 0")
    for i in range(8):
        for r in range(4):
            e(f"ds_write_b32 v18, v{O+4*i+r} offset:{LDS_O + r*512+i*4}")
    e("s_mov_b64 exec, -1")
    e("s_waitcnt lgkmcnt(0)")
    e("s_branch L_ojoin")
    e.label("L_pub")
    e("s_waitcnt lgkmcnt(0)")
    e("s_barrier")
    e("s_lshl_b32 s17, s16, 3")
    e(f"v_mov_b32 v16, s17")
    e("s_lshl_b32 s17, s16, 9")
    e(f"v_lshl_add_u32 v17, v{VLANE}, 3, s17")
    for w in range(NW):
        e(f"ds_read_b64 {vr(72+2*w,2)}, v16 offset:{LDS_ML + w*32}")
    for w in range(NW):
        e(f"ds_read_b64 {vr(104+2*w,2)}, v17 offset:{LDS_O + w*2048}")
    e("s_waitcnt lgkmcnt(0)")
    e("v_max_f32 v18, v72, v74")
    for w in range(2, NW):
        e(f"v_max_f32 v18, v18, v{72+2*w}")
    e("v_mov_b32 v19, 0")
    e("v_mov_b32 v20, 0")
    e("v_mov_b32 v21, 0")
    for w in range(NW):
        e(f"v_sub_f32 v22, v{72+2*w}, v18")
        e("v_mul_f32 v22, s42, v22")
        e("v_exp_f32 v22, v22")
        e("s_nop 0")
        e(f"v_fmac_f32 v19, v22, v{73+2*w}")
        e(f"v_fmac_f32 v20, v22, v{104+2*w}")
        e(f"v_fmac_f32 v21, v22, v{105+2*w}")
    e("s_lshl_b32 s18, s3, 6")
    e("s_add_u32 s18, s18, s14")
    e("s_lshl_b32 s18, s18, 2")
    e("s_add_u32 s18, s18, s16")
    e(f"s_mul_i32 s19, s18, {NSPLIT*512}")
    e("s_lshl_b32 s36, s15, 9")
    e("s_add_u32 s19, s19, s36")
    e(f"s_add_u32 s19, s19, {WS_O}")
    e(f"v_lshlrev_b32 v22, 3, v{VLANE}")
    e("buffer_store_dwordx2 v[20:21], v22, s[28:31], s19 offen sc1")
    e(f"s_mul_i32 s19, s18, {NSPLIT*8}")
    e("s_lshl_b32 s36, s15, 3")
    e("s_add_u32 s19, s19, s36")
    e(f"s_add_u32 s19, s19, {WS_ML}")
    e("s_mov_b64 exec, 1")
    e(f"buffer_store_dwordx2 v[18:19], v{VZ}, s[28:31], s19 offen sc1")
    e("s_mov_b64 exec, -1")
    e("s_waitcnt vmcnt(0)")
    e("s_barrier")
    stamp(6)
    e("s_cmp_lg_u32 s16, 0")
    e("s_cbranch_scc1 L_pub_np")
    e("s_mov_b64 exec, 1")
    e(f"s_add_u32 s17, s82, {CO}")
    e(f"buffer_atomic_add v{VONE}, v{VZ}, s[60:63], s17 offen")
    e("s_mov_b64 exec, -1")
    poll2(e, "o", 60, "s17", 16, 9, VZ, cfg.SLEEP)
    e(f"s_mov_b32 s17, {CZ}")
    poll2(e, "z", 60, "s17", 8, 9, VZ, cfg.SLEEP)
    stamp(7)
    e.label("L_pub_np")
    e("s_barrier")
    e.label("L_ojoin")
    e("s_barrier")
    stamp(8)
    e("v_lshlrev_b32 v8, 2, v0")
    for u in range(2):
        for w in range(4):
            e(f"ds_read_b32 v{72+4*u+w}, v8 offset:{LDS_O + w*4096+u*2048}")
    e("v_lshrrev_b32 v9, 7, v0")
    e("v_and_b32 v10, 127, v0")
    e("v_lshlrev_b32 v9, 12, v9")
    e("v_lshl_add_u32 v9, v10, 2, v9")
    e("s_lshl_b32 s17, s3, 11")
    e("s_lshl_b32 s18, s95, 9")
    e("s_add_u32 s17, s17, s18")
    e(f"s_add_u32 s17, s17, {WS_ACC}")
    e("s_add_u32 s18, s17, 16384")
    e("s_waitcnt lgkmcnt(0)")
    for u in range(2):
        e(f"v_add_f32 v{72+4*u}, v{72+4*u}, v{73+4*u}")
        e(f"v_add_f32 v{74+4*u}, v{74+4*u}, v{75+4*u}")
    for u in range(2):
        e(f"v_add_f32 v{72+4*u}, v{72+4*u}, v{74+4*u}")
    e("buffer_atomic_add_f32 v72, v9, s[28:31], s17 offen")
    e("buffer_atomic_add_f32 v76, v9, s[28:31], s18 offen")
    e("s_waitcnt vmcnt(0)")
    e("s_barrier")
    stamp(9)
    e("s_cmp_lg_u32 s16, 0")
    e("s_cbranch_scc1 L_fin")
    e("s_lshl_b32 s19, s3, 2")
    e("s_add_u32 s19, s19, s95")
    e("s_lshl_b32 s19, s19, 2")
    e(f"s_add_u32 s19, s19, {CF}")
    e("v_mov_b32 v8, 1")
    e("s_mov_b64 exec, 1")
    e(f"buffer_atomic_add v8, v{VZ}, s[60:63], s19 offen sc0")
    e("s_waitcnt vmcnt(0)")
    e("s_mov_b64 exec, -1")
    e("v_readfirstlane_b32 s19, v8")
    stamp(10)
    e("s_cmp_lg_u32 s19, 31")
    e("s_cbranch_scc1 L_fin")
    e(f"v_lshlrev_b32 v9, 3, v{VLANE}")
    for i in range(16):
        e(f"v_mov_b32 v{72+i}, 0")
    e("s_mov_b32 s18, s17")
    for i in range(8):
        e(f"buffer_atomic_add_f32 v{72+2*i}, v9, s[28:31], s18 offen sc0")
        e(f"buffer_atomic_add_f32 v{73+2*i}, v9, s[28:31], s18 offen offset:4 sc0")
        if i < 7:
            e("s_add_u32 s18, s18, 4096")
    srd(e, 64, 52, 53, 16384)
    e("s_lshl_b32 s18, s3, 10")
    e("s_lshl_b32 s19, s95, 8")
    e("s_add_u32 s18, s18, s19")
    e(f"v_lshlrev_b32 v10, 2, v{VLANE}")
    e("s_waitcnt vmcnt(0)")
    for i in range(8):
        e(f"v_cvt_pk_bf16_f32 v{72+2*i}, v{72+2*i}, v{73+2*i}")
        e(f"buffer_store_dword v{72+2*i}, v10, s[64:67], s18 offen")
        if i < 7:
            e("s_add_u32 s18, s18, 2048")
    stamp(11)
    e.label("L_fin")
    if cfg.STAMP:
        srd(e, 28, 12, 13, 0x800000)
        e("s_lshl_b32 s18, s2, 3")
        e("s_add_u32 s18, s18, s16")
        e("s_lshl_b32 s18, s18, 8")
        e("s_add_u32 s18, s18, 0x400000")
        e(f"v_lshlrev_b32 v9, 2, v{VLANE}")
        e(f"buffer_store_dword v{VST}, v9, s[28:31], s18 offen")
    e.label("L_end")
    e("s_endpgm")
    return name, NV, LDS_TOTAL, NWG

def gen_fused3(e, cfg):
    name = NAME + "_kernel"
    NW, NSPLIT = 8, 2
    NWG = 256
    KEYS_WG = 4096
    NTILE = KEYS_WG // 32
    cscale = (128 ** -0.5) * math.log2(math.e)
    VKO0, VKO1, VVO0, VVO1 = 1, 2, 3, 4
    VM, VL, VMC, VT, VT2, VD = 5, 6, 7, 8, 9, 10
    VLANE = 11
    Q = 12; S = 28; P = 36; O = 40
    KB = [72, 104]; VB = [136, 168]; TMP = 200
    VC, VG, VZ, VST, VTK, VONE = 232, 233, 234, 235, 236, 237
    NV = 238
    LDS_O = 0
    LDS_ML = 16384
    LDS_Q = LDS_ML + 256
    LDS_TK = LDS_Q + 1024
    LDS_TOTAL = LDS_TK + 16
    CQ, CO, CF, CZ = 0, 64, 128, 160
    def stamp(i):
        if cfg.STAMP:
            e("s_memrealtime s[98:99]")
            e("s_waitcnt lgkmcnt(0)")
            e(f"v_writelane_b32 v{VST}, s98, {i}")
    kernel_begin(e, name)
    e(f"s_cmp_ge_u32 s2, {NWG}")
    e("s_cbranch_scc1 L_end")
    if cfg.STAMP:
        e(f"v_mov_b32 v{VST}, 0")
    stamp(0)
    e("s_lshr_b32 s3, s2, 7")
    e("s_lshr_b32 s14, s2, 1")
    e("s_and_b32 s14, s14, 63")
    e("s_and_b32 s15, s2, 1")
    e("s_mul_i32 s4, s3, 40")
    e("s_add_u32 s6, s0, s4")
    e("s_addc_u32 s7, s1, 0")
    e("s_load_dwordx8 s[68:75], s[6:7], 0")
    e("s_load_dwordx2 s[76:77], s[6:7], 32")
    e("s_load_dwordx4 s[52:55], s[0:1], 80")
    e("s_load_dwordx2 s[12:13], s[0:1], 96")
    e(f"v_and_b32 v{VLANE}, 63, v0")
    e("v_lshrrev_b32 v5, 6, v0")
    e("s_nop 0")
    e("v_readfirstlane_b32 s16, v5")
    e(f"v_and_b32 v{VC}, 15, v{VLANE}")
    e(f"v_lshrrev_b32 v{VG}, 4, v{VLANE}")
    e(f"v_mov_b32 v{VZ}, 0")
    e(f"v_mov_b32 v{VONE}, 1")
    e(f"v_and_b32 v8, 3, v{VC}")
    e(f"v_lshrrev_b32 v9, 2, v{VC}")
    e("v_lshl_add_u32 v8, v8, 2, v9")
    e("v_lshlrev_b32 v8, 8, v8")
    e(f"v_lshl_add_u32 v{VKO0}, v{VG}, 4, v8")
    e(f"v_add_u32 v{VKO1}, 0x1000, v{VKO0}")
    e(f"v_lshlrev_b32 v{VVO0}, 4, v{VLANE}")
    e(f"v_add_u32 v{VVO1}, 0x1000, v{VVO0}")
    e("s_mov_b32 s40, 0x05040100")
    e("s_mov_b32 s41, 0x07060302")
    e(f"s_mov_b32 s42, {f2u(cscale):#x}")
    e("s_and_b32 s78, s14, 7")
    e("s_lshr_b32 s79, s14, 3")
    e("s_lshl_b32 s80, s79, 1")
    e("s_add_u32 s80, s80, s15")
    e("s_lshl_b32 s81, s3, 3")
    e("s_add_u32 s81, s81, s78")
    e("s_lshl_b32 s82, s81, 2")
    e("s_lshl_b32 s17, s14, 21")
    e(f"s_mul_i32 s18, s15, {KEYS_WG*256}")
    e("s_add_u32 s17, s17, s18")
    e("s_sub_u32 s44, s16, 4")
    e("s_mov_b32 s45, s16")
    e("s_waitcnt lgkmcnt(0)")
    e("s_add_u32 s8, s70, s17")
    e("s_addc_u32 s9, s71, 0")
    e("s_add_u32 s10, s72, s17")
    e("s_addc_u32 s11, s73, 0")
    srd(e, 20, 8, 9, KEYS_WG * 256)
    srd(e, 24, 10, 11, KEYS_WG * 256)
    srd(e, 28, 12, 13, 0x220000)
    srd(e, 60, 54, 55, 256)
    def loadK(st, soff):
        for T in range(2):
            for j in range(4):
                vo = VKO1 if T else VKO0
                e(f"buffer_load_dwordx4 {vr(KB[st]+16*T+4*j,4)}, v{vo}, s[20:23], {soff} offen offset:{j*64}{cfg.NT}")
    def loadV(st, soff):
        for t in range(8):
            vo = VVO1 if t >= 4 else VVO0
            e(f"buffer_load_dwordx4 {vr(VB[st]+4*t,4)}, v{vo}, s[24:27], {soff} offen offset:{(t&3)*1024}{cfg.NT}")
    def prefetch():
        e("s_lshl_b32 s47, s44, 13")
        loadK(0, "s47"); loadV(0, "s47")
        e("s_lshl_b32 s47, s45, 13")
        loadK(1, "s47"); loadV(1, "s47")
    e("s_cmp_lt_u32 s16, 4")
    e("s_cbranch_scc1 L_qrole")
    prefetch()
    e("s_branch L_qjoin")
    e.label("L_qrole")
    e("s_lshl_b32 s17, s79, 10")
    e("s_add_u32 s18, s68, s17")
    e("s_addc_u32 s19, s69, 0")
    srd(e, 84, 18, 19, 1024)
    srd(e, 88, 74, 75, 4194304)
    e("s_cmp_ge_u32 s2, 8")
    e("s_cbranch_scc1 L_nozero")
    for k in range(4):
        e(f"v_mov_b32 v{S+k}, 0")
    e("v_lshlrev_b32 v8, 4, v0")
    e("s_lshl_b32 s18, s2, 12")
    e(f"s_add_u32 s18, s18, {WS_ACC}")
    e(f"buffer_store_dwordx4 {vr(S,4)}, v8, s[28:31], s18 offen sc1")
    e.label("L_nozero")
    e(f"v_lshlrev_b32 v8, 10, v{VC}")
    e(f"v_lshl_add_u32 v8, v{VG}, 4, v8")
    e(f"v_lshlrev_b32 v9, 16, v{VG}")
    e(f"v_lshl_add_u32 v9, v{VC}, 4, v9")
    e("s_lshl_b32 s17, s78, 10")
    e("s_lshl_b32 s18, s16, 8")
    e("s_add_u32 s17, s17, s18")
    bufs = [KB[0], KB[1], VB[0], VB[1]]
    e(f"s_lshl_b32 s43, s79, 1")
    def qload(T):
        bq = bufs[T & 3]
        e("s_lshl_b32 s18, s43, 6")
        e(f"buffer_load_dwordx4 {vr(Q+4*(T&3),4)}, v8, s[84:87], s18 offen")
        e("s_lshl_b32 s18, s43, 18")
        e("s_add_u32 s18, s18, s17")
        for t in range(8):
            e(f"buffer_load_dwordx4 {vr(bq+4*t,4)}, v9, s[88:91], s18 offen")
            if t < 7:
                e("s_add_u32 s18, s18, 8192")
        e("s_add_u32 s43, s43, 1")
        e("s_and_b32 s43, s43, 15")
    for T in range(4):
        qload(T)
    for T in range(16):
        rem = min(3, 15 - T)
        e(f"s_waitcnt vmcnt({9*rem})")
        perm_mfma(e, bufs[T & 3], TMP, O, Q + 4*(T & 3), 40, 41, first=(T == 0))
        if T + 4 < 16:
            qload(T + 4)
    stamp(1)
    e("s_nop 7")
    for k in range(4):
        e(f"v_cvt_pk_bf16_f32 v{S+k}, v{O+8*k}, v{O+8*k+4}")
    e(f"v_lshlrev_b32 v8, 4, v{VLANE}")
    e("s_lshl_b32 s18, s16, 8")
    e("v_add_u32 v8, s18, v8")
    e("s_mov_b64 exec, 0xffff")
    e(f"ds_write_b128 v8, {vr(S,4)} offset:{LDS_Q}")
    e("s_mov_b64 exec, 1")
    e("v_mov_b32 v9, 8")
    e(f"ds_write_b32 v{VZ}, v9 offset:{LDS_TK}")
    e("s_mov_b64 exec, -1")
    e("s_waitcnt lgkmcnt(0)")
    e.label("L_qjoin")
    e("s_barrier")
    stamp(4)
    e("s_cmp_ge_u32 s2, 8")
    e("s_cbranch_scc1 L_nozero2")
    e("s_cmp_lg_u32 s16, 0")
    e("s_cbranch_scc1 L_nozero2")
    e("s_mov_b64 exec, 1")
    e(f"buffer_atomic_add v{VONE}, v{VZ}, s[60:63], 0 offen offset:{CZ}")
    e("s_mov_b64 exec, -1")
    e("s_waitcnt vmcnt(0)")
    e.label("L_nozero2")
    e("s_lshr_b32 s94, s80, 2")
    e("s_lshl_b32 s93, s78, 2")
    e("s_add_u32 s94, s94, s93")
    e("s_and_b32 s95, s80, 3")
    e("s_cmp_lt_u32 s16, 4")
    e("s_cbranch_scc1 L_helper")
    for i in range(32):
        e(f"v_mov_b32 v{O+i}, 0")
    for i in range(16):
        e(f"v_mov_b32 v{Q+i}, 0")
    e(f"v_lshlrev_b32 v8, 8, v{VC}")
    e(f"v_lshl_add_u32 v8, v{VG}, 4, v8")
    e(f"v_cmp_gt_u32 vcc, 4, v{VC}")
    e("s_and_saveexec_b64 s[34:35], vcc")
    for j in range(4):
        e(f"ds_read_b128 {vr(Q+4*j,4)}, v8 offset:{LDS_Q + j*64}")
    e("s_mov_b64 exec, s[34:35]")
    e(f"v_mov_b32 v{VM}, 0xff800000")
    e(f"v_mov_b32 v{VL}, 0")
    e(f"v_mov_b32 v{VMC}, 0")
    e("s_waitcnt lgkmcnt(0)")
    e("s_mov_b32 s97, 0")
    e.label("L_loop")
    for st in range(2):
        K, V = KB[st], VB[st]
        tk = 44 + st
        e(f"s_cmp_ge_u32 s{tk}, {NTILE}")
        e("s_cbranch_scc1 L_loopend")
        if cfg.STAMP:
            e("s_add_u32 s97, s97, 1")
        e("s_mov_b64 exec, 1")
        e(f"ds_add_rtn_u32 v{VTK}, v{VZ}, v{VONE} offset:{LDS_TK}")
        e("s_mov_b64 exec, -1")
        e("s_waitcnt vmcnt(24)")
        for j in range(4):
            for T in range(2):
                c = "0" if j == 0 else vr(S+4*T, 4)
                e(f"v_mfma_f32_16x16x32_bf16 {vr(S+4*T,4)}, {vr(K+16*T+4*j,4)}, {vr(Q+4*j,4)}, {c}")
        e("s_waitcnt lgkmcnt(0)")
        e(f"v_readfirstlane_b32 s{tk}, v{VTK}")
        e(f"s_lshl_b32 s47, s{tk}, 13")
        e(f"s_cmp_ge_u32 s{tk}, {NTILE}")
        e("s_cselect_b32 s47, 0x40000000, s47")
        loadK(st, "s47")
        e(f"v_max3_f32 v{VT}, v{S}, v{S+1}, v{S+2}")
        e(f"v_max3_f32 v{VT}, v{VT}, v{S+3}, v{S+4}")
        e(f"v_max3_f32 v{VT}, v{VT}, v{S+5}, v{S+6}")
        e(f"v_max3_f32 v{VT}, v{VT}, v{S+7}, v{VM}")
        e(f"v_mov_b32 v{VT2}, v{VT}")
        e("s_nop 1")
        e(f"v_permlane16_swap_b32 v{VT}, v{VT2}")
        e("s_nop 0")
        e(f"v_max_f32 v{VT}, v{VT}, v{VT2}")
        e(f"v_mov_b32 v{VT2}, v{VT}")
        e("s_nop 1")
        e(f"v_permlane32_swap_b32 v{VT}, v{VT2}")
        e("s_nop 0")
        e(f"v_max_f32 v{VT}, v{VT}, v{VT2}")
        e(f"v_cmp_gt_f32 vcc, v{VT}, v{VM}")
        e(f"s_cbranch_vccz L_skip{st}")
        e(f"v_sub_f32 v{VD}, v{VM}, v{VT}")
        e(f"v_mul_f32 v{VD}, s42, v{VD}")
        e(f"v_exp_f32 v{VD}, v{VD}")
        e(f"v_mov_b32 v{VM}, v{VT}")
        e(f"v_mul_f32 v{VMC}, s42, v{VT}")
        e(f"v_mul_f32 v{VL}, v{VL}, v{VD}")
        for h in range(4):
            e(f"v_readlane_b32 s{48+h}, v{VD}, {h}")
        e("s_nop 1")
        for i in range(8):
            for r in range(4):
                e(f"v_mul_f32 v{O+4*i+r}, s{48+r}, v{O+4*i+r}")
        e.label(f"L_skip{st}")
        for i in range(8):
            e(f"v_fma_f32 v{S+i}, v{S+i}, s42, -v{VMC}")
        for i in range(8):
            e(f"v_exp_f32 v{S+i}, v{S+i}")
        e("s_nop 0")
        e(f"v_add_f32 v{VT}, v{S}, v{S+1}")
        e(f"v_add_f32 v{VT2}, v{S+2}, v{S+3}")
        e(f"v_add_f32 v{VD}, v{S+4}, v{S+5}")
        e(f"v_add_f32 v{VL}, v{VL}, v{VT}")
        e(f"v_add_f32 v{VT}, v{S+6}, v{S+7}")
        e(f"v_add_f32 v{VT2}, v{VT2}, v{VD}")
        e(f"v_add_f32 v{VL}, v{VL}, v{VT}")
        e(f"v_add_f32 v{VL}, v{VL}, v{VT2}")
        for k in range(4):
            e(f"v_cvt_pk_bf16_f32 v{P+k}, v{S+2*k}, v{S+2*k+1}")
        e("s_waitcnt vmcnt(24)")
        perm_mfma(e, V, TMP, O, P, 40, 41)
        loadV(st, "s47")
    e("s_branch L_loop")
    e.label("L_loopend")
    stamp(5)
    if cfg.STAMP:
        e(f"v_writelane_b32 v{VST}, s97, 12")
    e(f"v_mov_b32 v{VT}, v{VL}")
    e(f"v_mov_b32 v{VT2}, v{VL}")
    e("s_nop 1")
    e(f"v_permlane16_swap_b32 v{VT}, v{VT2}")
    e("s_nop 0")
    e(f"v_add_f32 v{VT}, v{VT}, v{VT2}")
    e(f"v_mov_b32 v{VT2}, v{VT}")
    e("s_nop 1")
    e(f"v_permlane32_swap_b32 v{VT}, v{VT2}")
    e("s_nop 0")
    e(f"v_add_f32 v{VT2}, v{VT}, v{VT2}")
    e(f"v_mov_b32 v{VT}, v{VM}")
    e("s_sub_u32 s96, s16, 4")
    e(f"v_lshlrev_b32 v12, 3, v{VLANE}")
    e("s_lshl_b32 s18, s96, 5")
    e(f"s_add_u32 s18, s18, {LDS_ML}")
    e("v_add_u32 v12, s18, v12")
    e(f"v_lshlrev_b32 v13, 5, v{VLANE}")
    e("s_lshl_b32 s18, s96, 11")
    e("v_add_u32 v13, s18, v13")
    e("s_mov_b64 exec, 0xf")
    e(f"ds_write_b64 v12, v[{VT}:{VT2}]")
    e("s_mov_b64 exec, 0xffff")
    for i in range(8):
        for r in range(4):
            e(f"ds_write_b32 v13, v{O+4*i+r} offset:{LDS_O + r*512 + i*4}")
    e("s_mov_b64 exec, -1")
    e("s_waitcnt vmcnt(0) lgkmcnt(0)")
    e("s_barrier")
    e("s_barrier")
    e("s_barrier")
    e("s_branch L_ojoin")
    e.label("L_helper")
    srd(e, 88, 76, 77, 4194304)
    e("s_lshl_b32 s17, s94, 7")
    e("s_lshl_b32 s18, s16, 5")
    e("s_add_u32 s17, s17, s18")
    e(f"v_lshl_add_u32 v14, v{VG}, 3, s17")
    e("v_lshlrev_b32 v14, 10, v14")
    e(f"v_lshl_add_u32 v14, v{VC}, 4, v14")
    e("s_lshl_b32 s17, s95, 8")
    e("v_add_u32 v14, s17, v14")
    e("v_add_u32 v15, 0x1000, v14")
    for t in range(8):
        vo = 15 if t >= 4 else 14
        e(f"buffer_load_dwordx4 {vr(VB[0]+4*t,4)}, v{vo}, s[88:91], 0 offen offset:{(t&3)*1024}")
    OP_P = 8 * 32 * NSPLIT * 512
    ML_P = 8 * 32 * NSPLIT * 8
    e(f"s_mul_i32 s17, s3, {OP_P}")
    e(f"s_add_u32 s17, s17, {WS_O}")
    e("s_add_u32 s18, s12, s17")
    e("s_addc_u32 s19, s13, 0")
    srd(e, 84, 18, 19, OP_P)
    e(f"s_mul_i32 s17, s3, {ML_P}")
    e(f"s_add_u32 s17, s17, {WS_ML}")
    e("s_add_u32 s18, s12, s17")
    e("s_addc_u32 s19, s13, 0")
    srd(e, 56, 18, 19, ML_P)
    e(f"v_mul_u32_u24 v24, {32*NSPLIT*512}, v{VC}")
    e("s_lshl_b32 s17, s16, 7")
    e("v_add_u32 v24, s17, v24")
    e(f"v_lshl_add_u32 v24, v{VG}, 5, v24")
    e(f"v_mul_u32_u24 v25, {32*NSPLIT*8}, v{VC}")
    e("s_lshl_b32 s18, s16, 12")
    e(f"v_lshl_add_u32 v26, v{VG}, 11, s18")
    e(f"v_lshl_add_u32 v26, v{VC}, 5, v26")
    e("s_lshl_b32 s17, s16, 3")
    e(f"v_mov_b32 v16, s17")
    e("s_lshl_b32 s17, s16, 9")
    e(f"v_lshl_add_u32 v17, v{VLANE}, 3, s17")
    e("s_lshl_b32 s18, s3, 6")
    e("s_add_u32 s18, s18, s14")
    e("s_lshl_b32 s18, s18, 2")
    e("s_add_u32 s18, s18, s16")
    e(f"s_mul_i32 s19, s18, {NSPLIT*512}")
    e("s_lshl_b32 s36, s15, 9")
    e("s_add_u32 s19, s19, s36")
    e(f"s_add_u32 s19, s19, {WS_O}")
    e(f"s_mul_i32 s37, s18, {NSPLIT*8}")
    e("s_lshl_b32 s36, s15, 3")
    e("s_add_u32 s37, s37, s36")
    e(f"s_add_u32 s37, s37, {WS_ML}")
    e(f"v_lshlrev_b32 v23, 3, v{VLANE}")
    e("s_waitcnt vmcnt(0)")
    e("s_barrier")
    NS = 4
    for w in range(NS):
        e(f"ds_read_b64 {vr(72+2*w,2)}, v16 offset:{LDS_ML + w*32}")
    for w in range(NS):
        e(f"ds_read_b64 {vr(104+2*w,2)}, v17 offset:{LDS_O + w*2048}")
    e("s_waitcnt lgkmcnt(0)")
    e("v_max_f32 v18, v72, v74")
    for w in range(2, NS):
        e(f"v_max_f32 v18, v18, v{72+2*w}")
    e("v_mov_b32 v19, 0")
    e("v_mov_b32 v20, 0")
    e("v_mov_b32 v21, 0")
    for w in range(NS):
        e(f"v_sub_f32 v22, v{72+2*w}, v18")
        e("v_mul_f32 v22, s42, v22")
        e("v_exp_f32 v22, v22")
        e("s_nop 0")
        e(f"v_fmac_f32 v19, v22, v{73+2*w}")
        e(f"v_fmac_f32 v20, v22, v{104+2*w}")
        e(f"v_fmac_f32 v21, v22, v{105+2*w}")
    e("buffer_store_dwordx2 v[20:21], v23, s[28:31], s19 offen sc1")
    e("s_mov_b64 exec, 1")
    e(f"buffer_store_dwordx2 v[18:19], v{VZ}, s[28:31], s37 offen sc1")
    e("s_mov_b64 exec, -1")
    e("s_waitcnt vmcnt(0)")
    e("s_barrier")
    stamp(6)
    e("s_cmp_lg_u32 s16, 0")
    e("s_cbranch_scc1 L_pub_np")
    e("s_mov_b64 exec, 1")
    e(f"s_add_u32 s17, s82, {CO}")
    e(f"buffer_atomic_add v{VONE}, v{VZ}, s[60:63], s17 offen")
    e("s_mov_b64 exec, -1")
    poll2(e, "o", 60, "s17", 16, 9, VZ, cfg.SLEEP)
    e(f"s_mov_b32 s17, {CZ}")
    poll2(e, "z", 60, "s17", 8, 9, VZ, cfg.SLEEP)
    stamp(7)
    e.label("L_pub_np")
    e("s_barrier")
    PB = KB[1]
    MB = PB + 16
    e(f"s_mul_i32 s17, s94, {NSPLIT*512}")
    for s_ in range(NSPLIT):
        e(f"buffer_load_dwordx4 {vr(PB+8*s_,4)}, v24, s[84:87], s17 offen offset:{s_*512} sc1")
        e(f"buffer_load_dwordx4 {vr(PB+8*s_+4,4)}, v24, s[84:87], s17 offen offset:{s_*512+16} sc1")
    e(f"s_mul_i32 s17, s94, {NSPLIT*8}")
    e(f"buffer_load_dwordx4 {vr(MB,4)}, v25, s[56:59], s17 offen sc1")
    e("s_waitcnt vmcnt(0)")
    e(f"v_max_f32 v19, v{MB}, v{MB+2}")
    for s_ in range(NSPLIT):
        e(f"v_sub_f32 v{MB+2*s_}, v{MB+2*s_}, v19")
        e(f"v_mul_f32 v{MB+2*s_}, s42, v{MB+2*s_}")
        e(f"v_exp_f32 v{MB+2*s_}, v{MB+2*s_}")
    e("s_nop 0")
    e(f"v_mul_f32 v19, v{MB}, v{MB+1}")
    e(f"v_fmac_f32 v19, v{MB+2}, v{MB+3}")
    e("v_rcp_f32 v19, v19")
    e("s_nop 0")
    for s_ in range(NSPLIT):
        e(f"v_mul_f32 v{MB+2*s_}, v{MB+2*s_}, v19")
    for k in range(8):
        e(f"v_mul_f32 v{PB+k}, v{PB+k}, v{MB}")
        e(f"v_fmac_f32 v{PB+k}, v{PB+8+k}, v{MB+2}")
    for k in range(4):
        e(f"v_cvt_pk_bf16_f32 v{P+k}, v{PB+2*k}, v{PB+2*k+1}")
    perm_mfma(e, VB[0], TMP, O, P, 40, 41, first=True)
    e("s_nop 7")
    e("s_mov_b32 exec_lo, -1")
    e("s_mov_b32 exec_hi, 0")
    for i in range(8):
        for r in range(4):
            e(f"ds_write_b32 v26, v{O+4*i+r} offset:{LDS_O + r*512+i*4}")
    e("s_mov_b64 exec, -1")
    e("s_waitcnt lgkmcnt(0)")
    e.label("L_ojoin")
    e("s_barrier")
    stamp(8)
    e("v_lshlrev_b32 v8, 2, v0")
    for u in range(2):
        for w in range(4):
            e(f"ds_read_b32 v{72+4*u+w}, v8 offset:{LDS_O + w*4096+u*2048}")
    e("v_lshrrev_b32 v9, 7, v0")
    e("v_and_b32 v10, 127, v0")
    e("v_lshlrev_b32 v9, 12, v9")
    e("v_lshl_add_u32 v9, v10, 2, v9")
    e("s_lshl_b32 s17, s3, 11")
    e("s_lshl_b32 s18, s95, 9")
    e("s_add_u32 s17, s17, s18")
    e(f"s_add_u32 s17, s17, {WS_ACC}")
    e("s_add_u32 s18, s17, 16384")
    e("s_waitcnt lgkmcnt(0)")
    for u in range(2):
        e(f"v_add_f32 v{72+4*u}, v{72+4*u}, v{73+4*u}")
        e(f"v_add_f32 v{74+4*u}, v{74+4*u}, v{75+4*u}")
    for u in range(2):
        e(f"v_add_f32 v{72+4*u}, v{72+4*u}, v{74+4*u}")
    e("buffer_atomic_add_f32 v72, v9, s[28:31], s17 offen")
    e("buffer_atomic_add_f32 v76, v9, s[28:31], s18 offen")
    e("s_waitcnt vmcnt(0)")
    e("s_barrier")
    stamp(9)
    e("s_cmp_lg_u32 s16, 0")
    e("s_cbranch_scc1 L_fin")
    e("s_lshl_b32 s19, s3, 2")
    e("s_add_u32 s19, s19, s95")
    e("s_lshl_b32 s19, s19, 2")
    e(f"s_add_u32 s19, s19, {CF}")
    e("v_mov_b32 v8, 1")
    e("s_mov_b64 exec, 1")
    e(f"buffer_atomic_add v8, v{VZ}, s[60:63], s19 offen sc0")
    e("s_waitcnt vmcnt(0)")
    e("s_mov_b64 exec, -1")
    e("v_readfirstlane_b32 s19, v8")
    stamp(10)
    e("s_cmp_lg_u32 s19, 31")
    e("s_cbranch_scc1 L_fin")
    e(f"v_lshlrev_b32 v9, 3, v{VLANE}")
    for i in range(16):
        e(f"v_mov_b32 v{72+i}, 0")
    e("s_mov_b32 s18, s17")
    for i in range(8):
        e(f"buffer_atomic_add_f32 v{72+2*i}, v9, s[28:31], s18 offen sc0")
        e(f"buffer_atomic_add_f32 v{73+2*i}, v9, s[28:31], s18 offen offset:4 sc0")
        if i < 7:
            e("s_add_u32 s18, s18, 4096")
    srd(e, 64, 52, 53, 16384)
    e("s_lshl_b32 s18, s3, 10")
    e("s_lshl_b32 s19, s95, 8")
    e("s_add_u32 s18, s18, s19")
    e(f"v_lshlrev_b32 v10, 2, v{VLANE}")
    e("s_waitcnt vmcnt(0)")
    for i in range(8):
        e(f"v_cvt_pk_bf16_f32 v{72+2*i}, v{72+2*i}, v{73+2*i}")
        e(f"buffer_store_dword v{72+2*i}, v10, s[64:67], s18 offen")
        if i < 7:
            e("s_add_u32 s18, s18, 2048")
    stamp(11)
    e.label("L_fin")
    if cfg.STAMP:
        srd(e, 28, 12, 13, 0x800000)
        e("s_lshl_b32 s18, s2, 3")
        e("s_add_u32 s18, s18, s16")
        e("s_lshl_b32 s18, s18, 8")
        e("s_add_u32 s18, s18, 0x400000")
        e(f"v_lshlrev_b32 v9, 2, v{VLANE}")
        e(f"buffer_store_dword v{VST}, v9, s[28:31], s18 offen")
    e.label("L_end")
    e("s_endpgm")
    return name, NV, LDS_TOTAL, NWG

def main():
    cfg = Cfg()
    out = f"cdna_kernels/{NAME}.s"
    for a in sys.argv[1:]:
        if "=" in a:
            k, v = a.split("=", 1)
            if k == "out":
                out = v
            elif k == "NT":
                cfg.NT = " " + v if v else ""
            else:
                setattr(cfg, k, int(v))
    e = Emitter()
    e.raw('.amdgcn_target "amdgcn-amd-amdhsa--gfx950"')
    e.raw(".text")
    if cfg.FUSED:
        n, nv, lds, nwg = {1: gen_fused, 2: gen_fused2, 3: gen_fused3}[cfg.FUSED](e, cfg)
        e.raw('.section .rodata,"a"')
        e.raw(".p2align 6")
        kernel_desc(e, n, nv)
        hdr = HEADER + f"; @launch grid=({nwg},1,1) block=(512,1,1) lds={lds}\n"
        open(out, "w").write(hdr + e.text())
        return
    n1, nv1 = gen_qproj(e)
    n2, nv2, lds2, nwg2 = gen_attn(e, cfg)
    n3, nv3 = gen_oproj(e, cfg)
    e.raw('.section .rodata,"a"')
    for n, nv in ((n1, nv1), (n2, nv2), (n3, nv3)):
        e.raw(".p2align 6")
        kernel_desc(e, n, nv)
    hdr = HEADER
    hdr += f"; @launch kernel={n1} grid=(256,1,1) block=(256,1,1) lds=16384\n"
    hdr += f"; @launch kernel={n2} grid=({nwg2},1,1) block=({cfg.NW*64},1,1) lds={lds2}\n"
    hdr += f"; @launch kernel={n3} grid=(256,1,1) block=(256,1,1) lds=16384\n"
    open(out, "w").write(hdr + e.text())

main()
```

```python
import sys, math, struct

NAME = "concat_heads__gqa_block_cached__gqa_block_cached__decode"

def f2u(f):
    return struct.unpack("<I", struct.pack("<f", f))[0]

class Cfg:
    NW = 8
    NSPLIT = 2
    NT = ""
    FUSED = 0
    PRE = 0
    KCONTIG = 0
    HB = 0
    THR = 0
    SLEEP = 8
    STAMP = 0
    INTERLEAVE = 0

WS_Q = 0x000000
WS_O = 0x100000
WS_ML = 0x200000
WS_ACC = 0x210000

HEADER = """; Kernarg layout for this problem (104 bytes, ptrs only, base s[0:1]):
;   offset  80: d_out     shape=(8, 1, 1024) dtype=bfloat16 (2 bytes/elem)
"""

class Emitter:
    def __init__(self):
        self.lines = []
    def __call__(self, s):
        if s.startswith("buffer_") and "offset:" in s:
            o = int(s.split("offset:")[1].split()[0])
            assert 0 <= o <= 4095, s
        if s.startswith("ds_") and "offset:" in s:
            o = int(s.split("offset:")[1].split()[0])
            assert 0 <= o <= 65535, s
        self.lines.append("    " + s)
    def label(self, s):
        self.lines.append(s + ":")
    def raw(self, s):
        self.lines.append(s)
    def text(self):
        return "\n".join(self.lines) + "\n"

def vr(b, n):
    return f"v[{b}:{b+n-1}]" if n > 1 else f"v{b}"

def kernel_begin(e, name):
    e.raw(f".globl {name}")
    e.raw(".p2align 8")
    e.raw(f".type {name},@function")
    e.label(name)

def kernel_desc(e, name, nv, ns=102):
    acc = (nv + 3) // 4 * 4
    e.raw(f".amdhsa_kernel {name}")
    e.raw(f"  .amdhsa_next_free_vgpr {nv}")
    e.raw(f"  .amdhsa_next_free_sgpr {ns}")
    e.raw(f"  .amdhsa_accum_offset {acc}")
    e.raw("  .amdhsa_group_segment_fixed_size 0")
    e.raw("  .amdhsa_kernarg_size 104")
    e.raw("  .amdhsa_user_sgpr_count 2")
    e.raw("  .amdhsa_user_sgpr_kernarg_segment_ptr 1")
    e.raw("  .amdhsa_system_sgpr_workgroup_id_x 1")
    e.raw("  .amdhsa_float_denorm_mode_32 3")
    e.raw(".end_amdhsa_kernel")

def srd(e, d, ptr_lo, ptr_hi, nbytes):
    e(f"s_mov_b32 s{d}, s{ptr_lo}")
    e(f"s_and_b32 s{d+1}, s{ptr_hi}, 0xffff")
    e(f"s_mov_b32 s{d+2}, {nbytes}")
    e(f"s_mov_b32 s{d+3}, 0x00020000")

def perm_mfma(e, src, tmp, acc, afrag, selLo, selHi, first=False):
    for i in range(8):
        w = i >> 1
        sel = selHi if (i & 1) else selLo
        for tp in range(4):
            a = src + 4 * (2 * tp) + w
            b = src + 4 * (2 * tp + 1) + w
            e(f"v_perm_b32 v{tmp + 4*i + tp}, v{b}, v{a}, s{sel}")
        if i >= 1:
            j = i - 1
            c = "0" if first else vr(acc + 4*j, 4)
            e(f"v_mfma_f32_16x16x32_bf16 {vr(acc+4*j,4)}, {vr(afrag,4)}, {vr(tmp+4*j,4)}, {c}")
    e("s_nop 1")
    j = 7
    c = "0" if first else vr(acc + 4*j, 4)
    e(f"v_mfma_f32_16x16x32_bf16 {vr(acc+4*j,4)}, {vr(afrag,4)}, {vr(tmp+4*j,4)}, {c}")

def gen_qproj(e):
    name = "qproj_kernel"
    kernel_begin(e, name)
    e("s_cmp_ge_u32 s2, 256")
    e("s_cbranch_scc1 L_q_end")
    e("s_lshr_b32 s3, s2, 7")
    e("s_mul_i32 s4, s3, 40")
    e("s_add_u32 s6, s0, s4")
    e("s_addc_u32 s7, s1, 0")
    e("s_load_dwordx2 s[8:9], s[6:7], 0")
    e("s_load_dwordx2 s[10:11], s[6:7], 24")
    e("s_load_dwordx2 s[12:13], s[0:1], 96")
    e("s_lshr_b32 s14, s2, 2")
    e("s_and_b32 s14, s14, 31")
    e("s_and_b32 s15, s2, 3")
    e("v_and_b32 v1, 63, v0")
    e("v_lshrrev_b32 v2, 6, v0")
    e("v_and_b32 v3, 15, v1")
    e("v_lshrrev_b32 v4, 4, v1")
    e("s_lshl_b32 s16, s15, 7")
    e("v_lshl_add_u32 v5, v2, 5, s16")
    e("v_lshl_add_u32 v5, v4, 3, v5")
    e("s_mov_b32 s40, 0x05040100")
    e("s_mov_b32 s41, 0x07060302")
    for t in range(1, 8):
        e(f"s_mov_b32 s{41+t}, {t*8192}")
    e("s_waitcnt lgkmcnt(0)")
    srd(e, 20, 8, 9, 8192)
    srd(e, 24, 10, 11, 4194304)
    srd(e, 28, 12, 13, 0x220000)
    e("v_lshlrev_b32 v6, 10, v3")
    e("v_lshl_add_u32 v6, v5, 1, v6")
    e("buffer_load_dwordx4 v[12:15], v6, s[20:23], 0 offen")
    e("v_lshlrev_b32 v7, 13, v5")
    e("v_lshl_add_u32 v7, v3, 4, v7")
    e("s_lshl_b32 s17, s14, 8")
    e("v_add_u32 v7, s17, v7")
    for t in range(8):
        so = "0" if t == 0 else f"s{41+t}"
        e(f"buffer_load_dwordx4 {vr(16+4*t,4)}, v7, s[24:27], {so} offen")
    e("s_cmp_ge_u32 s2, 8")
    e("s_cbranch_scc1 L_q_nozero")
    e("v_mov_b32 v8, 0")
    e("v_mov_b32 v9, 0")
    e("v_mov_b32 v10, 0")
    e("v_mov_b32 v11, 0")
    e("s_lshl_b32 s18, s2, 12")
    e(f"s_add_u32 s18, s18, {WS_ACC}")
    e("v_lshlrev_b32 v5, 4, v0")
    e("buffer_store_dwordx4 v[8:11], v5, s[28:31], s18 offen")
    e.label("L_q_nozero")
    e("s_waitcnt vmcnt(0)")
    perm_mfma(e, 16, 48, 80, 12, 40, 41, first=True)
    e("v_lshlrev_b32 v5, 12, v2")
    e("v_lshl_add_u32 v5, v4, 11, v5")
    e("v_lshl_add_u32 v5, v3, 5, v5")
    e("s_nop 7")
    e("s_mov_b64 s[34:35], exec")
    e("s_mov_b32 exec_lo, -1")
    e("s_mov_b32 exec_hi, 0")
    for i in range(8):
        for r in range(4):
            e(f"ds_write_b32 v5, v{80+4*i+r} offset:{r*512+i*4}")
    e("s_mov_b64 exec, s[34:35]")
    e("s_waitcnt lgkmcnt(0)")
    e("s_barrier")
    e("v_lshlrev_b32 v5, 4, v0")
    for w in range(4):
        e(f"ds_read_b128 {vr(16+4*w,4)}, v5 offset:{w*4096}")
    e("s_waitcnt lgkmcnt(0)")
    for k in range(4):
        e(f"v_add_f32 v{16+k}, v{16+k}, v{20+k}")
        e(f"v_add_f32 v{24+k}, v{24+k}, v{28+k}")
    for k in range(4):
        e(f"v_add_f32 v{16+k}, v{16+k}, v{24+k}")
    e("v_lshrrev_b32 v6, 5, v0")
    e("v_and_b32 v7, 31, v0")
    e("v_lshlrev_b32 v6, 14, v6")
    e("v_lshl_add_u32 v6, v7, 4, v6")
    e("s_lshl_b32 s18, s15, 1")
    e("s_add_u32 s18, s18, s3")
    e("s_lshl_b32 s18, s18, 17")
    e("s_lshl_b32 s19, s14, 9")
    e("s_add_u32 s18, s18, s19")
    e(f"s_add_u32 s18, s18, {WS_Q}")
    e("buffer_store_dwordx4 v[16:19], v6, s[28:31], s18 offen")
    e.label("L_q_end")
    e("s_endpgm")
    return name, 112

def gen_attn(e, cfg):
    name = "attn_kernel"
    NW, NSPLIT = cfg.NW, cfg.NSPLIT
    NWG = 128 * NSPLIT
    KEYS_WG = 8192 // NSPLIT
    KEYS_W = KEYS_WG // NW
    NIT = KEYS_W // 32
    assert NIT % 2 == 0
    cscale = (128 ** -0.5) * math.log2(math.e)
    VKO0, VKO1, VVO0, VVO1 = 1, 2, 3, 4
    VM, VL, VMC, VT, VT2, VD = 5, 6, 7, 8, 9, 10
    Q = 12
    S = 28
    P = 36
    O = 40
    KB = [72, 104]
    VB = [136, 168]
    TMP = 200
    NV = 232
    LDS_O = 0
    LDS_ML = NW * 2048
    LDS_Q = LDS_ML + NW * 32
    LDS_TOTAL = LDS_Q + 1024
    kernel_begin(e, name)
    e(f"s_cmp_ge_u32 s2, {NWG}")
    e("s_cbranch_scc1 L_a_end")
    lg = int(math.log2(NSPLIT))
    e(f"s_lshr_b32 s3, s2, {6+lg}")
    e(f"s_lshr_b32 s14, s2, {lg}")
    e("s_and_b32 s14, s14, 63")
    e(f"s_and_b32 s15, s2, {NSPLIT-1}")
    e("s_mul_i32 s4, s3, 40")
    e("s_add_u32 s6, s0, s4")
    e("s_addc_u32 s7, s1, 0")
    e("s_load_dwordx4 s[8:11], s[6:7], 8")
    e("s_load_dwordx2 s[12:13], s[0:1], 96")
    e("v_and_b32 v11, 63, v0")
    e("v_lshrrev_b32 v5, 6, v0")
    e("s_nop 0")
    e("v_readfirstlane_b32 s16, v5")
    e("v_and_b32 v6, 15, v11")
    e("v_lshrrev_b32 v7, 4, v11")
    e("v_and_b32 v8, 3, v6")
    e("v_lshrrev_b32 v9, 2, v6")
    e("v_lshl_add_u32 v8, v8, 2, v9")
    e("v_lshlrev_b32 v8, 8, v8")
    e(f"v_lshl_add_u32 v{VKO0}, v7, 4, v8")
    e(f"v_add_u32 v{VKO1}, 0x1000, v{VKO0}")
    e(f"v_lshlrev_b32 v{VVO0}, 4, v11")
    e(f"v_add_u32 v{VVO1}, 0x1000, v{VVO0}")
    e("s_mov_b32 s40, 0x05040100")
    e("s_mov_b32 s41, 0x07060302")
    e(f"s_mov_b32 s42, {f2u(cscale):#x}")
    e("s_lshl_b32 s17, s14, 21")
    e(f"s_mul_i32 s18, s15, {KEYS_WG*256}")
    e("s_add_u32 s17, s17, s18")
    e("s_waitcnt lgkmcnt(0)")
    e("s_add_u32 s8, s8, s17")
    e("s_addc_u32 s9, s9, 0")
    e("s_add_u32 s10, s10, s17")
    e("s_addc_u32 s11, s11, 0")
    srd(e, 20, 8, 9, KEYS_WG * 256)
    srd(e, 24, 10, 11, KEYS_WG * 256)
    srd(e, 28, 12, 13, 0x220000)
    e("s_lshl_b32 s18, s14, 11")
    e("s_lshl_b32 s19, s3, 17")
    e("s_add_u32 s18, s18, s19")
    e(f"s_add_u32 s18, s18, {WS_Q}")
    nq = 512 // (NW * 64)
    assert nq >= 1
    e("v_lshlrev_b32 v8, 2, v0")
    qt = TMP
    for ks in range(4):
        for u in range(nq):
            e(f"buffer_load_dword v{qt + ks*nq + u}, v8, s[28:31], s18 offen offset:{u*NW*64*4}")
        if ks < 3:
            e("s_add_u32 s18, s18, 0x40000")
    if cfg.INTERLEAVE:
        e("s_lshl_b32 s44, s16, 13")
        step = NW * 8192
    else:
        e(f"s_mul_i32 s44, s16, {KEYS_W*256}")
        step = 8192
    def loadK(st, soff):
        for T in range(2):
            for j in range(4):
                vo = VKO1 if T else VKO0
                e(f"buffer_load_dwordx4 {vr(KB[st]+16*T+4*j,4)}, v{vo}, s[20:23], {soff} offen offset:{j*64}{cfg.NT}")
    def loadV(st, soff):
        for t in range(8):
            vo = VVO1 if t >= 4 else VVO0
            e(f"buffer_load_dwordx4 {vr(VB[st]+4*t,4)}, v{vo}, s[24:27], {soff} offen offset:{(t&3)*1024}{cfg.NT}")
    loadK(0, "s44"); loadV(0, "s44")
    e(f"s_add_u32 s45, s44, {step}")
    loadK(1, "s45"); loadV(1, "s45")
    e(f"s_add_u32 s44, s45, {step}")
    for i in range(32):
        e(f"v_mov_b32 v{O+i}, 0")
    for i in range(16):
        e(f"v_mov_b32 v{Q+i}, 0")
    e("s_waitcnt vmcnt(32)")
    for u in range(nq):
        e(f"v_add_f32 v{qt+u}, v{qt+u}, v{qt+nq+u}")
        e(f"v_add_f32 v{qt+2*nq+u}, v{qt+2*nq+u}, v{qt+3*nq+u}")
        e(f"v_add_f32 v{qt+u}, v{qt+u}, v{qt+2*nq+u}")
        e(f"v_cvt_pk_bf16_f32 v{qt+u}, v{qt+u}, v{qt+u}")
    e("v_lshlrev_b32 v8, 1, v0")
    for u in range(nq):
        e(f"ds_write_b16 v8, v{qt+u} offset:{LDS_Q + u*NW*64*2}")
    e("s_waitcnt lgkmcnt(0)")
    e("s_barrier")
    e("v_lshlrev_b32 v8, 8, v6")
    e("v_lshl_add_u32 v8, v7, 4, v8")
    e("v_cmp_gt_u32 vcc, 4, v6")
    e("s_and_saveexec_b64 s[34:35], vcc")
    for j in range(4):
        e(f"ds_read_b128 {vr(Q+4*j,4)}, v8 offset:{LDS_Q + j*64}")
    e("s_mov_b64 exec, s[34:35]")
    e(f"s_mov_b32 s46, {NIT//2}")
    e(f"v_mov_b32 v{VM}, 0xff800000")
    e(f"v_mov_b32 v{VL}, 0")
    e(f"v_mov_b32 v{VMC}, 0")
    e("s_waitcnt lgkmcnt(0)")
    endoff = KEYS_WG * 256 if cfg.INTERLEAVE else None
    e.label("L_a_loop")
    for st in range(2):
        K, V = KB[st], VB[st]
        e("s_waitcnt vmcnt(24)")
        for j in range(4):
            for T in range(2):
                c = "0" if j == 0 else vr(S+4*T, 4)
                e(f"v_mfma_f32_16x16x32_bf16 {vr(S+4*T,4)}, {vr(K+16*T+4*j,4)}, {vr(Q+4*j,4)}, {c}")
        e("s_cmp_gt_u32 s46, 1")
        e("s_cselect_b32 s47, s44, 0x40000000")
        loadK(st, "s47")
        e(f"v_max3_f32 v{VT}, v{S}, v{S+1}, v{S+2}")
        e(f"v_max3_f32 v{VT}, v{VT}, v{S+3}, v{S+4}")
        e(f"v_max3_f32 v{VT}, v{VT}, v{S+5}, v{S+6}")
        e(f"v_max3_f32 v{VT}, v{VT}, v{S+7}, v{VM}")
        e(f"v_mov_b32 v{VT2}, v{VT}")
        e("s_nop 1")
        e(f"v_permlane16_swap_b32 v{VT}, v{VT2}")
        e("s_nop 0")
        e(f"v_max_f32 v{VT}, v{VT}, v{VT2}")
        e(f"v_mov_b32 v{VT2}, v{VT}")
        e("s_nop 1")
        e(f"v_permlane32_swap_b32 v{VT}, v{VT2}")
        e("s_nop 0")
        e(f"v_max_f32 v{VT}, v{VT}, v{VT2}")
        e(f"v_cmp_gt_f32 vcc, v{VT}, v{VM}")
        e(f"s_cbranch_vccz L_a_skip{st}")
        e(f"v_sub_f32 v{VD}, v{VM}, v{VT}")
        e(f"v_mul_f32 v{VD}, s42, v{VD}")
        e(f"v_exp_f32 v{VD}, v{VD}")
        e(f"v_mov_b32 v{VM}, v{VT}")
        e(f"v_mul_f32 v{VMC}, s42, v{VT}")
        e(f"v_mul_f32 v{VL}, v{VL}, v{VD}")
        for h in range(4):
            e(f"v_readlane_b32 s{48+h}, v{VD}, {h}")
        e("s_nop 1")
        for i in range(8):
            for r in range(4):
                e(f"v_mul_f32 v{O+4*i+r}, s{48+r}, v{O+4*i+r}")
        e.label(f"L_a_skip{st}")
        for i in range(8):
            e(f"v_fma_f32 v{S+i}, v{S+i}, s42, -v{VMC}")
        for i in range(8):
            e(f"v_exp_f32 v{S+i}, v{S+i}")
        e("s_nop 0")
        e(f"v_add_f32 v{VT}, v{S}, v{S+1}")
        e(f"v_add_f32 v{VT2}, v{S+2}, v{S+3}")
        e(f"v_add_f32 v{VD}, v{S+4}, v{S+5}")
        e(f"v_add_f32 v{VL}, v{VL}, v{VT}")
        e(f"v_add_f32 v{VT}, v{S+6}, v{S+7}")
        e(f"v_add_f32 v{VT2}, v{VT2}, v{VD}")
        e(f"v_add_f32 v{VL}, v{VL}, v{VT}")
        e(f"v_add_f32 v{VL}, v{VL}, v{VT2}")
        for k in range(4):
            e(f"v_cvt_pk_bf16_f32 v{P+k}, v{S+2*k}, v{S+2*k+1}")
        e("s_waitcnt vmcnt(24)")
        perm_mfma(e, V, TMP, O, P, 40, 41)
        loadV(st, "s47")
        e(f"s_add_u32 s44, s44, {step}")
    e("s_sub_u32 s46, s46, 1")
    e("s_cmp_lg_u32 s46, 0")
    e("s_cbranch_scc1 L_a_loop")
    e(f"v_mov_b32 v{VT}, v{VL}")
    e(f"v_mov_b32 v{VT2}, v{VL}")
    e("s_nop 1")
    e(f"v_permlane16_swap_b32 v{VT}, v{VT2}")
    e("s_nop 0")
    e(f"v_add_f32 v{VT}, v{VT}, v{VT2}")
    e(f"v_mov_b32 v{VT2}, v{VT}")
    e("s_nop 1")
    e(f"v_permlane32_swap_b32 v{VT}, v{VT2}")
    e("s_nop 0")
    e(f"v_add_f32 v{VL}, v{VT}, v{VT2}")
    e(f"v_mov_b32 v{VT}, v{VM}")
    e(f"v_mov_b32 v{VT2}, v{VL}")
    e("v_and_b32 v11, 63, v0")
    e("v_lshlrev_b32 v12, 3, v11")
    e("s_lshl_b32 s18, s16, 5")
    e(f"s_add_u32 s18, s18, {LDS_ML}")
    e("v_add_u32 v12, s18, v12")
    e("v_lshlrev_b32 v13, 5, v11")
    e("s_lshl_b32 s18, s16, 11")
    e("v_add_u32 v13, s18, v13")
    e("s_nop 4")
    e("s_mov_b64 s[34:35], exec")
    e("s_mov_b64 exec, 0xf")
    e(f"ds_write_b64 v12, v[{VT}:{VT2}]")
    e("s_mov_b64 exec, 0xffff")
    for i in range(8):
        for r in range(4):
            e(f"ds_write_b32 v13, v{O+4*i+r} offset:{LDS_O + r*512 + i*4}")
    e("s_mov_b64 exec, s[34:35]")
    e("s_waitcnt vmcnt(0) lgkmcnt(0)")
    e("s_barrier")
    for u in range(nq):
        e(f"v_add_u32 v14, {u*NW*64}, v0")
        e("v_lshrrev_b32 v15, 7, v14")
        e("v_lshlrev_b32 v16, 3, v15")
        e("v_lshlrev_b32 v17, 2, v14")
        for w in range(NW):
            e(f"ds_read_b64 {vr(72+2*w,2)}, v16 offset:{LDS_ML + w*32}")
        for w in range(NW):
            e(f"ds_read_b32 v{104+w}, v17 offset:{LDS_O + w*2048}")
        e("s_waitcnt lgkmcnt(0)")
        e(f"v_max_f32 v18, v72, v74")
        for w in range(2, NW):
            e(f"v_max_f32 v18, v18, v{72+2*w}")
        e("v_mov_b32 v19, 0")
        e("v_mov_b32 v20, 0")
        for w in range(NW):
            e(f"v_sub_f32 v21, v{72+2*w}, v18")
            e("v_mul_f32 v21, s42, v21")
            e("v_exp_f32 v21, v21")
            e("s_nop 0")
            e(f"v_fmac_f32 v19, v21, v{73+2*w}")
            e(f"v_fmac_f32 v20, v21, v{104+w}")
        e("s_lshl_b32 s18, s3, 6")
        e("s_add_u32 s18, s18, s14")
        e(f"s_mul_i32 s19, s18, {4*NSPLIT*512}")
        e("s_lshl_b32 s36, s15, 9")
        e("s_add_u32 s19, s19, s36")
        e(f"s_add_u32 s19, s19, {WS_O}")
        e("v_and_b32 v22, 127, v14")
        e("v_lshlrev_b32 v22, 2, v22")
        e(f"v_mul_u32_u24 v23, {NSPLIT*512}, v15")
        e("v_add_u32 v22, v22, v23")
        e("buffer_store_dword v20, v22, s[28:31], s19 offen")
        e(f"s_mul_i32 s19, s18, {4*NSPLIT*8}")
        e("s_lshl_b32 s36, s15, 3")
        e("s_add_u32 s19, s19, s36")
        e(f"s_add_u32 s19, s19, {WS_ML}")
        e(f"v_mul_u32_u24 v23, {NSPLIT*8}, v15")
        e("v_and_b32 v22, 127, v14")
        e("v_cmp_eq_u32 vcc, 0, v22")
        e("s_and_saveexec_b64 s[34:35], vcc")
        e("buffer_store_dwordx2 v[18:19], v23, s[28:31], s19 offen")
        e("s_mov_b64 exec, s[34:35]")
    e.label("L_a_end")
    e("s_endpgm")
    return name, NV, LDS_TOTAL, NWG

def gen_oproj(e, cfg):
    name = "oproj_kernel"
    NSPLIT = cfg.NSPLIT
    cscale = (128 ** -0.5) * math.log2(math.e)
    kernel_begin(e, name)
    e("s_cmp_ge_u32 s2, 256")
    e("s_cbranch_scc1 L_o_end")
    e("s_lshr_b32 s3, s2, 7")
    e("s_lshr_b32 s14, s2, 5")
    e("s_and_b32 s14, s14, 3")
    e("s_and_b32 s15, s2, 31")
    e("s_mul_i32 s4, s3, 40")
    e("s_add_u32 s6, s0, s4")
    e("s_addc_u32 s7, s1, 0")
    e("s_load_dwordx2 s[8:9], s[6:7], 32")
    e("s_load_dwordx4 s[52:55], s[0:1], 80")
    e("s_load_dwordx2 s[12:13], s[0:1], 96")
    e("v_and_b32 v1, 63, v0")
    e("v_lshrrev_b32 v2, 6, v0")
    e("v_and_b32 v3, 15, v1")
    e("v_lshrrev_b32 v4, 4, v1")
    e("s_mov_b32 s40, 0x05040100")
    e("s_mov_b32 s41, 0x07060302")
    e(f"s_mov_b32 s42, {f2u(cscale):#x}")
    e("s_lshl_b32 s16, s15, 7")
    e("v_lshl_add_u32 v5, v2, 5, s16")
    e("v_lshl_add_u32 v5, v4, 3, v5")
    e("s_waitcnt lgkmcnt(0)")
    srd(e, 24, 8, 9, 4194304)
    srd(e, 28, 12, 13, 0x220000)
    OP_P = 8 * 32 * NSPLIT * 512
    ML_P = 8 * 32 * NSPLIT * 8
    e(f"s_mul_i32 s17, s3, {OP_P}")
    e(f"s_add_u32 s17, s17, {WS_O}")
    e("s_add_u32 s18, s12, s17")
    e("s_addc_u32 s19, s13, 0")
    srd(e, 20, 18, 19, OP_P)
    e(f"s_mul_i32 s17, s3, {ML_P}")
    e(f"s_add_u32 s17, s17, {WS_ML}")
    e("s_add_u32 s18, s12, s17")
    e("s_addc_u32 s19, s13, 0")
    srd(e, 56, 18, 19, ML_P)
    e("v_lshlrev_b32 v7, 10, v5")
    e("v_lshl_add_u32 v7, v3, 4, v7")
    e("s_lshl_b32 s17, s14, 8")
    e("v_add_u32 v7, s17, v7")
    e("v_add_u32 v8, 0x1000, v7")
    for t in range(8):
        vo = 8 if t >= 4 else 7
        e(f"buffer_load_dwordx4 {vr(16+4*t,4)}, v{vo}, s[24:27], 0 offen offset:{(t&3)*1024}")
    e(f"v_mul_u32_u24 v9, {32*NSPLIT*512}, v3")
    e("v_lshl_add_u32 v9, v2, 7, v9")
    e("v_lshl_add_u32 v9, v4, 5, v9")
    e(f"s_mul_i32 s17, s15, {NSPLIT*512}")
    PB = 112
    for s in range(NSPLIT):
        e(f"buffer_load_dwordx4 {vr(PB+8*s,4)}, v9, s[20:23], s17 offen offset:{s*512}")
        e(f"buffer_load_dwordx4 {vr(PB+8*s+4,4)}, v9, s[20:23], s17 offen offset:{s*512+16}")
    MB = PB + 8 * NSPLIT
    e(f"v_mul_u32_u24 v10, {32*NSPLIT*8}, v3")
    e(f"s_mul_i32 s17, s15, {NSPLIT*8}")
    for s in range(NSPLIT):
        e(f"buffer_load_dwordx2 {vr(MB+2*s,2)}, v10, s[56:59], s17 offen offset:{s*8}")
    e("s_waitcnt vmcnt(0)")
    e(f"v_mov_b32 v11, v{MB}")
    for s in range(1, NSPLIT):
        e(f"v_max_f32 v11, v11, v{MB+2*s}")
    for s in range(NSPLIT):
        e(f"v_sub_f32 v{MB+2*s}, v{MB+2*s}, v11")
        e(f"v_mul_f32 v{MB+2*s}, s42, v{MB+2*s}")
        e(f"v_exp_f32 v{MB+2*s}, v{MB+2*s}")
    e("s_nop 0")
    e(f"v_mul_f32 v11, v{MB}, v{MB+1}")
    for s in range(1, NSPLIT):
        e(f"v_fmac_f32 v11, v{MB+2*s}, v{MB+2*s+1}")
    e("v_rcp_f32 v11, v11")
    e("s_nop 0")
    for s in range(NSPLIT):
        e(f"v_mul_f32 v{MB+2*s}, v{MB+2*s}, v11")
    for k in range(8):
        e(f"v_mul_f32 v{PB+k}, v{PB+k}, v{MB}")
        for s in range(1, NSPLIT):
            e(f"v_fmac_f32 v{PB+k}, v{PB+8*s+k}, v{MB+2*s}")
    for k in range(4):
        e(f"v_cvt_pk_bf16_f32 v{12+k}, v{PB+2*k}, v{PB+2*k+1}")
    perm_mfma(e, 16, 48, 80, 12, 40, 41, first=True)
    e("v_lshlrev_b32 v5, 12, v2")
    e("v_lshl_add_u32 v5, v4, 11, v5")
    e("v_lshl_add_u32 v5, v3, 5, v5")
    e("s_nop 7")
    e("s_mov_b64 s[34:35], exec")
    e("s_mov_b32 exec_lo, -1")
    e("s_mov_b32 exec_hi, 0")
    for i in range(8):
        for r in range(4):
            e(f"ds_write_b32 v5, v{80+4*i+r} offset:{r*512+i*4}")
    e("s_mov_b64 exec, s[34:35]")
    e("s_waitcnt lgkmcnt(0)")
    e("s_barrier")
    e("v_lshlrev_b32 v5, 2, v0")
    for u in range(4):
        for w in range(4):
            e(f"ds_read_b32 v{16+4*u+w}, v5 offset:{w*4096+u*1024}")
    e("s_waitcnt lgkmcnt(0)")
    for u in range(4):
        e(f"v_add_f32 v{16+4*u}, v{16+4*u}, v{17+4*u}")
        e(f"v_add_f32 v{18+4*u}, v{18+4*u}, v{19+4*u}")
    for u in range(4):
        e(f"v_add_f32 v{16+4*u}, v{16+4*u}, v{18+4*u}")
    e("v_lshrrev_b32 v6, 7, v0")
    e("v_and_b32 v7, 127, v0")
    e("v_lshlrev_b32 v6, 12, v6")
    e("v_lshl_add_u32 v6, v7, 2, v6")
    e("s_lshl_b32 s17, s3, 11")
    e("s_lshl_b32 s18, s14, 9")
    e("s_add_u32 s17, s17, s18")
    e(f"s_add_u32 s17, s17, {WS_ACC}")
    e("s_mov_b32 s18, s17")
    for u in range(4):
        e(f"buffer_atomic_add_f32 v{16+4*u}, v6, s[28:31], s18 offen")
        if u < 3:
            e("s_add_u32 s18, s18, 8192")
    e("s_waitcnt vmcnt(0)")
    e("s_barrier")
    e("v_readfirstlane_b32 s19, v2")
    e("s_cmp_lg_u32 s19, 0")
    e("s_cbranch_scc1 L_o_end")
    srd(e, 60, 54, 55, 256)
    e("s_lshl_b32 s19, s3, 2")
    e("s_add_u32 s19, s19, s14")
    e("s_lshl_b32 s19, s19, 2")
    e("v_mov_b32 v8, 1")
    e("v_mov_b32 v9, 0")
    e("s_mov_b64 exec, 1")
    e("buffer_atomic_add v8, v9, s[60:63], s19 offen sc0")
    e("s_waitcnt vmcnt(0)")
    e("s_mov_b64 exec, -1")
    e("v_readfirstlane_b32 s19, v8")
    e("s_cmp_lg_u32 s19, 31")
    e("s_cbranch_scc1 L_o_end")
    e("v_lshlrev_b32 v6, 3, v1")
    for i in range(8):
        e(f"v_mov_b32 v{16+2*i}, 0")
        e(f"v_mov_b32 v{17+2*i}, 0")
    e("s_mov_b32 s18, s17")
    for i in range(8):
        e(f"buffer_atomic_add_f32 v{16+2*i}, v6, s[28:31], s18 offen sc0")
        e(f"buffer_atomic_add_f32 v{17+2*i}, v6, s[28:31], s18 offen offset:4 sc0")
        if i < 7:
            e("s_add_u32 s18, s18, 4096")
    srd(e, 64, 52, 53, 16384)
    e("s_lshl_b32 s18, s3, 10")
    e("s_lshl_b32 s19, s14, 8")
    e("s_add_u32 s18, s18, s19")
    e("v_lshlrev_b32 v7, 2, v1")
    e("s_waitcnt vmcnt(0)")
    for i in range(8):
        e(f"v_cvt_pk_bf16_f32 v{16+2*i}, v{16+2*i}, v{17+2*i}")
        e(f"buffer_store_dword v{16+2*i}, v7, s[64:67], s18 offen")
        if i < 7:
            e("s_add_u32 s18, s18, 2048")
    e.label("L_o_end")
    e("s_endpgm")
    return name, 144


def poll(e, tag, dbg_srd, soff, target, vtmp, vzero):
    e(f"s_mov_b32 s38, 400000")
    e.label(f"L_poll_{tag}")
    e(f"buffer_load_dword v{vtmp}, v{vzero}, s[{dbg_srd}:{dbg_srd+3}], {soff} offen sc1")
    e("s_waitcnt vmcnt(0)")
    e(f"v_readfirstlane_b32 s39, v{vtmp}")
    e(f"s_cmp_ge_u32 s39, {target}")
    e(f"s_cbranch_scc1 L_polld_{tag}")
    e("s_sub_u32 s38, s38, 1")
    e("s_cmp_lg_u32 s38, 0")
    e(f"s_cbranch_scc1 L_poll_{tag}")
    e.label(f"L_polld_{tag}")

def gen_fused(e, cfg):
    name = NAME + "_kernel"
    NW, NSPLIT = 8, 2
    NWG = 256
    KEYS_WG = 4096
    KEYS_W = KEYS_WG // NW
    NIT = KEYS_W // 32
    cscale = (128 ** -0.5) * math.log2(math.e)
    VKO0, VKO1, VVO0, VVO1 = 1, 2, 3, 4
    VM, VL, VMC, VT, VT2, VD = 5, 6, 7, 8, 9, 10
    VLANE = 11
    Q = 12; S = 28; P = 36; O = 40
    KB = [72, 104]; VB = [136, 168]; TMP = 200
    VC, VG, VZ = 232, 233, 234
    NV = 236
    LDS_O = 0
    LDS_ML = 16384
    LDS_Q = LDS_ML + 256
    LDS_TOTAL = LDS_Q + 1024
    CQ, CO, CF, CZ = 0, 64, 128, 160
    VST = 235
    def stamp(i):
        if cfg.STAMP:
            e("s_memrealtime s[98:99]")
            e("s_waitcnt lgkmcnt(0)")
            e(f"v_writelane_b32 v{VST}, s98, {i}")
    kernel_begin(e, name)
    e(f"s_cmp_ge_u32 s2, {NWG}")
    e("s_cbranch_scc1 L_end")
    if cfg.STAMP:
        e(f"v_mov_b32 v{VST}, 0")
    stamp(0)
    e("s_lshr_b32 s3, s2, 7")
    e("s_lshr_b32 s14, s2, 1")
    e("s_and_b32 s14, s14, 63")
    e("s_and_b32 s15, s2, 1")
    e("s_mul_i32 s4, s3, 40")
    e("s_add_u32 s6, s0, s4")
    e("s_addc_u32 s7, s1, 0")
    e("s_load_dwordx8 s[68:75], s[6:7], 0")
    e("s_load_dwordx2 s[76:77], s[6:7], 32")
    e("s_load_dwordx4 s[52:55], s[0:1], 80")
    e("s_load_dwordx2 s[12:13], s[0:1], 96")
    e(f"v_and_b32 v{VLANE}, 63, v0")
    e("v_lshrrev_b32 v5, 6, v0")
    e("s_nop 0")
    e("v_readfirstlane_b32 s16, v5")
    e(f"v_and_b32 v{VC}, 15, v{VLANE}")
    e(f"v_lshrrev_b32 v{VG}, 4, v{VLANE}")
    e(f"v_mov_b32 v{VZ}, 0")
    e(f"v_and_b32 v8, 3, v{VC}")
    e(f"v_lshrrev_b32 v9, 2, v{VC}")
    e("v_lshl_add_u32 v8, v8, 2, v9")
    e("v_lshlrev_b32 v8, 8, v8")
    e(f"v_lshl_add_u32 v{VKO0}, v{VG}, 4, v8")
    e(f"v_add_u32 v{VKO1}, 0x1000, v{VKO0}")
    e(f"v_lshlrev_b32 v{VVO0}, 4, v{VLANE}")
    e(f"v_add_u32 v{VVO1}, 0x1000, v{VVO0}")
    e("s_mov_b32 s40, 0x05040100")
    e("s_mov_b32 s41, 0x07060302")
    e(f"s_mov_b32 s42, {f2u(cscale):#x}")
    e("s_and_b32 s78, s14, 7")
    e("s_lshr_b32 s79, s14, 3")
    e("s_lshl_b32 s80, s79, 1")
    e("s_add_u32 s80, s80, s15")
    e("s_lshl_b32 s81, s3, 3")
    e("s_add_u32 s81, s81, s78")
    e("s_lshl_b32 s82, s81, 2")
    e("s_lshl_b32 s17, s14, 21")
    e(f"s_mul_i32 s18, s15, {KEYS_WG*256}")
    e("s_add_u32 s17, s17, s18")
    e("s_lshl_b32 s44, s16, 13")
    step = NW * 8192
    e("s_waitcnt lgkmcnt(0)")
    e("s_add_u32 s8, s70, s17")
    e("s_addc_u32 s9, s71, 0")
    e("s_add_u32 s10, s72, s17")
    e("s_addc_u32 s11, s73, 0")
    srd(e, 20, 8, 9, KEYS_WG * 256)
    srd(e, 24, 10, 11, KEYS_WG * 256)
    srd(e, 28, 12, 13, 0x220000)
    srd(e, 60, 54, 55, 256)
    def loadK(st, soff):
        for T in range(2):
            for j in range(4):
                vo = VKO1 if T else VKO0
                e(f"buffer_load_dwordx4 {vr(KB[st]+16*T+4*j,4)}, v{vo}, s[20:23], {soff} offen offset:{j*64}{cfg.NT}")
    def loadV(st, soff):
        for t in range(8):
            vo = VVO1 if t >= 4 else VVO0
            e(f"buffer_load_dwordx4 {vr(VB[st]+4*t,4)}, v{vo}, s[24:27], {soff} offen offset:{(t&3)*1024}{cfg.NT}")
    def prefetch():
        loadK(0, "s44"); loadV(0, "s44")
        e(f"s_add_u32 s45, s44, {step}")
        loadK(1, "s45"); loadV(1, "s45")
        e(f"s_add_u32 s44, s45, {step}")
    e("s_cmp_lt_u32 s16, 4")
    e("s_cbranch_scc1 L_qrole")
    prefetch()
    e("s_barrier")
    e("s_barrier")
    e("s_branch L_qjoin")
    e.label("L_qrole")
    srd(e, 84, 68, 69, 8192)
    srd(e, 88, 74, 75, 4194304)
    e("s_lshr_b32 s83, s80, 2")
    e("s_and_b32 s92, s80, 3")
    e("s_lshl_b32 s93, s78, 2")
    e("s_add_u32 s92, s92, s93")
    e("s_lshl_b32 s17, s83, 7")
    e("s_lshl_b32 s18, s16, 5")
    e("s_add_u32 s17, s17, s18")
    e(f"v_lshl_add_u32 v8, v{VG}, 3, s17")
    e(f"v_lshlrev_b32 v9, 10, v{VC}")
    e("v_lshl_add_u32 v9, v8, 1, v9")
    e(f"buffer_load_dwordx4 {vr(P,4)}, v9, s[84:87], 0 offen")
    e("v_lshlrev_b32 v9, 13, v8")
    e(f"v_lshl_add_u32 v9, v{VC}, 4, v9")
    e("s_lshl_b32 s17, s92, 8")
    for t in range(8):
        e(f"buffer_load_dwordx4 {vr(KB[0]+4*t,4)}, v9, s[88:91], s17 offen")
        if t < 7:
            e("s_add_u32 s17, s17, 8192")
    e("s_lshl_b32 s18, s16, 12")
    e(f"v_lshl_add_u32 v8, v{VG}, 11, s18")
    e(f"v_lshl_add_u32 v8, v{VC}, 5, v8")
    e("s_waitcnt vmcnt(0)")
    stamp(1)
    perm_mfma(e, KB[0], TMP, O, P, 40, 41, first=True)
    e("s_nop 7")
    e("s_mov_b32 exec_lo, -1")
    e("s_mov_b32 exec_hi, 0")
    for i in range(8):
        for r in range(4):
            e(f"ds_write_b32 v8, v{O+4*i+r} offset:{LDS_O + r*512+i*4}")
    e("s_mov_b64 exec, -1")
    e("s_waitcnt lgkmcnt(0)")
    e("s_barrier")
    e("v_lshlrev_b32 v8, 4, v0")
    for w in range(4):
        e(f"ds_read_b128 {vr(TMP+4*w,4)}, v8 offset:{LDS_O + w*4096}")
    e("v_lshrrev_b32 v9, 5, v0")
    e("v_and_b32 v10, 31, v0")
    e("v_lshlrev_b32 v9, 14, v9")
    e("v_lshl_add_u32 v9, v10, 4, v9")
    e("s_lshl_b32 s18, s83, 1")
    e("s_add_u32 s18, s18, s3")
    e("s_lshl_b32 s18, s18, 17")
    e("s_lshl_b32 s19, s92, 9")
    e("s_add_u32 s18, s18, s19")
    e(f"s_add_u32 s18, s18, {WS_Q}")
    e("s_waitcnt lgkmcnt(0)")
    for k in range(4):
        e(f"v_add_f32 v{TMP+k}, v{TMP+k}, v{TMP+4+k}")
        e(f"v_add_f32 v{TMP+8+k}, v{TMP+8+k}, v{TMP+12+k}")
    for k in range(4):
        e(f"v_add_f32 v{TMP+k}, v{TMP+k}, v{TMP+8+k}")
    e(f"buffer_store_dwordx4 {vr(TMP,4)}, v9, s[28:31], s18 offen sc1")
    e("s_cmp_ge_u32 s2, 8")
    e("s_cbranch_scc1 L_nozero")
    for k in range(4):
        e(f"v_mov_b32 v{TMP+16+k}, 0")
    e("s_lshl_b32 s18, s2, 12")
    e(f"s_add_u32 s18, s18, {WS_ACC}")
    e(f"buffer_store_dwordx4 {vr(TMP+16,4)}, v8, s[28:31], s18 offen sc1")
    e.label("L_nozero")
    e("s_waitcnt vmcnt(0)")
    e("s_barrier")
    stamp(2)
    e("s_cmp_eq_u32 s16, 0")
    e("s_cbranch_scc1 L_qwave")
    prefetch()
    e("s_branch L_qjoin")
    e.label("L_qwave")
    e("v_mov_b32 v8, 1")
    e("s_mov_b64 exec, 1")
    e(f"s_add_u32 s17, s82, {CQ}")
    e(f"buffer_atomic_add v8, v{VZ}, s[60:63], s17 offen")
    e("s_cmp_ge_u32 s2, 8")
    e("s_cbranch_scc1 L_nozero2")
    e(f"buffer_atomic_add v8, v{VZ}, s[60:63], 0 offen offset:{CZ}")
    e.label("L_nozero2")
    e("s_mov_b64 exec, -1")
    poll(e, "q", 60, "s17", 16, 9, VZ)
    stamp(3)
    e("s_lshl_b32 s18, s14, 11")
    e("s_lshl_b32 s19, s3, 17")
    e("s_add_u32 s18, s18, s19")
    e(f"s_add_u32 s18, s18, {WS_Q}")
    e(f"v_lshlrev_b32 v8, 5, v{VLANE}")
    for ks in range(4):
        e(f"buffer_load_dwordx4 {vr(TMP+8*ks,4)}, v8, s[28:31], s18 offen sc1")
        e(f"buffer_load_dwordx4 {vr(TMP+8*ks+4,4)}, v8, s[28:31], s18 offen offset:16 sc1")
        if ks < 3:
            e("s_add_u32 s18, s18, 0x40000")
    prefetch()
    e("s_waitcnt vmcnt(32)")
    for k in range(8):
        e(f"v_add_f32 v{TMP+k}, v{TMP+k}, v{TMP+8+k}")
        e(f"v_add_f32 v{TMP+16+k}, v{TMP+16+k}, v{TMP+24+k}")
    for k in range(8):
        e(f"v_add_f32 v{TMP+k}, v{TMP+k}, v{TMP+16+k}")
    for k in range(4):
        e(f"v_cvt_pk_bf16_f32 v{TMP+k}, v{TMP+2*k}, v{TMP+2*k+1}")
    e(f"v_lshlrev_b32 v8, 4, v{VLANE}")
    e(f"ds_write_b128 v8, {vr(TMP,4)} offset:{LDS_Q}")
    e("s_waitcnt lgkmcnt(0)")
    e.label("L_qjoin")
    e("s_barrier")
    stamp(4)
    for i in range(32):
        e(f"v_mov_b32 v{O+i}, 0")
    for i in range(16):
        e(f"v_mov_b32 v{Q+i}, 0")
    e(f"v_lshlrev_b32 v8, 8, v{VC}")
    e(f"v_lshl_add_u32 v8, v{VG}, 4, v8")
    e(f"v_cmp_gt_u32 vcc, 4, v{VC}")
    e("s_and_saveexec_b64 s[34:35], vcc")
    for j in range(4):
        e(f"ds_read_b128 {vr(Q+4*j,4)}, v8 offset:{LDS_Q + j*64}")
    e("s_mov_b64 exec, s[34:35]")
    e(f"s_mov_b32 s46, {NIT//2}")
    e(f"v_mov_b32 v{VM}, 0xff800000")
    e(f"v_mov_b32 v{VL}, 0")
    e(f"v_mov_b32 v{VMC}, 0")
    e("s_waitcnt lgkmcnt(0)")
    e.label("L_loop")
    for st in range(2):
        K, V = KB[st], VB[st]
        e("s_waitcnt vmcnt(24)")
        for j in range(4):
            for T in range(2):
                c = "0" if j == 0 else vr(S+4*T, 4)
                e(f"v_mfma_f32_16x16x32_bf16 {vr(S+4*T,4)}, {vr(K+16*T+4*j,4)}, {vr(Q+4*j,4)}, {c}")
        e("s_cmp_gt_u32 s46, 1")
        e("s_cselect_b32 s47, s44, 0x40000000")
        loadK(st, "s47")
        e(f"v_max3_f32 v{VT}, v{S}, v{S+1}, v{S+2}")
        e(f"v_max3_f32 v{VT}, v{VT}, v{S+3}, v{S+4}")
        e(f"v_max3_f32 v{VT}, v{VT}, v{S+5}, v{S+6}")
        e(f"v_max3_f32 v{VT}, v{VT}, v{S+7}, v{VM}")
        e(f"v_mov_b32 v{VT2}, v{VT}")
        e("s_nop 1")
        e(f"v_permlane16_swap_b32 v{VT}, v{VT2}")
        e("s_nop 0")
        e(f"v_max_f32 v{VT}, v{VT}, v{VT2}")
        e(f"v_mov_b32 v{VT2}, v{VT}")
        e("s_nop 1")
        e(f"v_permlane32_swap_b32 v{VT}, v{VT2}")
        e("s_nop 0")
        e(f"v_max_f32 v{VT}, v{VT}, v{VT2}")
        e(f"v_cmp_gt_f32 vcc, v{VT}, v{VM}")
        e(f"s_cbranch_vccz L_skip{st}")
        e(f"v_sub_f32 v{VD}, v{VM}, v{VT}")
        e(f"v_mul_f32 v{VD}, s42, v{VD}")
        e(f"v_exp_f32 v{VD}, v{VD}")
        e(f"v_mov_b32 v{VM}, v{VT}")
        e(f"v_mul_f32 v{VMC}, s42, v{VT}")
        e(f"v_mul_f32 v{VL}, v{VL}, v{VD}")
        for h in range(4):
            e(f"v_readlane_b32 s{48+h}, v{VD}, {h}")
        e("s_nop 1")
        for i in range(8):
            for r in range(4):
                e(f"v_mul_f32 v{O+4*i+r}, s{48+r}, v{O+4*i+r}")
        e.label(f"L_skip{st}")
        for i in range(8):
            e(f"v_fma_f32 v{S+i}, v{S+i}, s42, -v{VMC}")
        for i in range(8):
            e(f"v_exp_f32 v{S+i}, v{S+i}")
        e("s_nop 0")
        e(f"v_add_f32 v{VT}, v{S}, v{S+1}")
        e(f"v_add_f32 v{VT2}, v{S+2}, v{S+3}")
        e(f"v_add_f32 v{VD}, v{S+4}, v{S+5}")
        e(f"v_add_f32 v{VL}, v{VL}, v{VT}")
        e(f"v_add_f32 v{VT}, v{S+6}, v{S+7}")
        e(f"v_add_f32 v{VT2}, v{VT2}, v{VD}")
        e(f"v_add_f32 v{VL}, v{VL}, v{VT}")
        e(f"v_add_f32 v{VL}, v{VL}, v{VT2}")
        for k in range(4):
            e(f"v_cvt_pk_bf16_f32 v{P+k}, v{S+2*k}, v{S+2*k+1}")
        e("s_waitcnt vmcnt(24)")
        perm_mfma(e, V, TMP, O, P, 40, 41)
        loadV(st, "s47")
        e(f"s_add_u32 s44, s44, {step}")
    e("s_sub_u32 s46, s46, 1")
    e("s_cmp_lg_u32 s46, 0")
    e("s_cbranch_scc1 L_loop")
    stamp(5)
    e(f"v_mov_b32 v{VT}, v{VL}")
    e(f"v_mov_b32 v{VT2}, v{VL}")
    e("s_nop 1")
    e(f"v_permlane16_swap_b32 v{VT}, v{VT2}")
    e("s_nop 0")
    e(f"v_add_f32 v{VT}, v{VT}, v{VT2}")
    e(f"v_mov_b32 v{VT2}, v{VT}")
    e("s_nop 1")
    e(f"v_permlane32_swap_b32 v{VT}, v{VT2}")
    e("s_nop 0")
    e(f"v_add_f32 v{VT2}, v{VT}, v{VT2}")
    e(f"v_mov_b32 v{VT}, v{VM}")
    e(f"v_lshlrev_b32 v12, 3, v{VLANE}")
    e("s_lshl_b32 s18, s16, 5")
    e(f"s_add_u32 s18, s18, {LDS_ML}")
    e("v_add_u32 v12, s18, v12")
    e(f"v_lshlrev_b32 v13, 5, v{VLANE}")
    e("s_lshl_b32 s18, s16, 11")
    e("v_add_u32 v13, s18, v13")
    e("s_mov_b64 exec, 0xf")
    e(f"ds_write_b64 v12, v[{VT}:{VT2}]")
    e("s_mov_b64 exec, 0xffff")
    for i in range(8):
        for r in range(4):
            e(f"ds_write_b32 v13, v{O+4*i+r} offset:{LDS_O + r*512 + i*4}")
    e("s_mov_b64 exec, -1")
    e("s_lshr_b32 s94, s80, 2")
    e("s_lshl_b32 s93, s78, 2")
    e("s_add_u32 s94, s94, s93")
    e("s_and_b32 s95, s80, 3")
    e("s_waitcnt vmcnt(0)")
    e("s_cmp_lt_u32 s16, 4")
    e("s_cbranch_scc1 L_pub")
    srd(e, 88, 76, 77, 4194304)
    e("s_sub_u32 s96, s16, 4")
    e("s_lshl_b32 s17, s94, 7")
    e("s_lshl_b32 s18, s96, 5")
    e("s_add_u32 s17, s17, s18")
    e(f"v_lshl_add_u32 v14, v{VG}, 3, s17")
    e("v_lshlrev_b32 v14, 10, v14")
    e(f"v_lshl_add_u32 v14, v{VC}, 4, v14")
    e("s_lshl_b32 s17, s95, 8")
    e("v_add_u32 v14, s17, v14")
    e("v_add_u32 v15, 0x1000, v14")
    for t in range(8):
        vo = 15 if t >= 4 else 14
        e(f"buffer_load_dwordx4 {vr(KB[0]+4*t,4)}, v{vo}, s[88:91], 0 offen offset:{(t&3)*1024}")
    OP_P = 8 * 32 * NSPLIT * 512
    ML_P = 8 * 32 * NSPLIT * 8
    e(f"s_mul_i32 s17, s3, {OP_P}")
    e(f"s_add_u32 s17, s17, {WS_O}")
    e("s_add_u32 s18, s12, s17")
    e("s_addc_u32 s19, s13, 0")
    srd(e, 84, 18, 19, OP_P)
    e(f"s_mul_i32 s17, s3, {ML_P}")
    e(f"s_add_u32 s17, s17, {WS_ML}")
    e("s_add_u32 s18, s12, s17")
    e("s_addc_u32 s19, s13, 0")
    srd(e, 56, 18, 19, ML_P)
    e(f"v_mul_u32_u24 v16, {32*NSPLIT*512}, v{VC}")
    e("s_lshl_b32 s17, s96, 7")
    e("v_add_u32 v16, s17, v16")
    e(f"v_lshl_add_u32 v16, v{VG}, 5, v16")
    e(f"v_mul_u32_u24 v17, {32*NSPLIT*8}, v{VC}")
    e("s_lshl_b32 s18, s96, 12")
    e(f"v_lshl_add_u32 v18, v{VG}, 11, s18")
    e(f"v_lshl_add_u32 v18, v{VC}, 5, v18")
    e("s_waitcnt lgkmcnt(0)")
    e("s_barrier")
    e("s_barrier")
    e("s_barrier")
    PB = KB[1]
    MB = PB + 16
    e(f"s_mul_i32 s17, s94, {NSPLIT*512}")
    for s_ in range(NSPLIT):
        e(f"buffer_load_dwordx4 {vr(PB+8*s_,4)}, v16, s[84:87], s17 offen offset:{s_*512} sc1")
        e(f"buffer_load_dwordx4 {vr(PB+8*s_+4,4)}, v16, s[84:87], s17 offen offset:{s_*512+16} sc1")
    e(f"s_mul_i32 s17, s94, {NSPLIT*8}")
    e(f"buffer_load_dwordx4 {vr(MB,4)}, v17, s[56:59], s17 offen sc1")
    e("s_waitcnt vmcnt(0)")
    e(f"v_max_f32 v19, v{MB}, v{MB+2}")
    for s_ in range(NSPLIT):
        e(f"v_sub_f32 v{MB+2*s_}, v{MB+2*s_}, v19")
        e(f"v_mul_f32 v{MB+2*s_}, s42, v{MB+2*s_}")
        e(f"v_exp_f32 v{MB+2*s_}, v{MB+2*s_}")
    e("s_nop 0")
    e(f"v_mul_f32 v19, v{MB}, v{MB+1}")
    e(f"v_fmac_f32 v19, v{MB+2}, v{MB+3}")
    e("v_rcp_f32 v19, v19")
    e("s_nop 0")
    for s_ in range(NSPLIT):
        e(f"v_mul_f32 v{MB+2*s_}, v{MB+2*s_}, v19")
    for k in range(8):
        e(f"v_mul_f32 v{PB+k}, v{PB+k}, v{MB}")
        e(f"v_fmac_f32 v{PB+k}, v{PB+8+k}, v{MB+2}")
    for k in range(4):
        e(f"v_cvt_pk_bf16_f32 v{P+k}, v{PB+2*k}, v{PB+2*k+1}")
    perm_mfma(e, KB[0], TMP, O, P, 40, 41, first=True)
    e("s_nop 7")
    e("s_mov_b32 exec_lo, -1")
    e("s_mov_b32 exec_hi, 0")
    for i in range(8):
        for r in range(4):
            e(f"ds_write_b32 v18, v{O+4*i+r} offset:{LDS_O + r*512+i*4}")
    e("s_mov_b64 exec, -1")
    e("s_waitcnt lgkmcnt(0)")
    e("s_branch L_ojoin")
    e.label("L_pub")
    e("s_waitcnt lgkmcnt(0)")
    e("s_barrier")
    e("s_lshl_b32 s17, s16, 3")
    e(f"v_mov_b32 v16, s17")
    e("s_lshl_b32 s17, s16, 9")
    e(f"v_lshl_add_u32 v17, v{VLANE}, 3, s17")
    for w in range(NW):
        e(f"ds_read_b64 {vr(72+2*w,2)}, v16 offset:{LDS_ML + w*32}")
    for w in range(NW):
        e(f"ds_read_b64 {vr(104+2*w,2)}, v17 offset:{LDS_O + w*2048}")
    e("s_waitcnt lgkmcnt(0)")
    e("v_max_f32 v18, v72, v74")
    for w in range(2, NW):
        e(f"v_max_f32 v18, v18, v{72+2*w}")
    e("v_mov_b32 v19, 0")
    e("v_mov_b32 v20, 0")
    e("v_mov_b32 v21, 0")
    for w in range(NW):
        e(f"v_sub_f32 v22, v{72+2*w}, v18")
        e("v_mul_f32 v22, s42, v22")
        e("v_exp_f32 v22, v22")
        e("s_nop 0")
        e(f"v_fmac_f32 v19, v22, v{73+2*w}")
        e(f"v_fmac_f32 v20, v22, v{104+2*w}")
        e(f"v_fmac_f32 v21, v22, v{105+2*w}")
    e("s_lshl_b32 s18, s3, 6")
    e("s_add_u32 s18, s18, s14")
    e("s_lshl_b32 s18, s18, 2")
    e("s_add_u32 s18, s18, s16")
    e(f"s_mul_i32 s19, s18, {NSPLIT*512}")
    e("s_lshl_b32 s36, s15, 9")
    e("s_add_u32 s19, s19, s36")
    e(f"s_add_u32 s19, s19, {WS_O}")
    e(f"v_lshlrev_b32 v22, 3, v{VLANE}")
    e("buffer_store_dwordx2 v[20:21], v22, s[28:31], s19 offen sc1")
    e(f"s_mul_i32 s19, s18, {NSPLIT*8}")
    e("s_lshl_b32 s36, s15, 3")
    e("s_add_u32 s19, s19, s36")
    e(f"s_add_u32 s19, s19, {WS_ML}")
    e("s_mov_b64 exec, 1")
    e(f"buffer_store_dwordx2 v[18:19], v{VZ}, s[28:31], s19 offen sc1")
    e("s_mov_b64 exec, -1")
    e("s_waitcnt vmcnt(0)")
    e("s_barrier")
    stamp(6)
    e("s_cmp_lg_u32 s16, 0")
    e("s_cbranch_scc1 L_pub_np")
    e("v_mov_b32 v8, 1")
    e("s_mov_b64 exec, 1")
    e(f"s_add_u32 s17, s82, {CO}")
    e(f"buffer_atomic_add v8, v{VZ}, s[60:63], s17 offen")
    e("s_mov_b64 exec, -1")
    poll(e, "o", 60, "s17", 16, 9, VZ)
    e(f"s_mov_b32 s17, {CZ}")
    poll(e, "z", 60, "s17", 8, 9, VZ)
    stamp(7)
    e.label("L_pub_np")
    e("s_barrier")
    e.label("L_ojoin")
    e("s_barrier")
    stamp(8)
    e("v_lshlrev_b32 v8, 2, v0")
    for u in range(2):
        for w in range(4):
            e(f"ds_read_b32 v{72+4*u+w}, v8 offset:{LDS_O + w*4096+u*2048}")
    e("v_lshrrev_b32 v9, 7, v0")
    e("v_and_b32 v10, 127, v0")
    e("v_lshlrev_b32 v9, 12, v9")
    e("v_lshl_add_u32 v9, v10, 2, v9")
    e("s_lshl_b32 s17, s3, 11")
    e("s_lshl_b32 s18, s95, 9")
    e("s_add_u32 s17, s17, s18")
    e(f"s_add_u32 s17, s17, {WS_ACC}")
    e("s_add_u32 s18, s17, 16384")
    e("s_waitcnt lgkmcnt(0)")
    for u in range(2):
        e(f"v_add_f32 v{72+4*u}, v{72+4*u}, v{73+4*u}")
        e(f"v_add_f32 v{74+4*u}, v{74+4*u}, v{75+4*u}")
    for u in range(2):
        e(f"v_add_f32 v{72+4*u}, v{72+4*u}, v{74+4*u}")
    e("buffer_atomic_add_f32 v72, v9, s[28:31], s17 offen")
    e("buffer_atomic_add_f32 v76, v9, s[28:31], s18 offen")
    e("s_waitcnt vmcnt(0)")
    e("s_barrier")
    stamp(9)
    e("s_cmp_lg_u32 s16, 0")
    e("s_cbranch_scc1 L_fin")
    e("s_lshl_b32 s19, s3, 2")
    e("s_add_u32 s19, s19, s95")
    e("s_lshl_b32 s19, s19, 2")
    e(f"s_add_u32 s19, s19, {CF}")
    e("v_mov_b32 v8, 1")
    e("s_mov_b64 exec, 1")
    e(f"buffer_atomic_add v8, v{VZ}, s[60:63], s19 offen sc0")
    e("s_waitcnt vmcnt(0)")
    e("s_mov_b64 exec, -1")
    e("v_readfirstlane_b32 s19, v8")
    stamp(10)
    e("s_cmp_lg_u32 s19, 31")
    e("s_cbranch_scc1 L_fin")
    e(f"v_lshlrev_b32 v9, 3, v{VLANE}")
    for i in range(16):
        e(f"v_mov_b32 v{72+i}, 0")
    e("s_mov_b32 s18, s17")
    for i in range(8):
        e(f"buffer_atomic_add_f32 v{72+2*i}, v9, s[28:31], s18 offen sc0")
        e(f"buffer_atomic_add_f32 v{73+2*i}, v9, s[28:31], s18 offen offset:4 sc0")
        if i < 7:
            e("s_add_u32 s18, s18, 4096")
    srd(e, 64, 52, 53, 16384)
    e("s_lshl_b32 s18, s3, 10")
    e("s_lshl_b32 s19, s95, 8")
    e("s_add_u32 s18, s18, s19")
    e(f"v_lshlrev_b32 v10, 2, v{VLANE}")
    e("s_waitcnt vmcnt(0)")
    for i in range(8):
        e(f"v_cvt_pk_bf16_f32 v{72+2*i}, v{72+2*i}, v{73+2*i}")
        e(f"buffer_store_dword v{72+2*i}, v10, s[64:67], s18 offen")
        if i < 7:
            e("s_add_u32 s18, s18, 2048")
    stamp(11)
    e.label("L_fin")
    if cfg.STAMP:
        srd(e, 28, 12, 13, 0x800000)
        e("s_lshl_b32 s18, s2, 3")
        e("s_add_u32 s18, s18, s16")
        e("s_lshl_b32 s18, s18, 8")
        e("s_add_u32 s18, s18, 0x400000")
        e(f"v_lshlrev_b32 v9, 2, v{VLANE}")
        e(f"buffer_store_dword v{VST}, v9, s[28:31], s18 offen")
    e.label("L_end")
    e("s_endpgm")
    return name, NV, LDS_TOTAL, NWG


def poll2(e, tag, dbg_srd, soff, target, vtmp, vzero, sleep):
    e(f"s_mov_b32 s38, 400000")
    e.label(f"L_poll_{tag}")
    e(f"buffer_load_dword v{vtmp}, v{vzero}, s[{dbg_srd}:{dbg_srd+3}], {soff} offen sc1")
    e("s_waitcnt vmcnt(0)")
    e(f"v_readfirstlane_b32 s39, v{vtmp}")
    e(f"s_cmp_ge_u32 s39, {target}")
    e(f"s_cbranch_scc1 L_polld_{tag}")
    if sleep:
        e(f"s_sleep {sleep}")
    e("s_sub_u32 s38, s38, 1")
    e("s_cmp_lg_u32 s38, 0")
    e(f"s_cbranch_scc1 L_poll_{tag}")
    e.label(f"L_polld_{tag}")

def gen_fused2(e, cfg):
    name = NAME + "_kernel"
    NW, NSPLIT = 8, 2
    NWG = 256
    KEYS_WG = 4096
    NTILE = KEYS_WG // 32
    cscale = (128 ** -0.5) * math.log2(math.e)
    VKO0, VKO1, VVO0, VVO1 = 1, 2, 3, 4
    VM, VL, VMC, VT, VT2, VD = 5, 6, 7, 8, 9, 10
    VLANE = 11
    Q = 12; S = 28; P = 36; O = 40
    KB = [72, 104]; VB = [136, 168]; TMP = 200
    VC, VG, VZ, VST, VTK, VONE = 232, 233, 234, 235, 236, 237
    NV = 238
    LDS_O = 0
    LDS_ML = 16384
    LDS_Q = LDS_ML + 256
    LDS_TK = LDS_Q + 1024
    LDS_TOTAL = LDS_TK + 16
    CQ, CO, CF, CZ = 0, 64, 128, 160
    def stamp(i):
        if cfg.STAMP:
            e("s_memrealtime s[98:99]")
            e("s_waitcnt lgkmcnt(0)")
            e(f"v_writelane_b32 v{VST}, s98, {i}")
    kernel_begin(e, name)
    e(f"s_cmp_ge_u32 s2, {NWG}")
    e("s_cbranch_scc1 L_end")
    if cfg.STAMP:
        e(f"v_mov_b32 v{VST}, 0")
    stamp(0)
    e("s_lshr_b32 s3, s2, 7")
    e("s_lshr_b32 s14, s2, 1")
    e("s_and_b32 s14, s14, 63")
    e("s_and_b32 s15, s2, 1")
    e("s_mul_i32 s4, s3, 40")
    e("s_add_u32 s6, s0, s4")
    e("s_addc_u32 s7, s1, 0")
    e("s_load_dwordx8 s[68:75], s[6:7], 0")
    e("s_load_dwordx2 s[76:77], s[6:7], 32")
    e("s_load_dwordx4 s[52:55], s[0:1], 80")
    e("s_load_dwordx2 s[12:13], s[0:1], 96")
    e(f"v_and_b32 v{VLANE}, 63, v0")
    e("v_lshrrev_b32 v5, 6, v0")
    e("s_nop 0")
    e("v_readfirstlane_b32 s16, v5")
    e(f"v_and_b32 v{VC}, 15, v{VLANE}")
    e(f"v_lshrrev_b32 v{VG}, 4, v{VLANE}")
    e(f"v_mov_b32 v{VZ}, 0")
    e(f"v_mov_b32 v{VONE}, 1")
    e(f"v_and_b32 v8, 3, v{VC}")
    e(f"v_lshrrev_b32 v9, 2, v{VC}")
    e("v_lshl_add_u32 v8, v8, 2, v9")
    e("v_lshlrev_b32 v8, 8, v8")
    e(f"v_lshl_add_u32 v{VKO0}, v{VG}, 4, v8")
    e(f"v_add_u32 v{VKO1}, 0x1000, v{VKO0}")
    e(f"v_lshlrev_b32 v{VVO0}, 4, v{VLANE}")
    e(f"v_add_u32 v{VVO1}, 0x1000, v{VVO0}")
    e("s_mov_b32 s40, 0x05040100")
    e("s_mov_b32 s41, 0x07060302")
    e(f"s_mov_b32 s42, {f2u(cscale):#x}")
    e("s_and_b32 s78, s14, 7")
    e("s_lshr_b32 s79, s14, 3")
    e("s_lshl_b32 s80, s79, 1")
    e("s_add_u32 s80, s80, s15")
    e("s_lshl_b32 s81, s3, 3")
    e("s_add_u32 s81, s81, s78")
    e("s_lshl_b32 s82, s81, 2")
    e("s_lshl_b32 s17, s14, 21")
    e(f"s_mul_i32 s18, s15, {KEYS_WG*256}")
    e("s_add_u32 s17, s17, s18")
    e("s_add_u32 s44, s16, 4")
    e("s_and_b32 s44, s44, 7")
    e("s_cmp_lt_u32 s16, 4")
    e("s_cselect_b32 s45, 4, 0")
    e("s_add_u32 s44, s44, s45")
    e("s_add_u32 s45, s44, 4")
    e("s_waitcnt lgkmcnt(0)")
    e("s_add_u32 s8, s70, s17")
    e("s_addc_u32 s9, s71, 0")
    e("s_add_u32 s10, s72, s17")
    e("s_addc_u32 s11, s73, 0")
    srd(e, 20, 8, 9, KEYS_WG * 256)
    srd(e, 24, 10, 11, KEYS_WG * 256)
    srd(e, 28, 12, 13, 0x220000)
    srd(e, 60, 54, 55, 256)
    def loadK(st, soff):
        for T in range(2):
            for j in range(4):
                vo = VKO1 if T else VKO0
                e(f"buffer_load_dwordx4 {vr(KB[st]+16*T+4*j,4)}, v{vo}, s[20:23], {soff} offen offset:{j*64}{cfg.NT}")
    def loadV(st, soff):
        for t in range(8):
            vo = VVO1 if t >= 4 else VVO0
            e(f"buffer_load_dwordx4 {vr(VB[st]+4*t,4)}, v{vo}, s[24:27], {soff} offen offset:{(t&3)*1024}{cfg.NT}")
    def prefetch():
        e("s_lshl_b32 s47, s44, 13")
        loadK(0, "s47"); loadV(0, "s47")
        e("s_lshl_b32 s47, s45, 13")
        loadK(1, "s47"); loadV(1, "s47")
    e("s_cmp_lt_u32 s16, 4")
    e("s_cbranch_scc1 L_qrole")
    prefetch()
    e("s_branch L_qjoin")
    e.label("L_qrole")
    e("s_lshl_b32 s17, s79, 10")
    e("s_add_u32 s18, s68, s17")
    e("s_addc_u32 s19, s69, 0")
    srd(e, 84, 18, 19, 1024)
    srd(e, 88, 74, 75, 4194304)
    e("s_cmp_ge_u32 s2, 8")
    e("s_cbranch_scc1 L_nozero")
    for k in range(4):
        e(f"v_mov_b32 v{S+k}, 0")
    e("v_lshlrev_b32 v8, 4, v0")
    e("s_lshl_b32 s18, s2, 12")
    e(f"s_add_u32 s18, s18, {WS_ACC}")
    e(f"buffer_store_dwordx4 {vr(S,4)}, v8, s[28:31], s18 offen sc1")
    e.label("L_nozero")
    e(f"v_lshlrev_b32 v8, 10, v{VC}")
    e(f"v_lshl_add_u32 v8, v{VG}, 4, v8")
    e(f"v_lshlrev_b32 v9, 16, v{VG}")
    e(f"v_lshl_add_u32 v9, v{VC}, 4, v9")
    e("s_lshl_b32 s17, s78, 10")
    e("s_lshl_b32 s18, s16, 8")
    e("s_add_u32 s17, s17, s18")
    bufs = [KB[0], KB[1], VB[0], VB[1]]
    def qload(T):
        bq = bufs[T & 3]
        e(f"buffer_load_dwordx4 {vr(Q+4*(T&3),4)}, v8, s[84:87], 0 offen offset:{T*64}")
        for t in range(8):
            e(f"buffer_load_dwordx4 {vr(bq+4*t,4)}, v9, s[88:91], s17 offen")
            e("s_add_u32 s17, s17, 8192")
        e(f"s_add_u32 s17, s17, {24*8192}")
    for T in range(4):
        qload(T)
    for T in range(16):
        rem = min(3, 15 - T)
        e(f"s_waitcnt vmcnt({9*rem})")
        perm_mfma(e, bufs[T & 3], TMP, O, Q + 4*(T & 3), 40, 41, first=(T == 0))
        if T + 4 < 16:
            qload(T + 4)
    stamp(1)
    e("s_nop 7")
    for k in range(4):
        e(f"v_cvt_pk_bf16_f32 v{S+k}, v{O+8*k}, v{O+8*k+4}")
    e(f"v_lshlrev_b32 v8, 4, v{VLANE}")
    e("s_lshl_b32 s18, s16, 8")
    e("v_add_u32 v8, s18, v8")
    e("s_mov_b64 exec, 0xffff")
    e(f"ds_write_b128 v8, {vr(S,4)} offset:{LDS_Q}")
    e("s_mov_b64 exec, 1")
    e("v_mov_b32 v9, 16")
    e(f"ds_write_b32 v{VZ}, v9 offset:{LDS_TK}")
    e("s_mov_b64 exec, -1")
    prefetch()
    e("s_waitcnt lgkmcnt(0)")
    e.label("L_qjoin")
    e("s_barrier")
    stamp(4)
    e("s_cmp_ge_u32 s2, 8")
    e("s_cbranch_scc1 L_nozero2")
    e("s_cmp_lg_u32 s16, 0")
    e("s_cbranch_scc1 L_nozero2")
    e("s_mov_b64 exec, 1")
    e(f"buffer_atomic_add v{VONE}, v{VZ}, s[60:63], 0 offen offset:{CZ}")
    e("s_mov_b64 exec, -1")
    e("s_waitcnt vmcnt(0)")
    e.label("L_nozero2")
    for i in range(32):
        e(f"v_mov_b32 v{O+i}, 0")
    for i in range(16):
        e(f"v_mov_b32 v{Q+i}, 0")
    e(f"v_lshlrev_b32 v8, 8, v{VC}")
    e(f"v_lshl_add_u32 v8, v{VG}, 4, v8")
    e(f"v_cmp_gt_u32 vcc, 4, v{VC}")
    e("s_and_saveexec_b64 s[34:35], vcc")
    for j in range(4):
        e(f"ds_read_b128 {vr(Q+4*j,4)}, v8 offset:{LDS_Q + j*64}")
    e("s_mov_b64 exec, s[34:35]")
    e(f"v_mov_b32 v{VM}, 0xff800000")
    e(f"v_mov_b32 v{VL}, 0")
    e(f"v_mov_b32 v{VMC}, 0")
    e("s_waitcnt lgkmcnt(0)")
    e("s_mov_b32 s97, 0")
    e.label("L_loop")
    for st in range(2):
        K, V = KB[st], VB[st]
        tk = 44 + st
        e(f"s_cmp_ge_u32 s{tk}, {NTILE}")
        e("s_cbranch_scc1 L_loopend")
        if cfg.STAMP:
            e("s_add_u32 s97, s97, 1")
        e("s_mov_b64 exec, 1")
        e(f"ds_add_rtn_u32 v{VTK}, v{VZ}, v{VONE} offset:{LDS_TK}")
        e("s_mov_b64 exec, -1")
        e("s_waitcnt vmcnt(24)")
        for j in range(4):
            for T in range(2):
                c = "0" if j == 0 else vr(S+4*T, 4)
                e(f"v_mfma_f32_16x16x32_bf16 {vr(S+4*T,4)}, {vr(K+16*T+4*j,4)}, {vr(Q+4*j,4)}, {c}")
        e("s_waitcnt lgkmcnt(0)")
        e(f"v_readfirstlane_b32 s{tk}, v{VTK}")
        e(f"s_lshl_b32 s47, s{tk}, 13")
        e(f"s_cmp_ge_u32 s{tk}, {NTILE}")
        e("s_cselect_b32 s47, 0x40000000, s47")
        loadK(st, "s47")
        e(f"v_max3_f32 v{VT}, v{S}, v{S+1}, v{S+2}")
        e(f"v_max3_f32 v{VT}, v{VT}, v{S+3}, v{S+4}")
        e(f"v_max3_f32 v{VT}, v{VT}, v{S+5}, v{S+6}")
        e(f"v_max3_f32 v{VT}, v{VT}, v{S+7}, v{VM}")
        e(f"v_mov_b32 v{VT2}, v{VT}")
        e("s_nop 1")
        e(f"v_permlane16_swap_b32 v{VT}, v{VT2}")
        e("s_nop 0")
        e(f"v_max_f32 v{VT}, v{VT}, v{VT2}")
        e(f"v_mov_b32 v{VT2}, v{VT}")
        e("s_nop 1")
        e(f"v_permlane32_swap_b32 v{VT}, v{VT2}")
        e("s_nop 0")
        e(f"v_max_f32 v{VT}, v{VT}, v{VT2}")
        e(f"v_cmp_gt_f32 vcc, v{VT}, v{VM}")
        e(f"s_cbranch_vccz L_skip{st}")
        e(f"v_sub_f32 v{VD}, v{VM}, v{VT}")
        e(f"v_mul_f32 v{VD}, s42, v{VD}")
        e(f"v_exp_f32 v{VD}, v{VD}")
        e(f"v_mov_b32 v{VM}, v{VT}")
        e(f"v_mul_f32 v{VMC}, s42, v{VT}")
        e(f"v_mul_f32 v{VL}, v{VL}, v{VD}")
        for h in range(4):
            e(f"v_readlane_b32 s{48+h}, v{VD}, {h}")
        e("s_nop 1")
        for i in range(8):
            for r in range(4):
                e(f"v_mul_f32 v{O+4*i+r}, s{48+r}, v{O+4*i+r}")
        e.label(f"L_skip{st}")
        for i in range(8):
            e(f"v_fma_f32 v{S+i}, v{S+i}, s42, -v{VMC}")
        for i in range(8):
            e(f"v_exp_f32 v{S+i}, v{S+i}")
        e("s_nop 0")
        e(f"v_add_f32 v{VT}, v{S}, v{S+1}")
        e(f"v_add_f32 v{VT2}, v{S+2}, v{S+3}")
        e(f"v_add_f32 v{VD}, v{S+4}, v{S+5}")
        e(f"v_add_f32 v{VL}, v{VL}, v{VT}")
        e(f"v_add_f32 v{VT}, v{S+6}, v{S+7}")
        e(f"v_add_f32 v{VT2}, v{VT2}, v{VD}")
        e(f"v_add_f32 v{VL}, v{VL}, v{VT}")
        e(f"v_add_f32 v{VL}, v{VL}, v{VT2}")
        for k in range(4):
            e(f"v_cvt_pk_bf16_f32 v{P+k}, v{S+2*k}, v{S+2*k+1}")
        e("s_waitcnt vmcnt(24)")
        perm_mfma(e, V, TMP, O, P, 40, 41)
        loadV(st, "s47")
    e("s_branch L_loop")
    e.label("L_loopend")
    stamp(5)
    if cfg.STAMP:
        e(f"v_writelane_b32 v{VST}, s97, 12")
    e(f"v_mov_b32 v{VT}, v{VL}")
    e(f"v_mov_b32 v{VT2}, v{VL}")
    e("s_nop 1")
    e(f"v_permlane16_swap_b32 v{VT}, v{VT2}")
    e("s_nop 0")
    e(f"v_add_f32 v{VT}, v{VT}, v{VT2}")
    e(f"v_mov_b32 v{VT2}, v{VT}")
    e("s_nop 1")
    e(f"v_permlane32_swap_b32 v{VT}, v{VT2}")
    e("s_nop 0")
    e(f"v_add_f32 v{VT2}, v{VT}, v{VT2}")
    e(f"v_mov_b32 v{VT}, v{VM}")
    e(f"v_lshlrev_b32 v12, 3, v{VLANE}")
    e("s_lshl_b32 s18, s16, 5")
    e(f"s_add_u32 s18, s18, {LDS_ML}")
    e("v_add_u32 v12, s18, v12")
    e(f"v_lshlrev_b32 v13, 5, v{VLANE}")
    e("s_lshl_b32 s18, s16, 11")
    e("v_add_u32 v13, s18, v13")
    e("s_mov_b64 exec, 0xf")
    e(f"ds_write_b64 v12, v[{VT}:{VT2}]")
    e("s_mov_b64 exec, 0xffff")
    for i in range(8):
        for r in range(4):
            e(f"ds_write_b32 v13, v{O+4*i+r} offset:{LDS_O + r*512 + i*4}")
    e("s_mov_b64 exec, -1")
    e("s_lshr_b32 s94, s80, 2")
    e("s_lshl_b32 s93, s78, 2")
    e("s_add_u32 s94, s94, s93")
    e("s_and_b32 s95, s80, 3")
    e("s_waitcnt vmcnt(0)")
    e("s_cmp_lt_u32 s16, 4")
    e("s_cbranch_scc1 L_pub")
    srd(e, 88, 76, 77, 4194304)
    e("s_sub_u32 s96, s16, 4")
    e("s_lshl_b32 s17, s94, 7")
    e("s_lshl_b32 s18, s96, 5")
    e("s_add_u32 s17, s17, s18")
    e(f"v_lshl_add_u32 v14, v{VG}, 3, s17")
    e("v_lshlrev_b32 v14, 10, v14")
    e(f"v_lshl_add_u32 v14, v{VC}, 4, v14")
    e("s_lshl_b32 s17, s95, 8")
    e("v_add_u32 v14, s17, v14")
    e("v_add_u32 v15, 0x1000, v14")
    for t in range(8):
        vo = 15 if t >= 4 else 14
        e(f"buffer_load_dwordx4 {vr(KB[0]+4*t,4)}, v{vo}, s[88:91], 0 offen offset:{(t&3)*1024}")
    OP_P = 8 * 32 * NSPLIT * 512
    ML_P = 8 * 32 * NSPLIT * 8
    e(f"s_mul_i32 s17, s3, {OP_P}")
    e(f"s_add_u32 s17, s17, {WS_O}")
    e("s_add_u32 s18, s12, s17")
    e("s_addc_u32 s19, s13, 0")
    srd(e, 84, 18, 19, OP_P)
    e(f"s_mul_i32 s17, s3, {ML_P}")
    e(f"s_add_u32 s17, s17, {WS_ML}")
    e("s_add_u32 s18, s12, s17")
    e("s_addc_u32 s19, s13, 0")
    srd(e, 56, 18, 19, ML_P)
    e(f"v_mul_u32_u24 v16, {32*NSPLIT*512}, v{VC}")
    e("s_lshl_b32 s17, s96, 7")
    e("v_add_u32 v16, s17, v16")
    e(f"v_lshl_add_u32 v16, v{VG}, 5, v16")
    e(f"v_mul_u32_u24 v17, {32*NSPLIT*8}, v{VC}")
    e("s_lshl_b32 s18, s96, 12")
    e(f"v_lshl_add_u32 v18, v{VG}, 11, s18")
    e(f"v_lshl_add_u32 v18, v{VC}, 5, v18")
    e("s_waitcnt lgkmcnt(0)")
    e("s_barrier")
    e("s_barrier")
    e("s_barrier")
    PB = KB[1]
    MB = PB + 16
    e(f"s_mul_i32 s17, s94, {NSPLIT*512}")
    for s_ in range(NSPLIT):
        e(f"buffer_load_dwordx4 {vr(PB+8*s_,4)}, v16, s[84:87], s17 offen offset:{s_*512} sc1")
        e(f"buffer_load_dwordx4 {vr(PB+8*s_+4,4)}, v16, s[84:87], s17 offen offset:{s_*512+16} sc1")
    e(f"s_mul_i32 s17, s94, {NSPLIT*8}")
    e(f"buffer_load_dwordx4 {vr(MB,4)}, v17, s[56:59], s17 offen sc1")
    e("s_waitcnt vmcnt(0)")
    e(f"v_max_f32 v19, v{MB}, v{MB+2}")
    for s_ in range(NSPLIT):
        e(f"v_sub_f32 v{MB+2*s_}, v{MB+2*s_}, v19")
        e(f"v_mul_f32 v{MB+2*s_}, s42, v{MB+2*s_}")
        e(f"v_exp_f32 v{MB+2*s_}, v{MB+2*s_}")
    e("s_nop 0")
    e(f"v_mul_f32 v19, v{MB}, v{MB+1}")
    e(f"v_fmac_f32 v19, v{MB+2}, v{MB+3}")
    e("v_rcp_f32 v19, v19")
    e("s_nop 0")
    for s_ in range(NSPLIT):
        e(f"v_mul_f32 v{MB+2*s_}, v{MB+2*s_}, v19")
    for k in range(8):
        e(f"v_mul_f32 v{PB+k}, v{PB+k}, v{MB}")
        e(f"v_fmac_f32 v{PB+k}, v{PB+8+k}, v{MB+2}")
    for k in range(4):
        e(f"v_cvt_pk_bf16_f32 v{P+k}, v{PB+2*k}, v{PB+2*k+1}")
    perm_mfma(e, KB[0], TMP, O, P, 40, 41, first=True)
    e("s_nop 7")
    e("s_mov_b32 exec_lo, -1")
    e("s_mov_b32 exec_hi, 0")
    for i in range(8):
        for r in range(4):
            e(f"ds_write_b32 v18, v{O+4*i+r} offset:{LDS_O + r*512+i*4}")
    e("s_mov_b64 exec, -1")
    e("s_waitcnt lgkmcnt(0)")
    e("s_branch L_ojoin")
    e.label("L_pub")
    e("s_waitcnt lgkmcnt(0)")
    e("s_barrier")
    e("s_lshl_b32 s17, s16, 3")
    e(f"v_mov_b32 v16, s17")
    e("s_lshl_b32 s17, s16, 9")
    e(f"v_lshl_add_u32 v17, v{VLANE}, 3, s17")
    for w in range(NW):
        e(f"ds_read_b64 {vr(72+2*w,2)}, v16 offset:{LDS_ML + w*32}")
    for w in range(NW):
        e(f"ds_read_b64 {vr(104+2*w,2)}, v17 offset:{LDS_O + w*2048}")
    e("s_waitcnt lgkmcnt(0)")
    e("v_max_f32 v18, v72, v74")
    for w in range(2, NW):
        e(f"v_max_f32 v18, v18, v{72+2*w}")
    e("v_mov_b32 v19, 0")
    e("v_mov_b32 v20, 0")
    e("v_mov_b32 v21, 0")
    for w in range(NW):
        e(f"v_sub_f32 v22, v{72+2*w}, v18")
        e("v_mul_f32 v22, s42, v22")
        e("v_exp_f32 v22, v22")
        e("s_nop 0")
        e(f"v_fmac_f32 v19, v22, v{73+2*w}")
        e(f"v_fmac_f32 v20, v22, v{104+2*w}")
        e(f"v_fmac_f32 v21, v22, v{105+2*w}")
    e("s_lshl_b32 s18, s3, 6")
    e("s_add_u32 s18, s18, s14")
    e("s_lshl_b32 s18, s18, 2")
    e("s_add_u32 s18, s18, s16")
    e(f"s_mul_i32 s19, s18, {NSPLIT*512}")
    e("s_lshl_b32 s36, s15, 9")
    e("s_add_u32 s19, s19, s36")
    e(f"s_add_u32 s19, s19, {WS_O}")
    e(f"v_lshlrev_b32 v22, 3, v{VLANE}")
    e("buffer_store_dwordx2 v[20:21], v22, s[28:31], s19 offen sc1")
    e(f"s_mul_i32 s19, s18, {NSPLIT*8}")
    e("s_lshl_b32 s36, s15, 3")
    e("s_add_u32 s19, s19, s36")
    e(f"s_add_u32 s19, s19, {WS_ML}")
    e("s_mov_b64 exec, 1")
    e(f"buffer_store_dwordx2 v[18:19], v{VZ}, s[28:31], s19 offen sc1")
    e("s_mov_b64 exec, -1")
    e("s_waitcnt vmcnt(0)")
    e("s_barrier")
    stamp(6)
    e("s_cmp_lg_u32 s16, 0")
    e("s_cbranch_scc1 L_pub_np")
    e("s_mov_b64 exec, 1")
    e(f"s_add_u32 s17, s82, {CO}")
    e(f"buffer_atomic_add v{VONE}, v{VZ}, s[60:63], s17 offen")
    e("s_mov_b64 exec, -1")
    poll2(e, "o", 60, "s17", 16, 9, VZ, cfg.SLEEP)
    e(f"s_mov_b32 s17, {CZ}")
    poll2(e, "z", 60, "s17", 8, 9, VZ, cfg.SLEEP)
    stamp(7)
    e.label("L_pub_np")
    e("s_barrier")
    e.label("L_ojoin")
    e("s_barrier")
    stamp(8)
    e("v_lshlrev_b32 v8, 2, v0")
    for u in range(2):
        for w in range(4):
            e(f"ds_read_b32 v{72+4*u+w}, v8 offset:{LDS_O + w*4096+u*2048}")
    e("v_lshrrev_b32 v9, 7, v0")
    e("v_and_b32 v10, 127, v0")
    e("v_lshlrev_b32 v9, 12, v9")
    e("v_lshl_add_u32 v9, v10, 2, v9")
    e("s_lshl_b32 s17, s3, 11")
    e("s_lshl_b32 s18, s95, 9")
    e("s_add_u32 s17, s17, s18")
    e(f"s_add_u32 s17, s17, {WS_ACC}")
    e("s_add_u32 s18, s17, 16384")
    e("s_waitcnt lgkmcnt(0)")
    for u in range(2):
        e(f"v_add_f32 v{72+4*u}, v{72+4*u}, v{73+4*u}")
        e(f"v_add_f32 v{74+4*u}, v{74+4*u}, v{75+4*u}")
    for u in range(2):
        e(f"v_add_f32 v{72+4*u}, v{72+4*u}, v{74+4*u}")
    e("buffer_atomic_add_f32 v72, v9, s[28:31], s17 offen")
    e("buffer_atomic_add_f32 v76, v9, s[28:31], s18 offen")
    e("s_waitcnt vmcnt(0)")
    e("s_barrier")
    stamp(9)
    e("s_cmp_lg_u32 s16, 0")
    e("s_cbranch_scc1 L_fin")
    e("s_lshl_b32 s19, s3, 2")
    e("s_add_u32 s19, s19, s95")
    e("s_lshl_b32 s19, s19, 2")
    e(f"s_add_u32 s19, s19, {CF}")
    e("v_mov_b32 v8, 1")
    e("s_mov_b64 exec, 1")
    e(f"buffer_atomic_add v8, v{VZ}, s[60:63], s19 offen sc0")
    e("s_waitcnt vmcnt(0)")
    e("s_mov_b64 exec, -1")
    e("v_readfirstlane_b32 s19, v8")
    stamp(10)
    e("s_cmp_lg_u32 s19, 31")
    e("s_cbranch_scc1 L_fin")
    e(f"v_lshlrev_b32 v9, 3, v{VLANE}")
    for i in range(16):
        e(f"v_mov_b32 v{72+i}, 0")
    e("s_mov_b32 s18, s17")
    for i in range(8):
        e(f"buffer_atomic_add_f32 v{72+2*i}, v9, s[28:31], s18 offen sc0")
        e(f"buffer_atomic_add_f32 v{73+2*i}, v9, s[28:31], s18 offen offset:4 sc0")
        if i < 7:
            e("s_add_u32 s18, s18, 4096")
    srd(e, 64, 52, 53, 16384)
    e("s_lshl_b32 s18, s3, 10")
    e("s_lshl_b32 s19, s95, 8")
    e("s_add_u32 s18, s18, s19")
    e(f"v_lshlrev_b32 v10, 2, v{VLANE}")
    e("s_waitcnt vmcnt(0)")
    for i in range(8):
        e(f"v_cvt_pk_bf16_f32 v{72+2*i}, v{72+2*i}, v{73+2*i}")
        e(f"buffer_store_dword v{72+2*i}, v10, s[64:67], s18 offen")
        if i < 7:
            e("s_add_u32 s18, s18, 2048")
    stamp(11)
    e.label("L_fin")
    if cfg.STAMP:
        srd(e, 28, 12, 13, 0x800000)
        e("s_lshl_b32 s18, s2, 3")
        e("s_add_u32 s18, s18, s16")
        e("s_lshl_b32 s18, s18, 8")
        e("s_add_u32 s18, s18, 0x400000")
        e(f"v_lshlrev_b32 v9, 2, v{VLANE}")
        e(f"buffer_store_dword v{VST}, v9, s[28:31], s18 offen")
    e.label("L_end")
    e("s_endpgm")
    return name, NV, LDS_TOTAL, NWG

def gen_fused3(e, cfg):
    name = NAME + "_kernel"
    NW, NSPLIT = 8, 2
    NWG = 256
    KEYS_WG = 4096
    NTILE = KEYS_WG // 32
    cscale = (128 ** -0.5) * math.log2(math.e)
    VKO0, VKO1, VVO0, VVO1 = 1, 2, 3, 4
    VM, VL, VMC, VT, VT2, VD = 5, 6, 7, 8, 9, 10
    VLANE = 11
    Q = 12; S = 28; P = 36; O = 40
    KB = [72, 104]; VB = [136, 168]; TMP = 200
    VC, VG, VZ, VST, VTK, VONE = 232, 233, 234, 235, 236, 237
    NV = 238
    LDS_O = 0
    LDS_ML = 16384
    LDS_Q = LDS_ML + 256
    LDS_TK = LDS_Q + 1024
    LDS_TOTAL = LDS_TK + 16
    CQ, CO, CF, CZ = 0, 64, 128, 160
    def stamp(i):
        if cfg.STAMP:
            e("s_memrealtime s[98:99]")
            e("s_waitcnt lgkmcnt(0)")
            e(f"v_writelane_b32 v{VST}, s98, {i}")
    kernel_begin(e, name)
    e(f"s_cmp_ge_u32 s2, {NWG}")
    e("s_cbranch_scc1 L_end")
    if cfg.STAMP:
        e(f"v_mov_b32 v{VST}, 0")
    stamp(0)
    e("s_lshr_b32 s3, s2, 7")
    e("s_lshr_b32 s14, s2, 1")
    e("s_and_b32 s14, s14, 63")
    e("s_and_b32 s15, s2, 1")
    e("s_mul_i32 s4, s3, 40")
    e("s_add_u32 s6, s0, s4")
    e("s_addc_u32 s7, s1, 0")
    e("s_load_dwordx8 s[68:75], s[6:7], 0")
    e("s_load_dwordx2 s[76:77], s[6:7], 32")
    e("s_load_dwordx4 s[52:55], s[0:1], 80")
    e("s_load_dwordx2 s[12:13], s[0:1], 96")
    e(f"v_and_b32 v{VLANE}, 63, v0")
    e("v_lshrrev_b32 v5, 6, v0")
    e("s_nop 0")
    e("v_readfirstlane_b32 s16, v5")
    e(f"v_and_b32 v{VC}, 15, v{VLANE}")
    e(f"v_lshrrev_b32 v{VG}, 4, v{VLANE}")
    e(f"v_mov_b32 v{VZ}, 0")
    e(f"v_mov_b32 v{VONE}, 1")
    e(f"v_and_b32 v8, 3, v{VC}")
    e(f"v_lshrrev_b32 v9, 2, v{VC}")
    e("v_lshl_add_u32 v8, v8, 2, v9")
    e("v_lshlrev_b32 v8, 8, v8")
    e(f"v_lshl_add_u32 v{VKO0}, v{VG}, 4, v8")
    e(f"v_add_u32 v{VKO1}, 0x1000, v{VKO0}")
    e(f"v_lshlrev_b32 v{VVO0}, 4, v{VLANE}")
    e(f"v_add_u32 v{VVO1}, 0x1000, v{VVO0}")
    e("s_mov_b32 s40, 0x05040100")
    e("s_mov_b32 s41, 0x07060302")
    e(f"s_mov_b32 s42, {f2u(cscale):#x}")
    e("s_and_b32 s78, s14, 7")
    e("s_lshr_b32 s79, s14, 3")
    e("s_lshl_b32 s80, s79, 1")
    e("s_add_u32 s80, s80, s15")
    e("s_lshl_b32 s81, s3, 3")
    e("s_add_u32 s81, s81, s78")
    e("s_lshl_b32 s82, s81, 2")
    e("s_lshl_b32 s17, s14, 21")
    e(f"s_mul_i32 s18, s15, {KEYS_WG*256}")
    e("s_add_u32 s17, s17, s18")
    e("s_sub_u32 s44, s16, 4")
    e("s_mov_b32 s45, s16")
    e("s_waitcnt lgkmcnt(0)")
    e("s_add_u32 s8, s70, s17")
    e("s_addc_u32 s9, s71, 0")
    e("s_add_u32 s10, s72, s17")
    e("s_addc_u32 s11, s73, 0")
    srd(e, 20, 8, 9, KEYS_WG * 256)
    srd(e, 24, 10, 11, KEYS_WG * 256)
    srd(e, 28, 12, 13, 0x220000)
    srd(e, 60, 54, 55, 256)
    def loadK(st, soff):
        for T in range(2):
            for j in range(4):
                vo = VKO1 if T else VKO0
                e(f"buffer_load_dwordx4 {vr(KB[st]+16*T+4*j,4)}, v{vo}, s[20:23], {soff} offen offset:{j*64}{cfg.NT}")
    def loadV(st, soff):
        for t in range(8):
            vo = VVO1 if t >= 4 else VVO0
            e(f"buffer_load_dwordx4 {vr(VB[st]+4*t,4)}, v{vo}, s[24:27], {soff} offen offset:{(t&3)*1024}{cfg.NT}")
    def prefetch():
        e("s_lshl_b32 s47, s44, 13")
        loadK(0, "s47"); loadV(0, "s47")
        e("s_lshl_b32 s47, s45, 13")
        loadK(1, "s47"); loadV(1, "s47")
    e("s_cmp_lt_u32 s16, 4")
    e("s_cbranch_scc1 L_qrole")
    prefetch()
    e("s_branch L_qjoin")
    e.label("L_qrole")
    e("s_lshl_b32 s17, s79, 10")
    e("s_add_u32 s18, s68, s17")
    e("s_addc_u32 s19, s69, 0")
    srd(e, 84, 18, 19, 1024)
    srd(e, 88, 74, 75, 4194304)
    e("s_cmp_ge_u32 s2, 8")
    e("s_cbranch_scc1 L_nozero")
    for k in range(4):
        e(f"v_mov_b32 v{S+k}, 0")
    e("v_lshlrev_b32 v8, 4, v0")
    e("s_lshl_b32 s18, s2, 12")
    e(f"s_add_u32 s18, s18, {WS_ACC}")
    e(f"buffer_store_dwordx4 {vr(S,4)}, v8, s[28:31], s18 offen sc1")
    e.label("L_nozero")
    e(f"v_lshlrev_b32 v8, 10, v{VC}")
    e(f"v_lshl_add_u32 v8, v{VG}, 4, v8")
    e(f"v_lshlrev_b32 v9, 16, v{VG}")
    e(f"v_lshl_add_u32 v9, v{VC}, 4, v9")
    e("s_lshl_b32 s17, s78, 10")
    e("s_lshl_b32 s18, s16, 8")
    e("s_add_u32 s17, s17, s18")
    bufs = [KB[0], KB[1], VB[0], VB[1]]
    e(f"s_lshl_b32 s43, s79, 1")
    def qload(T):
        bq = bufs[T & 3]
        e("s_lshl_b32 s18, s43, 6")
        e(f"buffer_load_dwordx4 {vr(Q+4*(T&3),4)}, v8, s[84:87], s18 offen")
        e("s_lshl_b32 s18, s43, 18")
        e("s_add_u32 s18, s18, s17")
        for t in range(8):
            e(f"buffer_load_dwordx4 {vr(bq+4*t,4)}, v9, s[88:91], s18 offen")
            if t < 7:
                e("s_add_u32 s18, s18, 8192")
        e("s_add_u32 s43, s43, 1")
        e("s_and_b32 s43, s43, 15")
    for T in range(4):
        qload(T)
    for T in range(16):
        rem = min(3, 15 - T)
        e(f"s_waitcnt vmcnt({9*rem})")
        perm_mfma(e, bufs[T & 3], TMP, O, Q + 4*(T & 3), 40, 41, first=(T == 0))
        if T + 4 < 16:
            qload(T + 4)
    stamp(1)
    e("s_nop 7")
    for k in range(4):
        e(f"v_cvt_pk_bf16_f32 v{S+k}, v{O+8*k}, v{O+8*k+4}")
    e(f"v_lshlrev_b32 v8, 4, v{VLANE}")
    e("s_lshl_b32 s18, s16, 8")
    e("v_add_u32 v8, s18, v8")
    e("s_mov_b64 exec, 0xffff")
    e(f"ds_write_b128 v8, {vr(S,4)} offset:{LDS_Q}")
    e("s_mov_b64 exec, 1")
    e("v_mov_b32 v9, 8")
    e(f"ds_write_b32 v{VZ}, v9 offset:{LDS_TK}")
    e("s_mov_b64 exec, -1")
    e("s_waitcnt lgkmcnt(0)")
    e.label("L_qjoin")
    e("s_barrier")
    stamp(4)
    e("s_cmp_ge_u32 s2, 8")
    e("s_cbranch_scc1 L_nozero2")
    e("s_cmp_lg_u32 s16, 0")
    e("s_cbranch_scc1 L_nozero2")
    e("s_mov_b64 exec, 1")
    e(f"buffer_atomic_add v{VONE}, v{VZ}, s[60:63], 0 offen offset:{CZ}")
    e("s_mov_b64 exec, -1")
    e("s_waitcnt vmcnt(0)")
    e.label("L_nozero2")
    e("s_lshr_b32 s94, s80, 2")
    e("s_lshl_b32 s93, s78, 2")
    e("s_add_u32 s94, s94, s93")
    e("s_and_b32 s95, s80, 3")
    e("s_cmp_lt_u32 s16, 4")
    e("s_cbranch_scc1 L_helper")
    for i in range(32):
        e(f"v_mov_b32 v{O+i}, 0")
    for i in range(16):
        e(f"v_mov_b32 v{Q+i}, 0")
    e(f"v_lshlrev_b32 v8, 8, v{VC}")
    e(f"v_lshl_add_u32 v8, v{VG}, 4, v8")
    e(f"v_cmp_gt_u32 vcc, 4, v{VC}")
    e("s_and_saveexec_b64 s[34:35], vcc")
    for j in range(4):
        e(f"ds_read_b128 {vr(Q+4*j,4)}, v8 offset:{LDS_Q + j*64}")
    e("s_mov_b64 exec, s[34:35]")
    e(f"v_mov_b32 v{VM}, 0xff800000")
    e(f"v_mov_b32 v{VL}, 0")
    e(f"v_mov_b32 v{VMC}, 0")
    e("s_waitcnt lgkmcnt(0)")
    e("s_mov_b32 s97, 0")
    e.label("L_loop")
    for st in range(2):
        K, V = KB[st], VB[st]
        tk = 44 + st
        e(f"s_cmp_ge_u32 s{tk}, {NTILE}")
        e("s_cbranch_scc1 L_loopend")
        if cfg.STAMP:
            e("s_add_u32 s97, s97, 1")
            e("s_and_b32 s100, s97, 3")
            e("s_cmp_lg_u32 s100, 0")
            e(f"s_cbranch_scc1 L_nost{st}")
            e("s_memrealtime s[98:99]")
            e("s_lshr_b32 s100, s97, 2")
            e("s_add_u32 s100, s100, 20")
            e("s_waitcnt lgkmcnt(0)")
            e("s_nop 3")
            e("s_mov_b32 m0, s100")
            e("s_nop 1")
            e(f"v_writelane_b32 v{VST}, s98, m0")
            e.label(f"L_nost{st}")
        e("s_mov_b64 exec, 1")
        e(f"ds_add_rtn_u32 v{VTK}, v{VZ}, v{VONE} offset:{LDS_TK}")
        e("s_mov_b64 exec, -1")
        e("s_waitcnt vmcnt(24)")
        for j in range(4):
            for T in range(2):
                c = "0" if j == 0 else vr(S+4*T, 4)
                e(f"v_mfma_f32_16x16x32_bf16 {vr(S+4*T,4)}, {vr(K+16*T+4*j,4)}, {vr(Q+4*j,4)}, {c}")
        e("s_waitcnt lgkmcnt(0)")
        e(f"v_readfirstlane_b32 s{tk}, v{VTK}")
        e(f"s_lshl_b32 s47, s{tk}, 13")
        e(f"s_cmp_ge_u32 s{tk}, {NTILE}")
        e("s_cselect_b32 s47, 0x40000000, s47")
        loadK(st, "s47")
        e(f"v_max3_f32 v{VT}, v{S}, v{S+1}, v{S+2}")
        e(f"v_max3_f32 v{VT}, v{VT}, v{S+3}, v{S+4}")
        e(f"v_max3_f32 v{VT}, v{VT}, v{S+5}, v{S+6}")
        e(f"v_max3_f32 v{VT}, v{VT}, v{S+7}, v{VM}")
        e(f"v_mov_b32 v{VT2}, v{VT}")
        e("s_nop 1")
        e(f"v_permlane16_swap_b32 v{VT}, v{VT2}")
        e("s_nop 0")
        e(f"v_max_f32 v{VT}, v{VT}, v{VT2}")
        e(f"v_mov_b32 v{VT2}, v{VT}")
        e("s_nop 1")
        e(f"v_permlane32_swap_b32 v{VT}, v{VT2}")
        e("s_nop 0")
        e(f"v_max_f32 v{VT}, v{VT}, v{VT2}")
        e(f"v_cmp_gt_f32 vcc, v{VT}, v{VM}")
        e(f"s_cbranch_vccz L_skip{st}")
        e(f"v_sub_f32 v{VD}, v{VM}, v{VT}")
        e(f"v_mul_f32 v{VD}, s42, v{VD}")
        e(f"v_exp_f32 v{VD}, v{VD}")
        e(f"v_mov_b32 v{VM}, v{VT}")
        e(f"v_mul_f32 v{VMC}, s42, v{VT}")
        e(f"v_mul_f32 v{VL}, v{VL}, v{VD}")
        for h in range(4):
            e(f"v_readlane_b32 s{48+h}, v{VD}, {h}")
        e("s_nop 1")
        for i in range(8):
            for r in range(4):
                e(f"v_mul_f32 v{O+4*i+r}, s{48+r}, v{O+4*i+r}")
        e.label(f"L_skip{st}")
        for i in range(8):
            e(f"v_fma_f32 v{S+i}, v{S+i}, s42, -v{VMC}")
        for i in range(8):
            e(f"v_exp_f32 v{S+i}, v{S+i}")
        e("s_nop 0")
        e(f"v_add_f32 v{VT}, v{S}, v{S+1}")
        e(f"v_add_f32 v{VT2}, v{S+2}, v{S+3}")
        e(f"v_add_f32 v{VD}, v{S+4}, v{S+5}")
        e(f"v_add_f32 v{VL}, v{VL}, v{VT}")
        e(f"v_add_f32 v{VT}, v{S+6}, v{S+7}")
        e(f"v_add_f32 v{VT2}, v{VT2}, v{VD}")
        e(f"v_add_f32 v{VL}, v{VL}, v{VT}")
        e(f"v_add_f32 v{VL}, v{VL}, v{VT2}")
        for k in range(4):
            e(f"v_cvt_pk_bf16_f32 v{P+k}, v{S+2*k}, v{S+2*k+1}")
        e("s_waitcnt vmcnt(24)")
        perm_mfma(e, V, TMP, O, P, 40, 41)
        loadV(st, "s47")
    e("s_branch L_loop")
    e.label("L_loopend")
    stamp(5)
    if cfg.STAMP:
        e(f"v_writelane_b32 v{VST}, s97, 12")
    e(f"v_mov_b32 v{VT}, v{VL}")
    e(f"v_mov_b32 v{VT2}, v{VL}")
    e("s_nop 1")
    e(f"v_permlane16_swap_b32 v{VT}, v{VT2}")
    e("s_nop 0")
    e(f"v_add_f32 v{VT}, v{VT}, v{VT2}")
    e(f"v_mov_b32 v{VT2}, v{VT}")
    e("s_nop 1")
    e(f"v_permlane32_swap_b32 v{VT}, v{VT2}")
    e("s_nop 0")
    e(f"v_add_f32 v{VT2}, v{VT}, v{VT2}")
    e(f"v_mov_b32 v{VT}, v{VM}")
    e("s_sub_u32 s96, s16, 4")
    e(f"v_lshlrev_b32 v12, 3, v{VLANE}")
    e("s_lshl_b32 s18, s96, 5")
    e(f"s_add_u32 s18, s18, {LDS_ML}")
    e("v_add_u32 v12, s18, v12")
    e(f"v_lshlrev_b32 v13, 5, v{VLANE}")
    e("s_lshl_b32 s18, s96, 11")
    e("v_add_u32 v13, s18, v13")
    e("s_mov_b64 exec, 0xf")
    e(f"ds_write_b64 v12, v[{VT}:{VT2}]")
    e("s_mov_b64 exec, 0xffff")
    for i in range(8):
        for r in range(4):
            e(f"ds_write_b32 v13, v{O+4*i+r} offset:{LDS_O + r*512 + i*4}")
    e("s_mov_b64 exec, -1")
    e("s_waitcnt vmcnt(0) lgkmcnt(0)")
    e("s_barrier")
    e("s_barrier")
    e("s_barrier")
    e("s_branch L_ojoin")
    e.label("L_helper")
    srd(e, 88, 76, 77, 4194304)
    e("s_lshl_b32 s17, s94, 7")
    e("s_lshl_b32 s18, s16, 5")
    e("s_add_u32 s17, s17, s18")
    e(f"v_lshl_add_u32 v14, v{VG}, 3, s17")
    e("v_lshlrev_b32 v14, 10, v14")
    e(f"v_lshl_add_u32 v14, v{VC}, 4, v14")
    e("s_lshl_b32 s17, s95, 8")
    e("v_add_u32 v14, s17, v14")
    e("v_add_u32 v15, 0x1000, v14")
    for t in range(8):
        vo = 15 if t >= 4 else 14
        e(f"buffer_load_dwordx4 {vr(VB[0]+4*t,4)}, v{vo}, s[88:91], 0 offen offset:{(t&3)*1024}")
    OP_P = 8 * 32 * NSPLIT * 512
    ML_P = 8 * 32 * NSPLIT * 8
    e(f"s_mul_i32 s17, s3, {OP_P}")
    e(f"s_add_u32 s17, s17, {WS_O}")
    e("s_add_u32 s18, s12, s17")
    e("s_addc_u32 s19, s13, 0")
    srd(e, 84, 18, 19, OP_P)
    e(f"s_mul_i32 s17, s3, {ML_P}")
    e(f"s_add_u32 s17, s17, {WS_ML}")
    e("s_add_u32 s18, s12, s17")
    e("s_addc_u32 s19, s13, 0")
    srd(e, 56, 18, 19, ML_P)
    e(f"v_mul_u32_u24 v24, {32*NSPLIT*512}, v{VC}")
    e("s_lshl_b32 s17, s16, 7")
    e("v_add_u32 v24, s17, v24")
    e(f"v_lshl_add_u32 v24, v{VG}, 5, v24")
    e(f"v_mul_u32_u24 v25, {32*NSPLIT*8}, v{VC}")
    e("s_lshl_b32 s18, s16, 12")
    e(f"v_lshl_add_u32 v26, v{VG}, 11, s18")
    e(f"v_lshl_add_u32 v26, v{VC}, 5, v26")
    e("s_lshl_b32 s17, s16, 3")
    e(f"v_mov_b32 v16, s17")
    e("s_lshl_b32 s17, s16, 9")
    e(f"v_lshl_add_u32 v17, v{VLANE}, 3, s17")
    e("s_lshl_b32 s18, s3, 6")
    e("s_add_u32 s18, s18, s14")
    e("s_lshl_b32 s18, s18, 2")
    e("s_add_u32 s18, s18, s16")
    e(f"s_mul_i32 s19, s18, {NSPLIT*512}")
    e("s_lshl_b32 s36, s15, 9")
    e("s_add_u32 s19, s19, s36")
    e(f"s_add_u32 s19, s19, {WS_O}")
    e(f"s_mul_i32 s37, s18, {NSPLIT*8}")
    e("s_lshl_b32 s36, s15, 3")
    e("s_add_u32 s37, s37, s36")
    e(f"s_add_u32 s37, s37, {WS_ML}")
    e(f"v_lshlrev_b32 v23, 3, v{VLANE}")
    e("s_waitcnt vmcnt(0)")
    e("s_barrier")
    NS = 4
    for w in range(NS):
        e(f"ds_read_b64 {vr(72+2*w,2)}, v16 offset:{LDS_ML + w*32}")
    for w in range(NS):
        e(f"ds_read_b64 {vr(104+2*w,2)}, v17 offset:{LDS_O + w*2048}")
    e("s_waitcnt lgkmcnt(0)")
    e("v_max_f32 v18, v72, v74")
    for w in range(2, NS):
        e(f"v_max_f32 v18, v18, v{72+2*w}")
    e("v_mov_b32 v19, 0")
    e("v_mov_b32 v20, 0")
    e("v_mov_b32 v21, 0")
    for w in range(NS):
        e(f"v_sub_f32 v22, v{72+2*w}, v18")
        e("v_mul_f32 v22, s42, v22")
        e("v_exp_f32 v22, v22")
        e("s_nop 0")
        e(f"v_fmac_f32 v19, v22, v{73+2*w}")
        e(f"v_fmac_f32 v20, v22, v{104+2*w}")
        e(f"v_fmac_f32 v21, v22, v{105+2*w}")
    e("buffer_store_dwordx2 v[20:21], v23, s[28:31], s19 offen sc1")
    e("s_mov_b64 exec, 1")
    e(f"buffer_store_dwordx2 v[18:19], v{VZ}, s[28:31], s37 offen sc1")
    e("s_mov_b64 exec, -1")
    e("s_waitcnt vmcnt(0)")
    e("s_barrier")
    stamp(6)
    e("s_cmp_lg_u32 s16, 0")
    e("s_cbranch_scc1 L_pub_np")
    e("s_mov_b64 exec, 1")
    e(f"s_add_u32 s17, s82, {CO}")
    e(f"buffer_atomic_add v{VONE}, v{VZ}, s[60:63], s17 offen")
    e("s_mov_b64 exec, -1")
    poll2(e, "o", 60, "s17", 16, 9, VZ, cfg.SLEEP)
    e(f"s_mov_b32 s17, {CZ}")
    poll2(e, "z", 60, "s17", 8, 9, VZ, cfg.SLEEP)
    stamp(7)
    e.label("L_pub_np")
    e("s_barrier")
    PB = KB[1]
    MB = PB + 16
    e(f"s_mul_i32 s17, s94, {NSPLIT*512}")
    for s_ in range(NSPLIT):
        e(f"buffer_load_dwordx4 {vr(PB+8*s_,4)}, v24, s[84:87], s17 offen offset:{s_*512} sc1")
        e(f"buffer_load_dwordx4 {vr(PB+8*s_+4,4)}, v24, s[84:87], s17 offen offset:{s_*512+16} sc1")
    e(f"s_mul_i32 s17, s94, {NSPLIT*8}")
    e(f"buffer_load_dwordx4 {vr(MB,4)}, v25, s[56:59], s17 offen sc1")
    e("s_waitcnt vmcnt(0)")
    e(f"v_max_f32 v19, v{MB}, v{MB+2}")
    for s_ in range(NSPLIT):
        e(f"v_sub_f32 v{MB+2*s_}, v{MB+2*s_}, v19")
        e(f"v_mul_f32 v{MB+2*s_}, s42, v{MB+2*s_}")
        e(f"v_exp_f32 v{MB+2*s_}, v{MB+2*s_}")
    e("s_nop 0")
    e(f"v_mul_f32 v19, v{MB}, v{MB+1}")
    e(f"v_fmac_f32 v19, v{MB+2}, v{MB+3}")
    e("v_rcp_f32 v19, v19")
    e("s_nop 0")
    for s_ in range(NSPLIT):
        e(f"v_mul_f32 v{MB+2*s_}, v{MB+2*s_}, v19")
    for k in range(8):
        e(f"v_mul_f32 v{PB+k}, v{PB+k}, v{MB}")
        e(f"v_fmac_f32 v{PB+k}, v{PB+8+k}, v{MB+2}")
    for k in range(4):
        e(f"v_cvt_pk_bf16_f32 v{P+k}, v{PB+2*k}, v{PB+2*k+1}")
    perm_mfma(e, VB[0], TMP, O, P, 40, 41, first=True)
    e("s_nop 7")
    e("s_mov_b32 exec_lo, -1")
    e("s_mov_b32 exec_hi, 0")
    for i in range(8):
        for r in range(4):
            e(f"ds_write_b32 v26, v{O+4*i+r} offset:{LDS_O + r*512+i*4}")
    e("s_mov_b64 exec, -1")
    e("s_waitcnt lgkmcnt(0)")
    e.label("L_ojoin")
    e("s_barrier")
    stamp(8)
    e("v_lshlrev_b32 v8, 2, v0")
    for u in range(2):
        for w in range(4):
            e(f"ds_read_b32 v{72+4*u+w}, v8 offset:{LDS_O + w*4096+u*2048}")
    e("v_lshrrev_b32 v9, 7, v0")
    e("v_and_b32 v10, 127, v0")
    e("v_lshlrev_b32 v9, 12, v9")
    e("v_lshl_add_u32 v9, v10, 2, v9")
    e("s_lshl_b32 s17, s3, 11")
    e("s_lshl_b32 s18, s95, 9")
    e("s_add_u32 s17, s17, s18")
    e(f"s_add_u32 s17, s17, {WS_ACC}")
    e("s_add_u32 s18, s17, 16384")
    e("s_waitcnt lgkmcnt(0)")
    for u in range(2):
        e(f"v_add_f32 v{72+4*u}, v{72+4*u}, v{73+4*u}")
        e(f"v_add_f32 v{74+4*u}, v{74+4*u}, v{75+4*u}")
    for u in range(2):
        e(f"v_add_f32 v{72+4*u}, v{72+4*u}, v{74+4*u}")
    e("buffer_atomic_add_f32 v72, v9, s[28:31], s17 offen")
    e("buffer_atomic_add_f32 v76, v9, s[28:31], s18 offen")
    e("s_waitcnt vmcnt(0)")
    e("s_barrier")
    stamp(9)
    e("s_cmp_lg_u32 s16, 0")
    e("s_cbranch_scc1 L_fin")
    e("s_lshl_b32 s19, s3, 2")
    e("s_add_u32 s19, s19, s95")
    e("s_lshl_b32 s19, s19, 2")
    e(f"s_add_u32 s19, s19, {CF}")
    e("v_mov_b32 v8, 1")
    e("s_mov_b64 exec, 1")
    e(f"buffer_atomic_add v8, v{VZ}, s[60:63], s19 offen sc0")
    e("s_waitcnt vmcnt(0)")
    e("s_mov_b64 exec, -1")
    e("v_readfirstlane_b32 s19, v8")
    stamp(10)
    e("s_cmp_lg_u32 s19, 31")
    e("s_cbranch_scc1 L_fin")
    e(f"v_lshlrev_b32 v9, 3, v{VLANE}")
    for i in range(16):
        e(f"v_mov_b32 v{72+i}, 0")
    e("s_mov_b32 s18, s17")
    for i in range(8):
        e(f"buffer_atomic_add_f32 v{72+2*i}, v9, s[28:31], s18 offen sc0")
        e(f"buffer_atomic_add_f32 v{73+2*i}, v9, s[28:31], s18 offen offset:4 sc0")
        if i < 7:
            e("s_add_u32 s18, s18, 4096")
    srd(e, 64, 52, 53, 16384)
    e("s_lshl_b32 s18, s3, 10")
    e("s_lshl_b32 s19, s95, 8")
    e("s_add_u32 s18, s18, s19")
    e(f"v_lshlrev_b32 v10, 2, v{VLANE}")
    e("s_waitcnt vmcnt(0)")
    for i in range(8):
        e(f"v_cvt_pk_bf16_f32 v{72+2*i}, v{72+2*i}, v{73+2*i}")
        e(f"buffer_store_dword v{72+2*i}, v10, s[64:67], s18 offen")
        if i < 7:
            e("s_add_u32 s18, s18, 2048")
    stamp(11)
    e.label("L_fin")
    if cfg.STAMP:
        srd(e, 28, 12, 13, 0x800000)
        e("s_lshl_b32 s18, s2, 3")
        e("s_add_u32 s18, s18, s16")
        e("s_lshl_b32 s18, s18, 8")
        e("s_add_u32 s18, s18, 0x400000")
        e(f"v_lshlrev_b32 v9, 2, v{VLANE}")
        e(f"buffer_store_dword v{VST}, v9, s[28:31], s18 offen")
    e.label("L_end")
    e("s_endpgm")
    return name, NV, LDS_TOTAL, NWG

def gen_fused4(e, cfg):
    name = NAME + "_kernel"
    NW, NSPLIT = 8, 2
    NWG = 256
    KEYS_WG = 4096
    NTILE = KEYS_WG // 32
    cscale = (128 ** -0.5) * math.log2(math.e)
    VKO0, VKO1, VVO0, VVO1 = 1, 2, 3, 4
    VM, VL, VMC, VT, VT2, VD = 5, 6, 7, 8, 9, 10
    VLANE = 11
    Q = 12; S = 28; P = 36; O = 40
    KB = [72, 104]; VB = [136, 168]; TMP = 200
    VC, VG, VZ, VST, VTK, VONE = 232, 233, 234, 235, 236, 237
    NV = 238
    LDS_O = 0
    LDS_ML = 16384
    LDS_Q = LDS_ML + 256
    LDS_TK = LDS_Q + 1024
    LDS_TOTAL = LDS_TK + 16
    CQ, CO, CF, CZ = 0, 64, 128, 160
    WS_FLAG = 0x218000
    def stamp(i):
        if cfg.STAMP:
            e("s_memrealtime s[98:99]")
            e("s_waitcnt lgkmcnt(0)")
            e(f"v_writelane_b32 v{VST}, s98, {i}")
    kernel_begin(e, name)
    e(f"s_cmp_ge_u32 s2, {NWG}")
    e("s_cbranch_scc1 L_end")
    if cfg.STAMP:
        e(f"v_mov_b32 v{VST}, 0")
    stamp(0)
    e("s_lshr_b32 s3, s2, 7")
    e("s_lshr_b32 s14, s2, 1")
    e("s_and_b32 s14, s14, 63")
    e("s_and_b32 s15, s2, 1")
    e("s_mul_i32 s4, s3, 40")
    e("s_add_u32 s6, s0, s4")
    e("s_addc_u32 s7, s1, 0")
    e("s_load_dwordx8 s[68:75], s[6:7], 0")
    e("s_load_dwordx2 s[76:77], s[6:7], 32")
    e("s_load_dwordx4 s[52:55], s[0:1], 80")
    e("s_load_dwordx2 s[12:13], s[0:1], 96")
    e(f"v_and_b32 v{VLANE}, 63, v0")
    e("v_lshrrev_b32 v5, 6, v0")
    e("s_nop 0")
    e("v_readfirstlane_b32 s16, v5")
    e(f"v_and_b32 v{VC}, 15, v{VLANE}")
    e(f"v_lshrrev_b32 v{VG}, 4, v{VLANE}")
    e(f"v_mov_b32 v{VZ}, 0")
    e(f"v_mov_b32 v{VONE}, 1")
    e(f"v_and_b32 v8, 3, v{VC}")
    e(f"v_lshrrev_b32 v9, 2, v{VC}")
    e("v_lshl_add_u32 v8, v8, 2, v9")
    e("v_lshlrev_b32 v8, 8, v8")
    e(f"v_lshl_add_u32 v{VKO0}, v{VG}, 4, v8")
    e(f"v_add_u32 v{VKO1}, 0x1000, v{VKO0}")
    e(f"v_lshlrev_b32 v{VVO0}, 4, v{VLANE}")
    e(f"v_add_u32 v{VVO1}, 0x1000, v{VVO0}")
    e("s_mov_b32 s40, 0x05040100")
    e("s_mov_b32 s41, 0x07060302")
    e(f"s_mov_b32 s42, {f2u(cscale):#x}")
    e("s_and_b32 s78, s14, 7")
    e("s_lshr_b32 s79, s14, 3")
    e("s_lshl_b32 s80, s79, 1")
    e("s_add_u32 s80, s80, s15")
    e("s_lshl_b32 s81, s3, 3")
    e("s_add_u32 s81, s81, s78")
    e("s_lshl_b32 s82, s81, 2")
    e("s_lshl_b32 s17, s14, 21")
    e(f"s_mul_i32 s18, s15, {KEYS_WG*256}")
    e("s_add_u32 s17, s17, s18")
    e("s_sub_u32 s44, s16, 4")
    e("s_mov_b32 s45, s16")
    e("s_waitcnt lgkmcnt(0)")
    e("s_add_u32 s8, s70, s17")
    e("s_addc_u32 s9, s71, 0")
    e("s_add_u32 s10, s72, s17")
    e("s_addc_u32 s11, s73, 0")
    srd(e, 20, 8, 9, KEYS_WG * 256)
    srd(e, 24, 10, 11, KEYS_WG * 256)
    srd(e, 28, 12, 13, 0x220000)
    srd(e, 60, 54, 55, 256)
    def loadK(st, soff):
        for T in range(2):
            for j in range(4):
                vo = VKO1 if T else VKO0
                e(f"buffer_load_dwordx4 {vr(KB[st]+16*T+4*j,4)}, v{vo}, s[20:23], {soff} offen offset:{j*64}{cfg.NT}")
    def loadV(st, soff):
        for t in range(8):
            vo = VVO1 if t >= 4 else VVO0
            e(f"buffer_load_dwordx4 {vr(VB[st]+4*t,4)}, v{vo}, s[24:27], {soff} offen offset:{(t&3)*1024}{cfg.NT}")
    def prefetch():
        e("s_lshl_b32 s47, s44, 13")
        loadK(0, "s47"); loadV(0, "s47")
        e("s_lshl_b32 s47, s45, 13")
        loadK(1, "s47"); loadV(1, "s47")
    e("s_cmp_lt_u32 s16, 4")
    e("s_cbranch_scc1 L_qrole")
    prefetch()
    e("s_branch L_qjoin")
    e.label("L_qrole")
    e("s_lshl_b32 s17, s79, 10")
    e("s_add_u32 s18, s68, s17")
    e("s_addc_u32 s19, s69, 0")
    srd(e, 84, 18, 19, 1024)
    srd(e, 88, 74, 75, 4194304)
    e("s_lshl_b32 s46, s2, 7")
    e(f"s_add_u32 s46, s46, {WS_FLAG}")
    e("s_mov_b64 exec, 1")
    e(f"buffer_store_dword v{VZ}, v{VZ}, s[28:31], s46 offen sc1")
    e("s_mov_b64 exec, -1")
    e("s_cmp_ge_u32 s2, 8")
    e("s_cbranch_scc1 L_nozero")
    for k in range(4):
        e(f"v_mov_b32 v{S+k}, 0")
    e("v_lshlrev_b32 v8, 4, v0")
    e("s_lshl_b32 s18, s2, 12")
    e(f"s_add_u32 s18, s18, {WS_ACC}")
    e(f"buffer_store_dwordx4 {vr(S,4)}, v8, s[28:31], s18 offen sc1")
    e.label("L_nozero")
    e(f"v_lshlrev_b32 v8, 10, v{VC}")
    e(f"v_lshl_add_u32 v8, v{VG}, 4, v8")
    e(f"v_lshlrev_b32 v9, 16, v{VG}")
    e(f"v_lshl_add_u32 v9, v{VC}, 4, v9")
    e("s_lshl_b32 s17, s78, 10")
    e("s_lshl_b32 s18, s16, 8")
    e("s_add_u32 s17, s17, s18")
    bufs = [KB[0], KB[1], VB[0], VB[1]]
    e(f"s_lshl_b32 s43, s79, 1")
    def qload(T):
        bq = bufs[T & 3]
        e("s_lshl_b32 s18, s43, 6")
        e(f"buffer_load_dwordx4 {vr(Q+4*(T&3),4)}, v8, s[84:87], s18 offen")
        e("s_lshl_b32 s18, s43, 18")
        e("s_add_u32 s18, s18, s17")
        for t in range(8):
            e(f"buffer_load_dwordx4 {vr(bq+4*t,4)}, v9, s[88:91], s18 offen")
            if t < 7:
                e("s_add_u32 s18, s18, 8192")
        e("s_add_u32 s43, s43, 1")
        e("s_and_b32 s43, s43, 15")
    for T in range(4):
        qload(T)
    for T in range(16):
        rem = min(3, 15 - T)
        e(f"s_waitcnt vmcnt({9*rem})")
        perm_mfma(e, bufs[T & 3], TMP, O, Q + 4*(T & 3), 40, 41, first=(T == 0))
        if T + 4 < 16:
            qload(T + 4)
    stamp(1)
    e("s_nop 7")
    for k in range(4):
        e(f"v_cvt_pk_bf16_f32 v{S+k}, v{O+8*k}, v{O+8*k+4}")
    e(f"v_lshlrev_b32 v8, 4, v{VLANE}")
    e("s_lshl_b32 s18, s16, 8")
    e("v_add_u32 v8, s18, v8")
    e("s_mov_b64 exec, 0xffff")
    e(f"ds_write_b128 v8, {vr(S,4)} offset:{LDS_Q}")
    e("s_mov_b64 exec, 1")
    e("v_mov_b32 v9, 8")
    e(f"ds_write_b32 v{VZ}, v9 offset:{LDS_TK}")
    e("s_mov_b64 exec, -1")
    e("s_waitcnt lgkmcnt(0)")
    e.label("L_qjoin")
    e("s_barrier")
    stamp(4)
    e("s_cmp_ge_u32 s2, 8")
    e("s_cbranch_scc1 L_nozero2")
    e("s_cmp_lg_u32 s16, 0")
    e("s_cbranch_scc1 L_nozero2")
    e("s_mov_b64 exec, 1")
    e(f"buffer_atomic_add v{VONE}, v{VZ}, s[60:63], 0 offen offset:{CZ}")
    e("s_mov_b64 exec, -1")
    e("s_waitcnt vmcnt(0)")
    e.label("L_nozero2")
    e("s_lshr_b32 s94, s80, 2")
    e("s_lshl_b32 s93, s78, 2")
    e("s_add_u32 s94, s94, s93")
    e("s_and_b32 s95, s80, 3")
    e("s_cmp_lt_u32 s16, 4")
    e("s_cbranch_scc1 L_helper")
    for i in range(32):
        e(f"v_mov_b32 v{O+i}, 0")
    for i in range(16):
        e(f"v_mov_b32 v{Q+i}, 0")
    e(f"v_lshlrev_b32 v8, 8, v{VC}")
    e(f"v_lshl_add_u32 v8, v{VG}, 4, v8")
    e(f"v_cmp_gt_u32 vcc, 4, v{VC}")
    e("s_and_saveexec_b64 s[34:35], vcc")
    for j in range(4):
        e(f"ds_read_b128 {vr(Q+4*j,4)}, v8 offset:{LDS_Q + j*64}")
    e("s_mov_b64 exec, s[34:35]")
    e(f"v_mov_b32 v{VM}, 0xff800000")
    e(f"v_mov_b32 v{VL}, 0")
    e(f"v_mov_b32 v{VMC}, 0")
    e("s_waitcnt lgkmcnt(0)")
    e("s_mov_b32 s97, 0")
    e.label("L_loop")
    for st in range(2):
        K, V = KB[st], VB[st]
        tk = 44 + st
        e(f"s_cmp_ge_u32 s{tk}, {NTILE}")
        e("s_cbranch_scc1 L_loopend")
        if cfg.STAMP:
            e("s_add_u32 s97, s97, 1")
            e("s_and_b32 s100, s97, 3")
            e("s_cmp_lg_u32 s100, 0")
            e(f"s_cbranch_scc1 L_nost{st}")
            e("s_memrealtime s[98:99]")
            e("s_lshr_b32 s100, s97, 2")
            e("s_add_u32 s100, s100, 20")
            e("s_waitcnt lgkmcnt(0)")
            e("s_nop 3")
            e("s_mov_b32 m0, s100")
            e("s_nop 1")
            e(f"v_writelane_b32 v{VST}, s98, m0")
            e.label(f"L_nost{st}")
        e("s_mov_b64 exec, 1")
        e(f"ds_add_rtn_u32 v{VTK}, v{VZ}, v{VONE} offset:{LDS_TK}")
        e("s_mov_b64 exec, -1")
        e("s_waitcnt vmcnt(24)")
        for j in range(4):
            for T in range(2):
                c = "0" if j == 0 else vr(S+4*T, 4)
                e(f"v_mfma_f32_16x16x32_bf16 {vr(S+4*T,4)}, {vr(K+16*T+4*j,4)}, {vr(Q+4*j,4)}, {c}")
        e("s_waitcnt lgkmcnt(0)")
        e(f"v_readfirstlane_b32 s{tk}, v{VTK}")
        e(f"s_lshl_b32 s47, s{tk}, 13")
        e(f"s_cmp_ge_u32 s{tk}, {NTILE}")
        e("s_cselect_b32 s47, 0x40000000, s47")
        loadK(st, "s47")
        e(f"v_max3_f32 v{VT}, v{S}, v{S+1}, v{S+2}")
        e(f"v_max3_f32 v{VT}, v{VT}, v{S+3}, v{S+4}")
        e(f"v_max3_f32 v{VT}, v{VT}, v{S+5}, v{S+6}")
        e(f"v_max3_f32 v{VT}, v{VT}, v{S+7}, v{VM}")
        e(f"v_mov_b32 v{VT2}, v{VT}")
        e("s_nop 1")
        e(f"v_permlane16_swap_b32 v{VT}, v{VT2}")
        e("s_nop 0")
        e(f"v_max_f32 v{VT}, v{VT}, v{VT2}")
        e(f"v_mov_b32 v{VT2}, v{VT}")
        e("s_nop 1")
        e(f"v_permlane32_swap_b32 v{VT}, v{VT2}")
        e("s_nop 0")
        e(f"v_max_f32 v{VT}, v{VT}, v{VT2}")
        e(f"v_cmp_gt_f32 vcc, v{VT}, v{VM}")
        e(f"s_cbranch_vccz L_skip{st}")
        e(f"v_sub_f32 v{VD}, v{VM}, v{VT}")
        e(f"v_mul_f32 v{VD}, s42, v{VD}")
        e(f"v_exp_f32 v{VD}, v{VD}")
        e(f"v_mov_b32 v{VM}, v{VT}")
        e(f"v_mul_f32 v{VMC}, s42, v{VT}")
        e(f"v_mul_f32 v{VL}, v{VL}, v{VD}")
        for h in range(4):
            e(f"v_readlane_b32 s{48+h}, v{VD}, {h}")
        e("s_nop 1")
        for i in range(8):
            for r in range(4):
                e(f"v_mul_f32 v{O+4*i+r}, s{48+r}, v{O+4*i+r}")
        e.label(f"L_skip{st}")
        for i in range(8):
            e(f"v_fma_f32 v{S+i}, v{S+i}, s42, -v{VMC}")
        for i in range(8):
            e(f"v_exp_f32 v{S+i}, v{S+i}")
        e("s_nop 0")
        e(f"v_add_f32 v{VT}, v{S}, v{S+1}")
        e(f"v_add_f32 v{VT2}, v{S+2}, v{S+3}")
        e(f"v_add_f32 v{VD}, v{S+4}, v{S+5}")
        e(f"v_add_f32 v{VL}, v{VL}, v{VT}")
        e(f"v_add_f32 v{VT}, v{S+6}, v{S+7}")
        e(f"v_add_f32 v{VT2}, v{VT2}, v{VD}")
        e(f"v_add_f32 v{VL}, v{VL}, v{VT}")
        e(f"v_add_f32 v{VL}, v{VL}, v{VT2}")
        for k in range(4):
            e(f"v_cvt_pk_bf16_f32 v{P+k}, v{S+2*k}, v{S+2*k+1}")
        e("s_waitcnt vmcnt(24)")
        perm_mfma(e, V, TMP, O, P, 40, 41)
        loadV(st, "s47")
    e("s_branch L_loop")
    e.label("L_loopend")
    stamp(5)
    if cfg.STAMP:
        e(f"v_writelane_b32 v{VST}, s97, 12")
    e(f"v_mov_b32 v{VT}, v{VL}")
    e(f"v_mov_b32 v{VT2}, v{VL}")
    e("s_nop 1")
    e(f"v_permlane16_swap_b32 v{VT}, v{VT2}")
    e("s_nop 0")
    e(f"v_add_f32 v{VT}, v{VT}, v{VT2}")
    e(f"v_mov_b32 v{VT2}, v{VT}")
    e("s_nop 1")
    e(f"v_permlane32_swap_b32 v{VT}, v{VT2}")
    e("s_nop 0")
    e(f"v_add_f32 v{VT2}, v{VT}, v{VT2}")
    e(f"v_mov_b32 v{VT}, v{VM}")
    e("s_sub_u32 s96, s16, 4")
    e(f"v_lshlrev_b32 v12, 3, v{VLANE}")
    e("s_lshl_b32 s18, s96, 5")
    e(f"s_add_u32 s18, s18, {LDS_ML}")
    e("v_add_u32 v12, s18, v12")
    e(f"v_lshlrev_b32 v13, 5, v{VLANE}")
    e("s_lshl_b32 s18, s96, 11")
    e("v_add_u32 v13, s18, v13")
    e("s_mov_b64 exec, 0xf")
    e(f"ds_write_b64 v12, v[{VT}:{VT2}]")
    e("s_mov_b64 exec, 0xffff")
    for i in range(8):
        for r in range(4):
            e(f"ds_write_b32 v13, v{O+4*i+r} offset:{LDS_O + r*512 + i*4}")
    e("s_mov_b64 exec, -1")
    e("s_waitcnt vmcnt(0) lgkmcnt(0)")
    e("s_barrier")
    e("s_barrier")
    e("s_barrier")
    e("s_branch L_ojoin")
    e.label("L_helper")
    srd(e, 88, 76, 77, 4194304)
    e("s_lshl_b32 s17, s94, 7")
    e("s_lshl_b32 s18, s16, 5")
    e("s_add_u32 s17, s17, s18")
    e(f"v_lshl_add_u32 v14, v{VG}, 3, s17")
    e("v_lshlrev_b32 v14, 10, v14")
    e(f"v_lshl_add_u32 v14, v{VC}, 4, v14")
    e("s_lshl_b32 s17, s95, 8")
    e("v_add_u32 v14, s17, v14")
    e("v_add_u32 v15, 0x1000, v14")
    for t in range(8):
        vo = 15 if t >= 4 else 14
        e(f"buffer_load_dwordx4 {vr(VB[0]+4*t,4)}, v{vo}, s[88:91], 0 offen offset:{(t&3)*1024}")
    OP_P = 8 * 32 * NSPLIT * 512
    ML_P = 8 * 32 * NSPLIT * 8
    e(f"s_mul_i32 s17, s3, {OP_P}")
    e(f"s_add_u32 s17, s17, {WS_O}")
    e("s_add_u32 s18, s12, s17")
    e("s_addc_u32 s19, s13, 0")
    srd(e, 84, 18, 19, OP_P)
    e(f"s_mul_i32 s17, s3, {ML_P}")
    e(f"s_add_u32 s17, s17, {WS_ML}")
    e("s_add_u32 s18, s12, s17")
    e("s_addc_u32 s19, s13, 0")
    srd(e, 56, 18, 19, ML_P)
    e(f"v_mul_u32_u24 v24, {32*NSPLIT*512}, v{VC}")
    e("s_lshl_b32 s17, s16, 7")
    e("v_add_u32 v24, s17, v24")
    e(f"v_lshl_add_u32 v24, v{VG}, 5, v24")
    e(f"v_mul_u32_u24 v25, {32*NSPLIT*8}, v{VC}")
    e("s_lshl_b32 s18, s16, 12")
    e(f"v_lshl_add_u32 v26, v{VG}, 11, s18")
    e(f"v_lshl_add_u32 v26, v{VC}, 5, v26")
    e("s_lshl_b32 s17, s16, 3")
    e(f"v_mov_b32 v16, s17")
    e("s_lshl_b32 s17, s16, 9")
    e(f"v_lshl_add_u32 v17, v{VLANE}, 3, s17")
    e("s_lshl_b32 s18, s3, 6")
    e("s_add_u32 s18, s18, s14")
    e("s_lshl_b32 s18, s18, 2")
    e("s_add_u32 s18, s18, s16")
    e(f"s_mul_i32 s19, s18, {NSPLIT*512}")
    e("s_lshl_b32 s36, s15, 9")
    e("s_add_u32 s19, s19, s36")
    e(f"s_add_u32 s19, s19, {WS_O}")
    e(f"s_mul_i32 s37, s18, {NSPLIT*8}")
    e("s_lshl_b32 s36, s15, 3")
    e("s_add_u32 s37, s37, s36")
    e(f"s_add_u32 s37, s37, {WS_ML}")
    e(f"v_lshlrev_b32 v23, 3, v{VLANE}")
    e("s_cmp_lg_u32 s16, 0")
    e("s_cbranch_scc1 L_noz")
    e(f"s_mov_b32 s17, {CZ}")
    poll2(e, "z", 60, "s17", 8, 9, VZ, 64)
    e.label("L_noz")
    e("s_waitcnt vmcnt(0)")
    e("s_barrier")
    NS = 4
    for w in range(NS):
        e(f"ds_read_b64 {vr(72+2*w,2)}, v16 offset:{LDS_ML + w*32}")
    for w in range(NS):
        e(f"ds_read_b64 {vr(104+2*w,2)}, v17 offset:{LDS_O + w*2048}")
    e("s_waitcnt lgkmcnt(0)")
    e("v_max_f32 v18, v72, v74")
    for w in range(2, NS):
        e(f"v_max_f32 v18, v18, v{72+2*w}")
    e("v_mov_b32 v19, 0")
    e("v_mov_b32 v20, 0")
    e("v_mov_b32 v21, 0")
    for w in range(NS):
        e(f"v_sub_f32 v22, v{72+2*w}, v18")
        e("v_mul_f32 v22, s42, v22")
        e("v_exp_f32 v22, v22")
        e("s_nop 0")
        e(f"v_fmac_f32 v19, v22, v{73+2*w}")
        e(f"v_fmac_f32 v20, v22, v{104+2*w}")
        e(f"v_fmac_f32 v21, v22, v{105+2*w}")
    e("buffer_store_dwordx2 v[20:21], v23, s[28:31], s19 offen sc1")
    e("s_mov_b64 exec, 1")
    e(f"buffer_store_dwordx2 v[18:19], v{VZ}, s[28:31], s37 offen sc1")
    e("s_mov_b64 exec, -1")
    e("s_waitcnt vmcnt(0)")
    e("s_barrier")
    stamp(6)
    e("s_cmp_lg_u32 s16, 0")
    e("s_cbranch_scc1 L_pub_np")
    e("s_mov_b64 exec, 1")
    e(f"s_add_u32 s17, s82, {CO}")
    e("v_mov_b32 v8, 1")
    e(f"buffer_atomic_add v8, v{VZ}, s[60:63], s17 offen sc0")
    e("s_waitcnt vmcnt(0)")
    e("s_mov_b64 exec, -1")
    e("v_readfirstlane_b32 s39, v8")
    e("s_cmp_lg_u32 s39, 15")
    e("s_cbranch_scc1 L_waitflag")
    e(f"v_lshrrev_b32 v8, 1, v{VLANE}")
    e("v_lshlrev_b32 v8, 4, v8")
    e(f"v_and_b32 v9, 1, v{VLANE}")
    e("v_add_u32 v8, v8, v9")
    e("v_lshlrev_b32 v8, 7, v8")
    e("s_lshl_b32 s17, s3, 7")
    e("s_lshl_b32 s18, s78, 1")
    e("s_add_u32 s17, s17, s18")
    e("s_lshl_b32 s17, s17, 7")
    e(f"s_add_u32 s17, s17, {WS_FLAG}")
    e("s_mov_b64 exec, 0xffff")
    e(f"buffer_store_dword v{VONE}, v8, s[28:31], s17 offen sc1")
    e("s_mov_b64 exec, -1")
    e("s_branch L_flagdone")
    e.label("L_waitflag")
    poll2(e, "o", 28, "s46", 1, 9, VZ, cfg.SLEEP)
    e.label("L_flagdone")
    stamp(7)
    e.label("L_pub_np")
    e("s_barrier")
    PB = KB[1]
    MB = PB + 16
    e(f"s_mul_i32 s17, s94, {NSPLIT*512}")
    for s_ in range(NSPLIT):
        e(f"buffer_load_dwordx4 {vr(PB+8*s_,4)}, v24, s[84:87], s17 offen offset:{s_*512} sc1")
        e(f"buffer_load_dwordx4 {vr(PB+8*s_+4,4)}, v24, s[84:87], s17 offen offset:{s_*512+16} sc1")
    e(f"s_mul_i32 s17, s94, {NSPLIT*8}")
    e(f"buffer_load_dwordx4 {vr(MB,4)}, v25, s[56:59], s17 offen sc1")
    e("s_waitcnt vmcnt(0)")
    e(f"v_max_f32 v19, v{MB}, v{MB+2}")
    for s_ in range(NSPLIT):
        e(f"v_sub_f32 v{MB+2*s_}, v{MB+2*s_}, v19")
        e(f"v_mul_f32 v{MB+2*s_}, s42, v{MB+2*s_}")
        e(f"v_exp_f32 v{MB+2*s_}, v{MB+2*s_}")
    e("s_nop 0")
    e(f"v_mul_f32 v19, v{MB}, v{MB+1}")
    e(f"v_fmac_f32 v19, v{MB+2}, v{MB+3}")
    e("v_rcp_f32 v19, v19")
    e("s_nop 0")
    for s_ in range(NSPLIT):
        e(f"v_mul_f32 v{MB+2*s_}, v{MB+2*s_}, v19")
    for k in range(8):
        e(f"v_mul_f32 v{PB+k}, v{PB+k}, v{MB}")
        e(f"v_fmac_f32 v{PB+k}, v{PB+8+k}, v{MB+2}")
    for k in range(4):
        e(f"v_cvt_pk_bf16_f32 v{P+k}, v{PB+2*k}, v{PB+2*k+1}")
    perm_mfma(e, VB[0], TMP, O, P, 40, 41, first=True)
    e("s_nop 7")
    e("s_mov_b32 exec_lo, -1")
    e("s_mov_b32 exec_hi, 0")
    for i in range(8):
        for r in range(4):
            e(f"ds_write_b32 v26, v{O+4*i+r} offset:{LDS_O + r*512+i*4}")
    e("s_mov_b64 exec, -1")
    e("s_waitcnt lgkmcnt(0)")
    e.label("L_ojoin")
    e("s_barrier")
    stamp(8)
    e("v_lshlrev_b32 v8, 2, v0")
    for u in range(2):
        for w in range(4):
            e(f"ds_read_b32 v{72+4*u+w}, v8 offset:{LDS_O + w*4096+u*2048}")
    e("v_lshrrev_b32 v9, 7, v0")
    e("v_and_b32 v10, 127, v0")
    e("v_lshlrev_b32 v9, 12, v9")
    e("v_lshl_add_u32 v9, v10, 2, v9")
    e("s_lshl_b32 s17, s3, 11")
    e("s_lshl_b32 s18, s95, 9")
    e("s_add_u32 s17, s17, s18")
    e(f"s_add_u32 s17, s17, {WS_ACC}")
    e("s_add_u32 s18, s17, 16384")
    e("s_waitcnt lgkmcnt(0)")
    for u in range(2):
        e(f"v_add_f32 v{72+4*u}, v{72+4*u}, v{73+4*u}")
        e(f"v_add_f32 v{74+4*u}, v{74+4*u}, v{75+4*u}")
    for u in range(2):
        e(f"v_add_f32 v{72+4*u}, v{72+4*u}, v{74+4*u}")
    e("buffer_atomic_add_f32 v72, v9, s[28:31], s17 offen")
    e("buffer_atomic_add_f32 v76, v9, s[28:31], s18 offen")
    e("s_waitcnt vmcnt(0)")
    e("s_barrier")
    stamp(9)
    e("s_cmp_lg_u32 s16, 0")
    e("s_cbranch_scc1 L_fin")
    e("s_lshl_b32 s19, s3, 2")
    e("s_add_u32 s19, s19, s95")
    e("s_lshl_b32 s19, s19, 2")
    e(f"s_add_u32 s19, s19, {CF}")
    e("v_mov_b32 v8, 1")
    e("s_mov_b64 exec, 1")
    e(f"buffer_atomic_add v8, v{VZ}, s[60:63], s19 offen sc0")
    e("s_waitcnt vmcnt(0)")
    e("s_mov_b64 exec, -1")
    e("v_readfirstlane_b32 s19, v8")
    stamp(10)
    e("s_cmp_lg_u32 s19, 31")
    e("s_cbranch_scc1 L_fin")
    e(f"v_lshlrev_b32 v9, 3, v{VLANE}")
    for i in range(16):
        e(f"v_mov_b32 v{72+i}, 0")
    e("s_mov_b32 s18, s17")
    for i in range(8):
        e(f"buffer_atomic_add_f32 v{72+2*i}, v9, s[28:31], s18 offen sc0")
        e(f"buffer_atomic_add_f32 v{73+2*i}, v9, s[28:31], s18 offen offset:4 sc0")
        if i < 7:
            e("s_add_u32 s18, s18, 4096")
    srd(e, 64, 52, 53, 16384)
    e("s_lshl_b32 s18, s3, 10")
    e("s_lshl_b32 s19, s95, 8")
    e("s_add_u32 s18, s18, s19")
    e(f"v_lshlrev_b32 v10, 2, v{VLANE}")
    e("s_waitcnt vmcnt(0)")
    for i in range(8):
        e(f"v_cvt_pk_bf16_f32 v{72+2*i}, v{72+2*i}, v{73+2*i}")
        e(f"buffer_store_dword v{72+2*i}, v10, s[64:67], s18 offen")
        if i < 7:
            e("s_add_u32 s18, s18, 2048")
    stamp(11)
    e.label("L_fin")
    if cfg.STAMP:
        srd(e, 28, 12, 13, 0x800000)
        e("s_lshl_b32 s18, s2, 3")
        e("s_add_u32 s18, s18, s16")
        e("s_lshl_b32 s18, s18, 8")
        e("s_add_u32 s18, s18, 0x400000")
        e(f"v_lshlrev_b32 v9, 2, v{VLANE}")
        e(f"buffer_store_dword v{VST}, v9, s[28:31], s18 offen")
    e.label("L_end")
    e("s_endpgm")
    return name, NV, LDS_TOTAL, NWG

def gen_fused5(e, cfg):
    name = NAME + "_kernel"
    NW, NSPLIT = 8, 2
    NWG = 256
    KEYS_WG = 4096
    NTILE = KEYS_WG // 32
    cscale = (128 ** -0.5) * math.log2(math.e)
    VKO0, VKO1, VVO0, VVO1 = 1, 2, 3, 4
    VM, VL, VMC, VT, VT2, VD = 5, 6, 7, 8, 9, 10
    VLANE = 11
    Q = 12; S = 28; P = 36; O = 40
    KB = [72, 104]; VB = [136, 168]; TMP = 200
    VC, VG, VZ, VST, VTK, VONE = 232, 233, 234, 235, 236, 237
    NV = 238
    LDS_O = 0
    LDS_ML = 16384
    LDS_Q = LDS_ML + 256
    LDS_TK = LDS_Q + 1024
    LDS_TOTAL = LDS_TK + 16
    CQ, CO, CF, CZ = 16, 0, 32, 48
    WS_FLAG = 0x218000
    def stamp(i):
        if cfg.STAMP:
            e("s_memrealtime s[98:99]")
            e("s_waitcnt lgkmcnt(0)")
            e(f"v_writelane_b32 v{VST}, s98, {i}")
    kernel_begin(e, name)
    e(f"s_cmp_ge_u32 s2, {NWG}")
    e("s_cbranch_scc1 L_end")
    if cfg.STAMP:
        e(f"v_mov_b32 v{VST}, 0")
    stamp(0)
    e("s_lshr_b32 s3, s2, 7")
    e("s_lshr_b32 s14, s2, 1")
    e("s_and_b32 s14, s14, 63")
    e("s_and_b32 s15, s2, 1")
    e("s_mul_i32 s4, s3, 40")
    e("s_add_u32 s6, s0, s4")
    e("s_addc_u32 s7, s1, 0")
    e("s_load_dwordx8 s[68:75], s[6:7], 0")
    e("s_load_dwordx2 s[76:77], s[6:7], 32")
    e("s_load_dwordx4 s[52:55], s[0:1], 80")
    e("s_load_dwordx2 s[12:13], s[0:1], 96")
    e(f"v_and_b32 v{VLANE}, 63, v0")
    e("v_lshrrev_b32 v5, 6, v0")
    e("s_nop 0")
    e("v_readfirstlane_b32 s16, v5")
    e(f"v_and_b32 v{VC}, 15, v{VLANE}")
    e(f"v_lshrrev_b32 v{VG}, 4, v{VLANE}")
    e(f"v_mov_b32 v{VZ}, 0")
    e(f"v_mov_b32 v{VONE}, 1")
    e(f"v_and_b32 v8, 3, v{VC}")
    e(f"v_lshrrev_b32 v9, 2, v{VC}")
    e("v_lshl_add_u32 v8, v8, 2, v9")
    e("v_lshlrev_b32 v8, 8, v8")
    e(f"v_lshl_add_u32 v{VKO0}, v{VG}, 4, v8")
    e(f"v_add_u32 v{VKO1}, 0x1000, v{VKO0}")
    e(f"v_lshlrev_b32 v{VVO0}, 4, v{VLANE}")
    e(f"v_add_u32 v{VVO1}, 0x1000, v{VVO0}")
    e("s_mov_b32 s40, 0x05040100")
    e("s_mov_b32 s41, 0x07060302")
    e(f"s_mov_b32 s42, {f2u(cscale):#x}")
    e("s_and_b32 s78, s14, 7")
    e("s_lshr_b32 s79, s14, 3")
    e("s_lshl_b32 s80, s79, 1")
    e("s_add_u32 s80, s80, s15")
    e("s_lshl_b32 s81, s3, 3")
    e("s_add_u32 s81, s81, s78")
    e("s_and_b32 s82, s81, 3")
    e("s_lshl_b32 s82, s82, 6")
    e("s_lshr_b32 s83, s81, 2")
    e("s_lshl_b32 s83, s83, 2")
    e("s_add_u32 s82, s82, s83")
    e("s_lshl_b32 s17, s14, 21")
    e(f"s_mul_i32 s18, s15, {KEYS_WG*256}")
    e("s_add_u32 s17, s17, s18")
    e("s_sub_u32 s44, s16, 4")
    e("s_mov_b32 s45, s16")
    e("s_waitcnt lgkmcnt(0)")
    e("s_add_u32 s8, s70, s17")
    e("s_addc_u32 s9, s71, 0")
    e("s_add_u32 s10, s72, s17")
    e("s_addc_u32 s11, s73, 0")
    srd(e, 20, 8, 9, KEYS_WG * 256)
    srd(e, 24, 10, 11, KEYS_WG * 256)
    srd(e, 28, 12, 13, 0x220000)
    srd(e, 60, 54, 55, 256)
    def loadK(st, soff):
        for T in range(2):
            for j in range(4):
                if cfg.KCONTIG:
                    vo = VVO1 if T else VVO0
                    e(f"buffer_load_dwordx4 {vr(KB[st]+16*T+4*j,4)}, v{vo}, s[20:23], {soff} offen offset:{j*1024}{cfg.NT}")
                    continue
                vo = VKO1 if T else VKO0
                e(f"buffer_load_dwordx4 {vr(KB[st]+16*T+4*j,4)}, v{vo}, s[20:23], {soff} offen offset:{j*64}{cfg.NT}")
    def loadV(st, soff):
        for t in range(8):
            vo = VVO1 if t >= 4 else VVO0
            e(f"buffer_load_dwordx4 {vr(VB[st]+4*t,4)}, v{vo}, s[24:27], {soff} offen offset:{(t&3)*1024}{cfg.NT}")
    def prefetch():
        steps = [("K", 0, "s44"), ("V", 0, "s44"), ("K", 1, "s45"), ("V", 1, "s45")]
        for n, (kind, st, tk) in enumerate(steps):
            if n == cfg.PRE and cfg.HB:
                e("s_barrier")
            e(f"s_lshl_b32 s47, {tk}, 13")
            (loadK if kind == "K" else loadV)(st, "s47")
            if n < 3 and cfg.THR >= 0:
                e(f"s_waitcnt vmcnt({cfg.THR})")
    e("s_cmp_lt_u32 s16, 4")
    e("s_cbranch_scc1 L_qrole")
    prefetch()
    e("s_branch L_qjoin")
    e.label("L_qrole")
    e("s_lshl_b32 s46, s2, 7")
    e(f"s_add_u32 s46, s46, {WS_FLAG}")
    e("s_cmp_eq_u32 s16, 0")
    e("s_cbranch_scc1 L_qwave")
    if cfg.HB: e("s_barrier")
    e("s_cmp_lg_u32 s16, 1")
    e("s_cbranch_scc1 L_qjoin")
    e("s_cmp_ge_u32 s2, 32")
    e("s_cbranch_scc1 L_qjoin")
    for k in range(4):
        e(f"v_mov_b32 v{S+k}, 0")
    e(f"v_lshlrev_b32 v8, 4, v{VLANE}")
    e("s_lshl_b32 s18, s2, 10")
    e(f"s_add_u32 s18, s18, {WS_ACC}")
    e(f"buffer_store_dwordx4 {vr(S,4)}, v8, s[28:31], s18 offen sc1")
    e("s_waitcnt vmcnt(0)")
    e("s_mov_b64 exec, 1")
    e(f"buffer_atomic_add v{VONE}, v{VZ}, s[60:63], 0 offen offset:{CZ}")
    e("s_mov_b64 exec, -1")
    e("s_branch L_qjoin")
    e.label("L_qwave")
    srd(e, 84, 68, 69, 8192)
    srd(e, 88, 74, 75, 4194304)
    e("s_lshr_b32 s83, s80, 2")
    e("s_and_b32 s92, s80, 3")
    e("s_lshl_b32 s93, s78, 2")
    e("s_add_u32 s92, s92, s93")
    e(f"v_lshlrev_b32 v8, 10, v{VC}")
    e(f"v_lshl_add_u32 v8, v{VG}, 4, v8")
    e("s_lshl_b32 s17, s83, 8")
    bufs = [KB[0], KB[1], VB[0], VB[1]]
    for T in range(4):
        e(f"buffer_load_dwordx4 {vr(Q+4*T,4)}, v8, s[84:87], s17 offen offset:{T*64}")
    e(f"v_lshlrev_b32 v9, 16, v{VG}")
    e(f"v_lshl_add_u32 v9, v{VC}, 4, v9")
    e("s_lshl_b32 s17, s83, 20")
    e("s_lshl_b32 s18, s92, 8")
    e("s_add_u32 s17, s17, s18")
    for T in range(4):
        for t in range(8):
            e(f"buffer_load_dwordx4 {vr(bufs[T]+4*t,4)}, v9, s[88:91], s17 offen")
            e("s_add_u32 s17, s17, 8192")
        if T < 3:
            e(f"s_add_u32 s17, s17, {24*8192}")
    e("s_mov_b64 exec, 3")
    e(f"v_lshlrev_b32 v10, 6, v{VLANE}")
    e(f"buffer_store_dword v{VZ}, v10, s[28:31], s46 offen sc1")
    e("s_mov_b64 exec, 1")
    e("v_mov_b32 v10, 8")
    e(f"ds_write_b32 v{VZ}, v10 offset:{LDS_TK}")
    e("s_mov_b64 exec, -1")
    for T in range(4):
        e(f"s_waitcnt vmcnt({1 + 8*(3-T)})")
        if T == cfg.HB - 1: e("s_barrier")
        stamp(13 + T)
        perm_mfma(e, bufs[T], TMP, O, Q + 4*T, 40, 41, first=(T == 0))
    stamp(1)
    e(f"v_lshlrev_b32 v8, 16, v{VG}")
    e(f"v_lshl_add_u32 v8, v{VC}, 5, v8")
    e("s_lshl_b32 s18, s83, 1")
    e("s_add_u32 s18, s18, s3")
    e("s_lshl_b32 s18, s18, 17")
    e("s_lshl_b32 s19, s92, 9")
    e("s_add_u32 s18, s18, s19")
    e(f"s_add_u32 s18, s18, {WS_Q}")
    e("s_nop 3")
    for r in range(4):
        for i in range(8):
            e(f"v_mov_b32 v{TMP+8*r+i}, v{O+4*i+r}")
    e("s_mov_b32 exec_lo, -1")
    e("s_mov_b32 exec_hi, 0")
    for r in range(4):
        e(f"buffer_store_dwordx4 {vr(TMP+8*r,4)}, v8, s[28:31], s18 offen sc1")
        e(f"buffer_store_dwordx4 {vr(TMP+8*r+4,4)}, v8, s[28:31], s18 offen offset:16 sc1")
        if r < 3:
            e("s_add_u32 s18, s18, 16384")
    e("s_mov_b64 exec, 1")
    e("v_mov_b32 v8, 1")
    e(f"s_add_u32 s17, s82, {CQ}")
    e("s_waitcnt vmcnt(0)")
    if cfg.HB == 5: e("s_barrier")
    stamp(2)
    e(f"buffer_atomic_add v8, v{VZ}, s[60:63], s17 offen sc0")
    e("s_waitcnt vmcnt(0)")
    e("s_mov_b64 exec, -1")
    e("v_readfirstlane_b32 s39, v8")
    e("s_and_b32 s39, s39, 15")
    e("s_cmp_lg_u32 s39, 15")
    e("s_cbranch_scc1 L_waitq")
    e(f"v_lshrrev_b32 v8, 1, v{VLANE}")
    e("v_lshlrev_b32 v8, 4, v8")
    e(f"v_and_b32 v9, 1, v{VLANE}")
    e("v_add_u32 v8, v8, v9")
    e("v_lshlrev_b32 v8, 7, v8")
    e("s_lshl_b32 s17, s3, 7")
    e("s_lshl_b32 s18, s78, 1")
    e("s_add_u32 s17, s17, s18")
    e("s_lshl_b32 s17, s17, 7")
    e(f"s_add_u32 s17, s17, {WS_FLAG}")
    e("s_mov_b64 exec, 0xffff")
    e(f"buffer_store_dword v{VONE}, v8, s[28:31], s17 offen offset:64 sc1")
    e("s_mov_b64 exec, -1")
    e("s_branch L_qflagdone")
    e.label("L_waitq")
    e("s_add_u32 s17, s46, 64")
    poll2(e, "q", 28, "s17", 1, 9, VZ, cfg.SLEEP)
    e.label("L_qflagdone")
    stamp(3)
    e("s_lshl_b32 s18, s14, 11")
    e("s_lshl_b32 s19, s3, 17")
    e("s_add_u32 s18, s18, s19")
    e(f"s_add_u32 s18, s18, {WS_Q}")
    e(f"v_lshlrev_b32 v8, 5, v{VLANE}")
    for ks in range(4):
        e(f"buffer_load_dwordx4 {vr(TMP+8*ks,4)}, v8, s[28:31], s18 offen sc1")
        e(f"buffer_load_dwordx4 {vr(TMP+8*ks+4,4)}, v8, s[28:31], s18 offen offset:16 sc1")
        if ks < 3:
            e("s_add_u32 s18, s18, 0x40000")
    e("s_waitcnt vmcnt(0)")
    for k in range(8):
        e(f"v_add_f32 v{TMP+k}, v{TMP+k}, v{TMP+8+k}")
        e(f"v_add_f32 v{TMP+16+k}, v{TMP+16+k}, v{TMP+24+k}")
    for k in range(8):
        e(f"v_add_f32 v{TMP+k}, v{TMP+k}, v{TMP+16+k}")
    for k in range(4):
        e(f"v_cvt_pk_bf16_f32 v{TMP+k}, v{TMP+2*k}, v{TMP+2*k+1}")
    e(f"v_lshlrev_b32 v8, 4, v{VLANE}")
    e(f"ds_write_b128 v8, {vr(TMP,4)} offset:{LDS_Q}")
    e("s_waitcnt lgkmcnt(0)")
    e.label("L_qjoin")
    e("s_barrier")
    stamp(4)
    e("s_lshr_b32 s94, s80, 2")
    e("s_lshl_b32 s93, s78, 2")
    e("s_add_u32 s94, s94, s93")
    e("s_and_b32 s95, s80, 3")
    e("s_cmp_lt_u32 s16, 4")
    e("s_cbranch_scc1 L_helper")
    for i in range(32):
        e(f"v_mov_b32 v{O+i}, 0")
    for i in range(16):
        e(f"v_mov_b32 v{Q+i}, 0")
    e(f"v_lshlrev_b32 v8, 8, v{VC}")
    e(f"v_lshl_add_u32 v8, v{VG}, 4, v8")
    e(f"v_cmp_gt_u32 vcc, 4, v{VC}")
    e("s_and_saveexec_b64 s[34:35], vcc")
    for j in range(4):
        e(f"ds_read_b128 {vr(Q+4*j,4)}, v8 offset:{LDS_Q + j*64}")
    e("s_mov_b64 exec, s[34:35]")
    e(f"v_mov_b32 v{VM}, 0xff800000")
    e(f"v_mov_b32 v{VL}, 0")
    e(f"v_mov_b32 v{VMC}, 0")
    e("s_waitcnt lgkmcnt(0)")
    e("s_mov_b32 s97, 0")
    e.label("L_loop")
    for st in range(2):
        K, V = KB[st], VB[st]
        tk = 44 + st
        e(f"s_cmp_ge_u32 s{tk}, {NTILE}")
        e("s_cbranch_scc1 L_loopend")
        if cfg.STAMP:
            e("s_add_u32 s97, s97, 1")
            e("s_and_b32 s100, s97, 3")
            e("s_cmp_lg_u32 s100, 0")
            e(f"s_cbranch_scc1 L_nost{st}")
            e("s_memrealtime s[98:99]")
            e("s_lshr_b32 s100, s97, 2")
            e("s_add_u32 s100, s100, 20")
            e("s_waitcnt lgkmcnt(0)")
            e("s_nop 3")
            e("s_mov_b32 m0, s100")
            e("s_nop 1")
            e(f"v_writelane_b32 v{VST}, s98, m0")
            e.label(f"L_nost{st}")
        e("s_mov_b64 exec, 1")
        e(f"ds_add_rtn_u32 v{VTK}, v{VZ}, v{VONE} offset:{LDS_TK}")
        e("s_mov_b64 exec, -1")
        e("s_waitcnt vmcnt(24)")
        for j in range(4):
            for T in range(2):
                c = "0" if j == 0 else vr(S+4*T, 4)
                e(f"v_mfma_f32_16x16x32_bf16 {vr(S+4*T,4)}, {vr(K+16*T+4*j,4)}, {vr(Q+4*j,4)}, {c}")
        e("s_waitcnt lgkmcnt(0)")
        e(f"v_readfirstlane_b32 s{tk}, v{VTK}")
        e(f"s_lshl_b32 s47, s{tk}, 13")
        e(f"s_cmp_ge_u32 s{tk}, {NTILE}")
        e("s_cselect_b32 s47, 0x40000000, s47")
        loadK(st, "s47")
        e(f"v_max3_f32 v{VT}, v{S}, v{S+1}, v{S+2}")
        e(f"v_max3_f32 v{VT}, v{VT}, v{S+3}, v{S+4}")
        e(f"v_max3_f32 v{VT}, v{VT}, v{S+5}, v{S+6}")
        e(f"v_max3_f32 v{VT}, v{VT}, v{S+7}, v{VM}")
        e(f"v_mov_b32 v{VT2}, v{VT}")
        e("s_nop 1")
        e(f"v_permlane16_swap_b32 v{VT}, v{VT2}")
        e("s_nop 0")
        e(f"v_max_f32 v{VT}, v{VT}, v{VT2}")
        e(f"v_mov_b32 v{VT2}, v{VT}")
        e("s_nop 1")
        e(f"v_permlane32_swap_b32 v{VT}, v{VT2}")
        e("s_nop 0")
        e(f"v_max_f32 v{VT}, v{VT}, v{VT2}")
        e(f"v_cmp_gt_f32 vcc, v{VT}, v{VM}")
        e(f"s_cbranch_vccz L_skip{st}")
        e(f"v_sub_f32 v{VD}, v{VM}, v{VT}")
        e(f"v_mul_f32 v{VD}, s42, v{VD}")
        e(f"v_exp_f32 v{VD}, v{VD}")
        e(f"v_mov_b32 v{VM}, v{VT}")
        e(f"v_mul_f32 v{VMC}, s42, v{VT}")
        e(f"v_mul_f32 v{VL}, v{VL}, v{VD}")
        for h in range(4):
            e(f"v_readlane_b32 s{48+h}, v{VD}, {h}")
        e("s_nop 1")
        for i in range(8):
            for r in range(4):
                e(f"v_mul_f32 v{O+4*i+r}, s{48+r}, v{O+4*i+r}")
        e.label(f"L_skip{st}")
        for i in range(8):
            e(f"v_fma_f32 v{S+i}, v{S+i}, s42, -v{VMC}")
        for i in range(8):
            e(f"v_exp_f32 v{S+i}, v{S+i}")
        e("s_nop 0")
        e(f"v_add_f32 v{VT}, v{S}, v{S+1}")
        e(f"v_add_f32 v{VT2}, v{S+2}, v{S+3}")
        e(f"v_add_f32 v{VD}, v{S+4}, v{S+5}")
        e(f"v_add_f32 v{VL}, v{VL}, v{VT}")
        e(f"v_add_f32 v{VT}, v{S+6}, v{S+7}")
        e(f"v_add_f32 v{VT2}, v{VT2}, v{VD}")
        e(f"v_add_f32 v{VL}, v{VL}, v{VT}")
        e(f"v_add_f32 v{VL}, v{VL}, v{VT2}")
        for k in range(4):
            e(f"v_cvt_pk_bf16_f32 v{P+k}, v{S+2*k}, v{S+2*k+1}")
        e("s_waitcnt vmcnt(24)")
        perm_mfma(e, V, TMP, O, P, 40, 41)
        loadV(st, "s47")
    e("s_branch L_loop")
    e.label("L_loopend")
    stamp(5)
    if cfg.STAMP:
        e(f"v_writelane_b32 v{VST}, s97, 12")
    e(f"v_mov_b32 v{VT}, v{VL}")
    e(f"v_mov_b32 v{VT2}, v{VL}")
    e("s_nop 1")
    e(f"v_permlane16_swap_b32 v{VT}, v{VT2}")
    e("s_nop 0")
    e(f"v_add_f32 v{VT}, v{VT}, v{VT2}")
    e(f"v_mov_b32 v{VT2}, v{VT}")
    e("s_nop 1")
    e(f"v_permlane32_swap_b32 v{VT}, v{VT2}")
    e("s_nop 0")
    e(f"v_add_f32 v{VT2}, v{VT}, v{VT2}")
    e(f"v_mov_b32 v{VT}, v{VM}")
    e("s_sub_u32 s96, s16, 4")
    e(f"v_lshlrev_b32 v12, 3, v{VLANE}")
    e("s_lshl_b32 s18, s96, 5")
    e(f"s_add_u32 s18, s18, {LDS_ML}")
    e("v_add_u32 v12, s18, v12")
    e(f"v_lshlrev_b32 v13, 5, v{VLANE}")
    e("s_lshl_b32 s18, s96, 11")
    e("v_add_u32 v13, s18, v13")
    e("s_mov_b64 exec, 0xf")
    e(f"ds_write_b64 v12, v[{VT}:{VT2}]")
    e("s_mov_b64 exec, 0xffff")
    for i in range(8):
        for r in range(4):
            e(f"ds_write_b32 v13, v{O+4*i+r} offset:{LDS_O + r*512 + i*4}")
    e("s_mov_b64 exec, -1")
    e("s_waitcnt vmcnt(0) lgkmcnt(0)")
    e("s_barrier")
    e("s_barrier")
    e("s_barrier")
    e("s_branch L_ojoin")
    e.label("L_helper")
    srd(e, 88, 76, 77, 4194304)
    e("s_lshl_b32 s17, s94, 7")
    e("s_lshl_b32 s18, s16, 5")
    e("s_add_u32 s17, s17, s18")
    e(f"v_lshl_add_u32 v14, v{VG}, 3, s17")
    e("v_lshlrev_b32 v14, 10, v14")
    e(f"v_lshl_add_u32 v14, v{VC}, 4, v14")
    e("s_lshl_b32 s17, s95, 8")
    e("v_add_u32 v14, s17, v14")
    e("v_add_u32 v15, 0x1000, v14")
    for t in range(8):
        vo = 15 if t >= 4 else 14
        e(f"buffer_load_dwordx4 {vr(VB[0]+4*t,4)}, v{vo}, s[88:91], 0 offen offset:{(t&3)*1024}")
    OP_P = 8 * 32 * NSPLIT * 512
    ML_P = 8 * 32 * NSPLIT * 8
    e(f"s_mul_i32 s17, s3, {OP_P}")
    e(f"s_add_u32 s17, s17, {WS_O}")
    e("s_add_u32 s18, s12, s17")
    e("s_addc_u32 s19, s13, 0")
    srd(e, 84, 18, 19, OP_P)
    e(f"s_mul_i32 s17, s3, {ML_P}")
    e(f"s_add_u32 s17, s17, {WS_ML}")
    e("s_add_u32 s18, s12, s17")
    e("s_addc_u32 s19, s13, 0")
    srd(e, 56, 18, 19, ML_P)
    e(f"v_mul_u32_u24 v24, {32*NSPLIT*512}, v{VC}")
    e("s_lshl_b32 s17, s16, 7")
    e("v_add_u32 v24, s17, v24")
    e(f"v_lshl_add_u32 v24, v{VG}, 5, v24")
    e(f"v_mul_u32_u24 v25, {32*NSPLIT*8}, v{VC}")
    e("s_lshl_b32 s18, s16, 12")
    e(f"v_lshl_add_u32 v26, v{VG}, 11, s18")
    e(f"v_lshl_add_u32 v26, v{VC}, 5, v26")
    e("s_lshl_b32 s17, s16, 3")
    e(f"v_mov_b32 v16, s17")
    e("s_lshl_b32 s17, s16, 9")
    e(f"v_lshl_add_u32 v17, v{VLANE}, 3, s17")
    e("s_lshl_b32 s18, s3, 6")
    e("s_add_u32 s18, s18, s14")
    e("s_lshl_b32 s18, s18, 2")
    e("s_add_u32 s18, s18, s16")
    e(f"s_mul_i32 s19, s18, {NSPLIT*512}")
    e("s_lshl_b32 s36, s15, 9")
    e("s_add_u32 s19, s19, s36")
    e(f"s_add_u32 s19, s19, {WS_O}")
    e(f"s_mul_i32 s37, s18, {NSPLIT*8}")
    e("s_lshl_b32 s36, s15, 3")
    e("s_add_u32 s37, s37, s36")
    e(f"s_add_u32 s37, s37, {WS_ML}")
    e(f"v_lshlrev_b32 v23, 3, v{VLANE}")
    e("s_cmp_lg_u32 s16, 0")
    e("s_cbranch_scc1 L_noz")
    e(f"s_mov_b32 s17, {CZ}")
    poll2(e, "z", 60, "s17", 32, 9, VZ, 64)
    e.label("L_noz")
    e("s_waitcnt vmcnt(0)")
    e("s_barrier")
    NS = 4
    for w in range(NS):
        e(f"ds_read_b64 {vr(72+2*w,2)}, v16 offset:{LDS_ML + w*32}")
    for w in range(NS):
        e(f"ds_read_b64 {vr(104+2*w,2)}, v17 offset:{LDS_O + w*2048}")
    e("s_waitcnt lgkmcnt(0)")
    e("v_max_f32 v18, v72, v74")
    for w in range(2, NS):
        e(f"v_max_f32 v18, v18, v{72+2*w}")
    e("v_mov_b32 v19, 0")
    e("v_mov_b32 v20, 0")
    e("v_mov_b32 v21, 0")
    for w in range(NS):
        e(f"v_sub_f32 v22, v{72+2*w}, v18")
        e("v_mul_f32 v22, s42, v22")
        e("v_exp_f32 v22, v22")
        e("s_nop 0")
        e(f"v_fmac_f32 v19, v22, v{73+2*w}")
        e(f"v_fmac_f32 v20, v22, v{104+2*w}")
        e(f"v_fmac_f32 v21, v22, v{105+2*w}")
    e("buffer_store_dwordx2 v[20:21], v23, s[28:31], s19 offen sc1")
    e("s_mov_b64 exec, 1")
    e(f"buffer_store_dwordx2 v[18:19], v{VZ}, s[28:31], s37 offen sc1")
    e("s_mov_b64 exec, -1")
    e("s_waitcnt vmcnt(0)")
    e("s_barrier")
    stamp(6)
    e("s_cmp_lg_u32 s16, 0")
    e("s_cbranch_scc1 L_pub_np")
    e("s_mov_b64 exec, 1")
    e(f"s_add_u32 s17, s82, {CO}")
    e("v_mov_b32 v8, 1")
    e(f"buffer_atomic_add v8, v{VZ}, s[60:63], s17 offen sc0")
    e("s_waitcnt vmcnt(0)")
    e("s_mov_b64 exec, -1")
    e("v_readfirstlane_b32 s39, v8")
    e("s_and_b32 s39, s39, 15")
    e("s_cmp_lg_u32 s39, 15")
    e("s_cbranch_scc1 L_waitflag")
    e(f"v_lshrrev_b32 v8, 1, v{VLANE}")
    e("v_lshlrev_b32 v8, 4, v8")
    e(f"v_and_b32 v9, 1, v{VLANE}")
    e("v_add_u32 v8, v8, v9")
    e("v_lshlrev_b32 v8, 7, v8")
    e("s_lshl_b32 s17, s3, 7")
    e("s_lshl_b32 s18, s78, 1")
    e("s_add_u32 s17, s17, s18")
    e("s_lshl_b32 s17, s17, 7")
    e(f"s_add_u32 s17, s17, {WS_FLAG}")
    e("s_mov_b64 exec, 0xffff")
    e(f"buffer_store_dword v{VONE}, v8, s[28:31], s17 offen sc1")
    e("s_mov_b64 exec, -1")
    e("s_branch L_flagdone")
    e.label("L_waitflag")
    poll2(e, "o", 28, "s46", 1, 9, VZ, cfg.SLEEP)
    e.label("L_flagdone")
    stamp(7)
    e.label("L_pub_np")
    e("s_barrier")
    PB = KB[1]
    MB = PB + 16
    e(f"s_mul_i32 s17, s94, {NSPLIT*512}")
    for s_ in range(NSPLIT):
        e(f"buffer_load_dwordx4 {vr(PB+8*s_,4)}, v24, s[84:87], s17 offen offset:{s_*512} sc1")
        e(f"buffer_load_dwordx4 {vr(PB+8*s_+4,4)}, v24, s[84:87], s17 offen offset:{s_*512+16} sc1")
    e(f"s_mul_i32 s17, s94, {NSPLIT*8}")
    e(f"buffer_load_dwordx4 {vr(MB,4)}, v25, s[56:59], s17 offen sc1")
    e("s_waitcnt vmcnt(0)")
    e(f"v_max_f32 v19, v{MB}, v{MB+2}")
    for s_ in range(NSPLIT):
        e(f"v_sub_f32 v{MB+2*s_}, v{MB+2*s_}, v19")
        e(f"v_mul_f32 v{MB+2*s_}, s42, v{MB+2*s_}")
        e(f"v_exp_f32 v{MB+2*s_}, v{MB+2*s_}")
    e("s_nop 0")
    e(f"v_mul_f32 v19, v{MB}, v{MB+1}")
    e(f"v_fmac_f32 v19, v{MB+2}, v{MB+3}")
    e("v_rcp_f32 v19, v19")
    e("s_nop 0")
    for s_ in range(NSPLIT):
        e(f"v_mul_f32 v{MB+2*s_}, v{MB+2*s_}, v19")
    for k in range(8):
        e(f"v_mul_f32 v{PB+k}, v{PB+k}, v{MB}")
        e(f"v_fmac_f32 v{PB+k}, v{PB+8+k}, v{MB+2}")
    for k in range(4):
        e(f"v_cvt_pk_bf16_f32 v{P+k}, v{PB+2*k}, v{PB+2*k+1}")
    perm_mfma(e, VB[0], TMP, O, P, 40, 41, first=True)
    e("s_nop 7")
    e("s_mov_b32 exec_lo, -1")
    e("s_mov_b32 exec_hi, 0")
    for i in range(8):
        for r in range(4):
            e(f"ds_write_b32 v26, v{O+4*i+r} offset:{LDS_O + r*512+i*4}")
    e("s_mov_b64 exec, -1")
    e("s_waitcnt lgkmcnt(0)")
    e.label("L_ojoin")
    e("s_barrier")
    stamp(8)
    e("v_lshlrev_b32 v8, 2, v0")
    for u in range(2):
        for w in range(4):
            e(f"ds_read_b32 v{72+4*u+w}, v8 offset:{LDS_O + w*4096+u*2048}")
    e("v_lshrrev_b32 v9, 7, v0")
    e("v_and_b32 v10, 127, v0")
    e("v_lshlrev_b32 v9, 12, v9")
    e("v_lshl_add_u32 v9, v10, 2, v9")
    e("s_lshl_b32 s17, s3, 11")
    e("s_lshl_b32 s18, s95, 9")
    e("s_add_u32 s17, s17, s18")
    e(f"s_add_u32 s17, s17, {WS_ACC}")
    e("s_add_u32 s18, s17, 16384")
    e("s_waitcnt lgkmcnt(0)")
    for u in range(2):
        e(f"v_add_f32 v{72+4*u}, v{72+4*u}, v{73+4*u}")
        e(f"v_add_f32 v{74+4*u}, v{74+4*u}, v{75+4*u}")
    for u in range(2):
        e(f"v_add_f32 v{72+4*u}, v{72+4*u}, v{74+4*u}")
    e("buffer_atomic_add_f32 v72, v9, s[28:31], s17 offen")
    e("buffer_atomic_add_f32 v76, v9, s[28:31], s18 offen")
    e("s_waitcnt vmcnt(0)")
    e("s_barrier")
    stamp(9)
    e("s_cmp_lg_u32 s16, 0")
    e("s_cbranch_scc1 L_fin")
    e("s_lshl_b32 s19, s95, 6")
    e("s_lshl_b32 s18, s3, 2")
    e("s_add_u32 s19, s19, s18")
    e(f"s_add_u32 s19, s19, {CF}")
    e("v_mov_b32 v8, 1")
    e("s_mov_b64 exec, 1")
    e(f"buffer_atomic_add v8, v{VZ}, s[60:63], s19 offen sc0")
    e("s_waitcnt vmcnt(0)")
    e("s_mov_b64 exec, -1")
    e("v_readfirstlane_b32 s19, v8")
    stamp(10)
    e("s_and_b32 s19, s19, 31")
    e("s_cmp_lg_u32 s19, 31")
    e("s_cbranch_scc1 L_fin")
    e(f"v_lshlrev_b32 v9, 3, v{VLANE}")
    for i in range(16):
        e(f"v_mov_b32 v{72+i}, 0")
    e("s_mov_b32 s18, s17")
    for i in range(8):
        e(f"buffer_atomic_add_f32 v{72+2*i}, v9, s[28:31], s18 offen sc0")
        e(f"buffer_atomic_add_f32 v{73+2*i}, v9, s[28:31], s18 offen offset:4 sc0")
        if i < 7:
            e("s_add_u32 s18, s18, 4096")
    srd(e, 64, 52, 53, 16384)
    e("s_lshl_b32 s18, s3, 10")
    e("s_lshl_b32 s19, s95, 8")
    e("s_add_u32 s18, s18, s19")
    e(f"v_lshlrev_b32 v10, 2, v{VLANE}")
    e("s_waitcnt vmcnt(0)")
    for i in range(8):
        e(f"v_cvt_pk_bf16_f32 v{72+2*i}, v{72+2*i}, v{73+2*i}")
        e(f"buffer_store_dword v{72+2*i}, v10, s[64:67], s18 offen")
        if i < 7:
            e("s_add_u32 s18, s18, 2048")
    stamp(11)
    e.label("L_fin")
    if cfg.STAMP:
        srd(e, 28, 12, 13, 0x800000)
        e("s_lshl_b32 s18, s2, 3")
        e("s_add_u32 s18, s18, s16")
        e("s_lshl_b32 s18, s18, 8")
        e("s_add_u32 s18, s18, 0x400000")
        e(f"v_lshlrev_b32 v9, 2, v{VLANE}")
        e(f"buffer_store_dword v{VST}, v9, s[28:31], s18 offen")
    e.label("L_end")
    e("s_endpgm")
    return name, NV, LDS_TOTAL, NWG

def gen_fused6(e, cfg):
    name = NAME + "_kernel"
    NW, NSPLIT = 8, 2
    NWG = 256
    KEYS_WG = 4096
    NTILE = KEYS_WG // 32
    cscale = (128 ** -0.5) * math.log2(math.e)
    VKO0, VKO1, VVO0, VVO1 = 1, 2, 3, 4
    VM, VL, VMC, VT, VT2, VD = 5, 6, 7, 8, 9, 10
    VLANE = 11
    Q = 12; S = 28; P = 36; O = 40
    KB = [72, 104]; VB = [136, 168]; TMP = 200
    VC, VG, VZ, VST, VTK, VONE, VADD = 232, 233, 234, 235, 236, 237, 238
    NV = 239
    LDS_O = 0
    LDS_ML = 16384
    LDS_Q = LDS_ML + 256
    LDS_TK = LDS_Q + 1024
    LDS_TOTAL = LDS_TK + 16
    CQ, CO, CF, CZ = 16, 0, 32, 48
    WS_FLAG = 0x218000
    def stamp(i):
        if cfg.STAMP:
            e("s_memrealtime s[98:99]")
            e("s_waitcnt lgkmcnt(0)")
            e(f"v_writelane_b32 v{VST}, s98, {i}")
    kernel_begin(e, name)
    e(f"s_cmp_ge_u32 s2, {NWG}")
    e("s_cbranch_scc1 L_end")
    if cfg.STAMP:
        e(f"v_mov_b32 v{VST}, 0")
    stamp(0)
    e("s_lshr_b32 s3, s2, 7")
    e("s_lshr_b32 s14, s2, 1")
    e("s_and_b32 s14, s14, 63")
    e("s_and_b32 s15, s2, 1")
    e("s_mul_i32 s4, s3, 40")
    e("s_add_u32 s6, s0, s4")
    e("s_addc_u32 s7, s1, 0")
    e("s_load_dwordx8 s[68:75], s[6:7], 0")
    e("s_load_dwordx2 s[76:77], s[6:7], 32")
    e("s_load_dwordx4 s[52:55], s[0:1], 80")
    e("s_load_dwordx2 s[12:13], s[0:1], 96")
    e(f"v_and_b32 v{VLANE}, 63, v0")
    e("v_lshrrev_b32 v5, 6, v0")
    e("s_nop 0")
    e("v_readfirstlane_b32 s16, v5")
    e(f"v_and_b32 v{VC}, 15, v{VLANE}")
    e(f"v_lshrrev_b32 v{VG}, 4, v{VLANE}")
    e(f"v_mov_b32 v{VZ}, 0")
    e(f"v_mov_b32 v{VONE}, 1")
    e(f"v_and_b32 v8, 3, v{VC}")
    e(f"v_lshrrev_b32 v9, 2, v{VC}")
    e("v_lshl_add_u32 v8, v8, 2, v9")
    e("v_lshlrev_b32 v8, 8, v8")
    e(f"v_lshl_add_u32 v{VKO0}, v{VG}, 4, v8")
    e(f"v_add_u32 v{VKO1}, 0x1000, v{VKO0}")
    e(f"v_lshlrev_b32 v{VVO0}, 4, v{VLANE}")
    e(f"v_add_u32 v{VVO1}, 0x1000, v{VVO0}")
    e("s_mov_b32 s40, 0x05040100")
    e("s_mov_b32 s41, 0x07060302")
    e(f"s_mov_b32 s42, {f2u(cscale):#x}")
    e("s_and_b32 s78, s14, 7")
    e("s_lshr_b32 s79, s14, 3")
    e("s_lshl_b32 s80, s79, 1")
    e("s_add_u32 s80, s80, s15")
    e("s_lshl_b32 s81, s3, 3")
    e("s_add_u32 s81, s81, s78")
    e("s_and_b32 s82, s81, 3")
    e("s_lshl_b32 s82, s82, 6")
    e("s_lshr_b32 s83, s81, 2")
    e("s_lshl_b32 s83, s83, 2")
    e("s_add_u32 s82, s82, s83")
    e("s_lshl_b32 s17, s14, 21")
    e(f"s_mul_i32 s18, s15, {KEYS_WG*256}")
    e("s_add_u32 s17, s17, s18")
    e("s_sub_u32 s44, s16, 4")
    e("s_mov_b32 s45, s16")
    e("s_add_u32 s17, s16, 7")
    e("s_add_u32 s18, s16, 10")
    e("s_cmp_lt_u32 s16, 4")
    e("s_cselect_b32 s44, s17, s44")
    e("s_cselect_b32 s45, s18, s45")
    e("s_cselect_b32 s17, 0, 1")
    e(f"v_mov_b32 v{VADD}, s17")
    e("s_lshl_b32 s17, s14, 21")
    e(f"s_mul_i32 s18, s15, {KEYS_WG*256}")
    e("s_add_u32 s17, s17, s18")
    e("s_waitcnt lgkmcnt(0)")
    e("s_add_u32 s8, s70, s17")
    e("s_addc_u32 s9, s71, 0")
    e("s_add_u32 s10, s72, s17")
    e("s_addc_u32 s11, s73, 0")
    srd(e, 20, 8, 9, KEYS_WG * 256)
    srd(e, 24, 10, 11, KEYS_WG * 256)
    srd(e, 28, 12, 13, 0x220000)
    srd(e, 60, 54, 55, 256)
    def loadK(st, soff):
        for T in range(2):
            for j in range(4):
                if cfg.KCONTIG:
                    vo = VVO1 if T else VVO0
                    e(f"buffer_load_dwordx4 {vr(KB[st]+16*T+4*j,4)}, v{vo}, s[20:23], {soff} offen offset:{j*1024}{cfg.NT}")
                    continue
                vo = VKO1 if T else VKO0
                e(f"buffer_load_dwordx4 {vr(KB[st]+16*T+4*j,4)}, v{vo}, s[20:23], {soff} offen offset:{j*64}{cfg.NT}")
    def loadV(st, soff):
        for t in range(8):
            vo = VVO1 if t >= 4 else VVO0
            e(f"buffer_load_dwordx4 {vr(VB[st]+4*t,4)}, v{vo}, s[24:27], {soff} offen offset:{(t&3)*1024}{cfg.NT}")
    def prefetch():
        e("s_lshl_b32 s47, s44, 13")
        loadK(0, "s47")
        if cfg.THR >= 0: e(f"s_waitcnt vmcnt({cfg.THR})")
        loadV(0, "s47")
        if cfg.THR >= 0: e(f"s_waitcnt vmcnt({cfg.THR})")
        e("s_lshl_b32 s47, s45, 13")
        loadK(1, "s47")
        if cfg.THR >= 0: e(f"s_waitcnt vmcnt({cfg.THR})")
        loadV(1, "s47")
    e("s_cmp_lt_u32 s16, 4")
    e("s_cbranch_scc1 L_qrole")
    if cfg.HB: e("s_barrier")
    prefetch()
    e("s_branch L_qjoin")
    e.label("L_qrole")
    e("s_lshl_b32 s46, s2, 7")
    e(f"s_add_u32 s46, s46, {WS_FLAG}")
    e("s_cmp_eq_u32 s16, 0")
    e("s_cbranch_scc1 L_qwave")
    e("s_cmp_lg_u32 s16, 1")
    e("s_cbranch_scc1 L_h13")
    e("s_cmp_ge_u32 s2, 32")
    e("s_cbranch_scc1 L_h13")
    for k in range(4):
        e(f"v_mov_b32 v{S+k}, 0")
    e(f"v_lshlrev_b32 v8, 4, v{VLANE}")
    e("s_lshl_b32 s18, s2, 10")
    e(f"s_add_u32 s18, s18, {WS_ACC}")
    e(f"buffer_store_dwordx4 {vr(S,4)}, v8, s[28:31], s18 offen sc1")
    e("s_waitcnt vmcnt(0)")
    e("s_mov_b64 exec, 1")
    e(f"buffer_atomic_add v{VONE}, v{VZ}, s[60:63], 0 offen offset:{CZ}")
    e("s_mov_b64 exec, -1")
    e("s_waitcnt vmcnt(0)")
    e.label("L_h13")
    if cfg.HB: e("s_barrier")
    prefetch()
    e("s_branch L_qjoin")
    e.label("L_qwave")
    srd(e, 84, 68, 69, 8192)
    srd(e, 88, 74, 75, 4194304)
    e("s_lshr_b32 s83, s80, 2")
    e("s_and_b32 s92, s80, 3")
    e("s_lshl_b32 s93, s78, 2")
    e("s_add_u32 s92, s92, s93")
    e(f"v_lshlrev_b32 v8, 10, v{VC}")
    e(f"v_lshl_add_u32 v8, v{VG}, 4, v8")
    e("s_lshl_b32 s17, s83, 8")
    bufs = [KB[0], KB[1], VB[0], VB[1]]
    for T in range(4):
        e(f"buffer_load_dwordx4 {vr(Q+4*T,4)}, v8, s[84:87], s17 offen offset:{T*64}")
    e(f"v_lshlrev_b32 v9, 16, v{VG}")
    e(f"v_lshl_add_u32 v9, v{VC}, 4, v9")
    e("s_lshl_b32 s17, s83, 20")
    e("s_lshl_b32 s18, s92, 8")
    e("s_add_u32 s17, s17, s18")
    for T in range(4):
        for t in range(8):
            e(f"buffer_load_dwordx4 {vr(bufs[T]+4*t,4)}, v9, s[88:91], s17 offen")
            e("s_add_u32 s17, s17, 8192")
        if T < 3:
            e(f"s_add_u32 s17, s17, {24*8192}")
    e("s_mov_b64 exec, 3")
    e(f"v_lshlrev_b32 v10, 6, v{VLANE}")
    e(f"buffer_store_dword v{VZ}, v10, s[28:31], s46 offen sc1")
    e("s_mov_b64 exec, 1")
    e("v_mov_b32 v10, 14")
    e(f"ds_write_b32 v{VZ}, v10 offset:{LDS_TK}")
    e("s_mov_b64 exec, -1")
    for T in range(4):
        e(f"s_waitcnt vmcnt({1 + 8*(3-T)})")
        if T == cfg.HB - 1: e("s_barrier")
        stamp(13 + T)
        perm_mfma(e, bufs[T], TMP, O, Q + 4*T, 40, 41, first=(T == 0))
    stamp(1)
    e(f"v_lshlrev_b32 v8, 16, v{VG}")
    e(f"v_lshl_add_u32 v8, v{VC}, 5, v8")
    e("s_lshl_b32 s18, s83, 1")
    e("s_add_u32 s18, s18, s3")
    e("s_lshl_b32 s18, s18, 17")
    e("s_lshl_b32 s19, s92, 9")
    e("s_add_u32 s18, s18, s19")
    e(f"s_add_u32 s18, s18, {WS_Q}")
    e("s_nop 3")
    for r in range(4):
        for i in range(8):
            e(f"v_mov_b32 v{TMP+8*r+i}, v{O+4*i+r}")
    e("s_mov_b32 exec_lo, -1")
    e("s_mov_b32 exec_hi, 0")
    for r in range(4):
        e(f"buffer_store_dwordx4 {vr(TMP+8*r,4)}, v8, s[28:31], s18 offen sc1")
        e(f"buffer_store_dwordx4 {vr(TMP+8*r+4,4)}, v8, s[28:31], s18 offen offset:16 sc1")
        if r < 3:
            e("s_add_u32 s18, s18, 16384")
    e("s_mov_b64 exec, 1")
    e("v_mov_b32 v8, 1")
    e(f"s_add_u32 s17, s82, {CQ}")
    e("s_waitcnt vmcnt(0)")
    stamp(2)
    e(f"buffer_atomic_add v8, v{VZ}, s[60:63], s17 offen sc0")
    e("s_waitcnt vmcnt(0)")
    e("s_mov_b64 exec, -1")
    e("v_readfirstlane_b32 s39, v8")
    e("s_and_b32 s39, s39, 15")
    e("s_cmp_lg_u32 s39, 15")
    e("s_cbranch_scc1 L_waitq")
    e(f"v_lshrrev_b32 v8, 1, v{VLANE}")
    e("v_lshlrev_b32 v8, 4, v8")
    e(f"v_and_b32 v9, 1, v{VLANE}")
    e("v_add_u32 v8, v8, v9")
    e("v_lshlrev_b32 v8, 7, v8")
    e("s_lshl_b32 s17, s3, 7")
    e("s_lshl_b32 s18, s78, 1")
    e("s_add_u32 s17, s17, s18")
    e("s_lshl_b32 s17, s17, 7")
    e(f"s_add_u32 s17, s17, {WS_FLAG}")
    e("s_mov_b64 exec, 0xffff")
    e(f"buffer_store_dword v{VONE}, v8, s[28:31], s17 offen offset:64 sc1")
    e("s_mov_b64 exec, -1")
    e("s_branch L_qflagdone")
    e.label("L_waitq")
    e("s_add_u32 s17, s46, 64")
    poll2(e, "q", 28, "s17", 1, 9, VZ, cfg.SLEEP)
    e.label("L_qflagdone")
    stamp(3)
    e("s_lshl_b32 s18, s14, 11")
    e("s_lshl_b32 s19, s3, 17")
    e("s_add_u32 s18, s18, s19")
    e(f"s_add_u32 s18, s18, {WS_Q}")
    e(f"v_lshlrev_b32 v8, 5, v{VLANE}")
    for ks in range(4):
        e(f"buffer_load_dwordx4 {vr(TMP+8*ks,4)}, v8, s[28:31], s18 offen sc1")
        e(f"buffer_load_dwordx4 {vr(TMP+8*ks+4,4)}, v8, s[28:31], s18 offen offset:16 sc1")
        if ks < 3:
            e("s_add_u32 s18, s18, 0x40000")
    e("s_waitcnt vmcnt(0)")
    for k in range(8):
        e(f"v_add_f32 v{TMP+k}, v{TMP+k}, v{TMP+8+k}")
        e(f"v_add_f32 v{TMP+16+k}, v{TMP+16+k}, v{TMP+24+k}")
    for k in range(8):
        e(f"v_add_f32 v{TMP+k}, v{TMP+k}, v{TMP+16+k}")
    for k in range(4):
        e(f"v_cvt_pk_bf16_f32 v{TMP+k}, v{TMP+2*k}, v{TMP+2*k+1}")
    e(f"v_lshlrev_b32 v8, 4, v{VLANE}")
    e(f"ds_write_b128 v8, {vr(TMP,4)} offset:{LDS_Q}")
    e("s_waitcnt lgkmcnt(0)")
    e.label("L_qjoin")
    e("s_barrier")
    stamp(4)
    e("s_lshr_b32 s94, s80, 2")
    e("s_lshl_b32 s93, s78, 2")
    e("s_add_u32 s94, s94, s93")
    e("s_and_b32 s95, s80, 3")
    e("s_cmp_eq_u32 s16, 0")
    e("s_cbranch_scc1 L_helper")
    for i in range(32):
        e(f"v_mov_b32 v{O+i}, 0")
    for i in range(16):
        e(f"v_mov_b32 v{Q+i}, 0")
    e(f"v_lshlrev_b32 v8, 8, v{VC}")
    e(f"v_lshl_add_u32 v8, v{VG}, 4, v8")
    e(f"v_cmp_gt_u32 vcc, 4, v{VC}")
    e("s_and_saveexec_b64 s[34:35], vcc")
    for j in range(4):
        e(f"ds_read_b128 {vr(Q+4*j,4)}, v8 offset:{LDS_Q + j*64}")
    e("s_mov_b64 exec, s[34:35]")
    e(f"v_mov_b32 v{VM}, 0xff800000")
    e(f"v_mov_b32 v{VL}, 0")
    e(f"v_mov_b32 v{VMC}, 0")
    e("s_waitcnt lgkmcnt(0)")
    e("s_mov_b32 s97, 0")
    e.label("L_loop")
    for st in range(2):
        K, V = KB[st], VB[st]
        tk = 44 + st
        e(f"s_cmp_ge_u32 s{tk}, {NTILE}")
        e("s_cbranch_scc1 L_loopend")
        if cfg.STAMP:
            e("s_add_u32 s97, s97, 1")
            e("s_and_b32 s100, s97, 3")
            e("s_cmp_lg_u32 s100, 0")
            e(f"s_cbranch_scc1 L_nost{st}")
            e("s_memrealtime s[98:99]")
            e("s_lshr_b32 s100, s97, 2")
            e("s_add_u32 s100, s100, 20")
            e("s_waitcnt lgkmcnt(0)")
            e("s_nop 3")
            e("s_mov_b32 m0, s100")
            e("s_nop 1")
            e(f"v_writelane_b32 v{VST}, s98, m0")
            e.label(f"L_nost{st}")
        e("s_mov_b64 exec, 1")
        e(f"ds_add_rtn_u32 v{VTK}, v{VZ}, v{VADD} offset:{LDS_TK}")
        e("s_mov_b64 exec, -1")
        e("s_waitcnt vmcnt(24)")
        for j in range(4):
            for T in range(2):
                c = "0" if j == 0 else vr(S+4*T, 4)
                e(f"v_mfma_f32_16x16x32_bf16 {vr(S+4*T,4)}, {vr(K+16*T+4*j,4)}, {vr(Q+4*j,4)}, {c}")
        e("s_waitcnt lgkmcnt(0)")
        e(f"v_readfirstlane_b32 s{tk}, v{VTK}")
        e("s_cmp_lt_u32 s16, 4")
        e(f"s_cselect_b32 s{tk}, {NTILE}, s{tk}")
        e(f"s_lshl_b32 s47, s{tk}, 13")
        e(f"s_cmp_ge_u32 s{tk}, {NTILE}")
        e("s_cselect_b32 s47, 0x40000000, s47")
        loadK(st, "s47")
        e(f"v_max3_f32 v{VT}, v{S}, v{S+1}, v{S+2}")
        e(f"v_max3_f32 v{VT}, v{VT}, v{S+3}, v{S+4}")
        e(f"v_max3_f32 v{VT}, v{VT}, v{S+5}, v{S+6}")
        e(f"v_max3_f32 v{VT}, v{VT}, v{S+7}, v{VM}")
        e(f"v_mov_b32 v{VT2}, v{VT}")
        e("s_nop 1")
        e(f"v_permlane16_swap_b32 v{VT}, v{VT2}")
        e("s_nop 0")
        e(f"v_max_f32 v{VT}, v{VT}, v{VT2}")
        e(f"v_mov_b32 v{VT2}, v{VT}")
        e("s_nop 1")
        e(f"v_permlane32_swap_b32 v{VT}, v{VT2}")
        e("s_nop 0")
        e(f"v_max_f32 v{VT}, v{VT}, v{VT2}")
        e(f"v_cmp_gt_f32 vcc, v{VT}, v{VM}")
        e(f"s_cbranch_vccz L_skip{st}")
        e(f"v_sub_f32 v{VD}, v{VM}, v{VT}")
        e(f"v_mul_f32 v{VD}, s42, v{VD}")
        e(f"v_exp_f32 v{VD}, v{VD}")
        e(f"v_mov_b32 v{VM}, v{VT}")
        e(f"v_mul_f32 v{VMC}, s42, v{VT}")
        e(f"v_mul_f32 v{VL}, v{VL}, v{VD}")
        for h in range(4):
            e(f"v_readlane_b32 s{48+h}, v{VD}, {h}")
        e("s_nop 1")
        for i in range(8):
            for r in range(4):
                e(f"v_mul_f32 v{O+4*i+r}, s{48+r}, v{O+4*i+r}")
        e.label(f"L_skip{st}")
        for i in range(8):
            e(f"v_fma_f32 v{S+i}, v{S+i}, s42, -v{VMC}")
        for i in range(8):
            e(f"v_exp_f32 v{S+i}, v{S+i}")
        e("s_nop 0")
        e(f"v_add_f32 v{VT}, v{S}, v{S+1}")
        e(f"v_add_f32 v{VT2}, v{S+2}, v{S+3}")
        e(f"v_add_f32 v{VD}, v{S+4}, v{S+5}")
        e(f"v_add_f32 v{VL}, v{VL}, v{VT}")
        e(f"v_add_f32 v{VT}, v{S+6}, v{S+7}")
        e(f"v_add_f32 v{VT2}, v{VT2}, v{VD}")
        e(f"v_add_f32 v{VL}, v{VL}, v{VT}")
        e(f"v_add_f32 v{VL}, v{VL}, v{VT2}")
        for k in range(4):
            e(f"v_cvt_pk_bf16_f32 v{P+k}, v{S+2*k}, v{S+2*k+1}")
        e("s_waitcnt vmcnt(24)")
        perm_mfma(e, V, TMP, O, P, 40, 41)
        loadV(st, "s47")
    e("s_branch L_loop")
    e.label("L_loopend")
    stamp(5)
    if cfg.STAMP:
        e(f"v_writelane_b32 v{VST}, s97, 12")
    e(f"v_mov_b32 v{VT}, v{VL}")
    e(f"v_mov_b32 v{VT2}, v{VL}")
    e("s_nop 1")
    e(f"v_permlane16_swap_b32 v{VT}, v{VT2}")
    e("s_nop 0")
    e(f"v_add_f32 v{VT}, v{VT}, v{VT2}")
    e(f"v_mov_b32 v{VT2}, v{VT}")
    e("s_nop 1")
    e(f"v_permlane32_swap_b32 v{VT}, v{VT2}")
    e("s_nop 0")
    e(f"v_add_f32 v{VT2}, v{VT}, v{VT2}")
    e(f"v_mov_b32 v{VT}, v{VM}")
    e("s_sub_u32 s96, s16, 1")
    e(f"v_lshlrev_b32 v12, 3, v{VLANE}")
    e("s_lshl_b32 s18, s96, 5")
    e(f"s_add_u32 s18, s18, {LDS_ML}")
    e("v_add_u32 v12, s18, v12")
    e(f"v_lshlrev_b32 v13, 5, v{VLANE}")
    e("s_lshl_b32 s18, s96, 11")
    e("v_add_u32 v13, s18, v13")
    e("s_mov_b64 exec, 0xf")
    e(f"ds_write_b64 v12, v[{VT}:{VT2}]")
    e("s_mov_b64 exec, 0xffff")
    for i in range(8):
        for r in range(4):
            e(f"ds_write_b32 v13, v{O+4*i+r} offset:{LDS_O + r*512 + i*4}")
    e("s_mov_b64 exec, -1")
    e("s_waitcnt vmcnt(0) lgkmcnt(0)")
    e("s_cmp_lt_u32 s16, 4")
    e("s_cbranch_scc1 L_helper")
    e("s_barrier")
    e("s_barrier")
    e("s_barrier")
    e("s_branch L_ojoin")
    e.label("L_helper")
    srd(e, 88, 76, 77, 4194304)
    e("s_lshl_b32 s17, s94, 7")
    e("s_lshl_b32 s18, s16, 5")
    e("s_add_u32 s17, s17, s18")
    e(f"v_lshl_add_u32 v14, v{VG}, 3, s17")
    e("v_lshlrev_b32 v14, 10, v14")
    e(f"v_lshl_add_u32 v14, v{VC}, 4, v14")
    e("s_lshl_b32 s17, s95, 8")
    e("v_add_u32 v14, s17, v14")
    e("v_add_u32 v15, 0x1000, v14")
    for t in range(8):
        vo = 15 if t >= 4 else 14
        e(f"buffer_load_dwordx4 {vr(VB[0]+4*t,4)}, v{vo}, s[88:91], 0 offen offset:{(t&3)*1024}")
    OP_P = 8 * 32 * NSPLIT * 512
    ML_P = 8 * 32 * NSPLIT * 8
    e(f"s_mul_i32 s17, s3, {OP_P}")
    e(f"s_add_u32 s17, s17, {WS_O}")
    e("s_add_u32 s18, s12, s17")
    e("s_addc_u32 s19, s13, 0")
    srd(e, 84, 18, 19, OP_P)
    e(f"s_mul_i32 s17, s3, {ML_P}")
    e(f"s_add_u32 s17, s17, {WS_ML}")
    e("s_add_u32 s18, s12, s17")
    e("s_addc_u32 s19, s13, 0")
    srd(e, 56, 18, 19, ML_P)
    e(f"v_mul_u32_u24 v24, {32*NSPLIT*512}, v{VC}")
    e("s_lshl_b32 s17, s16, 7")
    e("v_add_u32 v24, s17, v24")
    e(f"v_lshl_add_u32 v24, v{VG}, 5, v24")
    e(f"v_mul_u32_u24 v25, {32*NSPLIT*8}, v{VC}")
    e("s_lshl_b32 s18, s16, 12")
    e(f"v_lshl_add_u32 v26, v{VG}, 11, s18")
    e(f"v_lshl_add_u32 v26, v{VC}, 5, v26")
    e("s_lshl_b32 s17, s16, 3")
    e(f"v_mov_b32 v16, s17")
    e("s_lshl_b32 s17, s16, 9")
    e(f"v_lshl_add_u32 v17, v{VLANE}, 3, s17")
    e("s_lshl_b32 s18, s3, 6")
    e("s_add_u32 s18, s18, s14")
    e("s_lshl_b32 s18, s18, 2")
    e("s_add_u32 s18, s18, s16")
    e(f"s_mul_i32 s19, s18, {NSPLIT*512}")
    e("s_lshl_b32 s36, s15, 9")
    e("s_add_u32 s19, s19, s36")
    e(f"s_add_u32 s19, s19, {WS_O}")
    e(f"s_mul_i32 s37, s18, {NSPLIT*8}")
    e("s_lshl_b32 s36, s15, 3")
    e("s_add_u32 s37, s37, s36")
    e(f"s_add_u32 s37, s37, {WS_ML}")
    e(f"v_lshlrev_b32 v23, 3, v{VLANE}")
    e("s_cmp_lg_u32 s16, 0")
    e("s_cbranch_scc1 L_noz")
    e(f"s_mov_b32 s17, {CZ}")
    poll2(e, "z", 60, "s17", 32, 9, VZ, 64)
    e.label("L_noz")
    e("s_waitcnt vmcnt(0)")
    e("s_barrier")
    NS = 7
    for w in range(NS):
        e(f"ds_read_b64 {vr(72+2*w,2)}, v16 offset:{LDS_ML + w*32}")
    for w in range(NS):
        e(f"ds_read_b64 {vr(104+2*w,2)}, v17 offset:{LDS_O + w*2048}")
    e("s_waitcnt lgkmcnt(0)")
    e("v_max_f32 v18, v72, v74")
    for w in range(2, NS):
        e(f"v_max_f32 v18, v18, v{72+2*w}")
    e("v_mov_b32 v19, 0")
    e("v_mov_b32 v20, 0")
    e("v_mov_b32 v21, 0")
    for w in range(NS):
        e(f"v_sub_f32 v22, v{72+2*w}, v18")
        e("v_mul_f32 v22, s42, v22")
        e("v_exp_f32 v22, v22")
        e("s_nop 0")
        e(f"v_fmac_f32 v19, v22, v{73+2*w}")
        e(f"v_fmac_f32 v20, v22, v{104+2*w}")
        e(f"v_fmac_f32 v21, v22, v{105+2*w}")
    e("buffer_store_dwordx2 v[20:21], v23, s[28:31], s19 offen sc1")
    e("s_mov_b64 exec, 1")
    e(f"buffer_store_dwordx2 v[18:19], v{VZ}, s[28:31], s37 offen sc1")
    e("s_mov_b64 exec, -1")
    e("s_waitcnt vmcnt(0)")
    e("s_barrier")
    stamp(6)
    e("s_cmp_lg_u32 s16, 0")
    e("s_cbranch_scc1 L_pub_np")
    e("s_mov_b64 exec, 1")
    e(f"s_add_u32 s17, s82, {CO}")
    e("v_mov_b32 v8, 1")
    e(f"buffer_atomic_add v8, v{VZ}, s[60:63], s17 offen sc0")
    e("s_waitcnt vmcnt(0)")
    e("s_mov_b64 exec, -1")
    e("v_readfirstlane_b32 s39, v8")
    e("s_and_b32 s39, s39, 15")
    e("s_cmp_lg_u32 s39, 15")
    e("s_cbranch_scc1 L_waitflag")
    e(f"v_lshrrev_b32 v8, 1, v{VLANE}")
    e("v_lshlrev_b32 v8, 4, v8")
    e(f"v_and_b32 v9, 1, v{VLANE}")
    e("v_add_u32 v8, v8, v9")
    e("v_lshlrev_b32 v8, 7, v8")
    e("s_lshl_b32 s17, s3, 7")
    e("s_lshl_b32 s18, s78, 1")
    e("s_add_u32 s17, s17, s18")
    e("s_lshl_b32 s17, s17, 7")
    e(f"s_add_u32 s17, s17, {WS_FLAG}")
    e("s_mov_b64 exec, 0xffff")
    e(f"buffer_store_dword v{VONE}, v8, s[28:31], s17 offen sc1")
    e("s_mov_b64 exec, -1")
    e("s_branch L_flagdone")
    e.label("L_waitflag")
    poll2(e, "o", 28, "s46", 1, 9, VZ, cfg.SLEEP)
    e.label("L_flagdone")
    stamp(7)
    e.label("L_pub_np")
    e("s_barrier")
    PB = KB[1]
    MB = PB + 16
    e(f"s_mul_i32 s17, s94, {NSPLIT*512}")
    for s_ in range(NSPLIT):
        e(f"buffer_load_dwordx4 {vr(PB+8*s_,4)}, v24, s[84:87], s17 offen offset:{s_*512} sc1")
        e(f"buffer_load_dwordx4 {vr(PB+8*s_+4,4)}, v24, s[84:87], s17 offen offset:{s_*512+16} sc1")
    e(f"s_mul_i32 s17, s94, {NSPLIT*8}")
    e(f"buffer_load_dwordx4 {vr(MB,4)}, v25, s[56:59], s17 offen sc1")
    e("s_waitcnt vmcnt(0)")
    e(f"v_max_f32 v19, v{MB}, v{MB+2}")
    for s_ in range(NSPLIT):
        e(f"v_sub_f32 v{MB+2*s_}, v{MB+2*s_}, v19")
        e(f"v_mul_f32 v{MB+2*s_}, s42, v{MB+2*s_}")
        e(f"v_exp_f32 v{MB+2*s_}, v{MB+2*s_}")
    e("s_nop 0")
    e(f"v_mul_f32 v19, v{MB}, v{MB+1}")
    e(f"v_fmac_f32 v19, v{MB+2}, v{MB+3}")
    e("v_rcp_f32 v19, v19")
    e("s_nop 0")
    for s_ in range(NSPLIT):
        e(f"v_mul_f32 v{MB+2*s_}, v{MB+2*s_}, v19")
    for k in range(8):
        e(f"v_mul_f32 v{PB+k}, v{PB+k}, v{MB}")
        e(f"v_fmac_f32 v{PB+k}, v{PB+8+k}, v{MB+2}")
    for k in range(4):
        e(f"v_cvt_pk_bf16_f32 v{P+k}, v{PB+2*k}, v{PB+2*k+1}")
    perm_mfma(e, VB[0], TMP, O, P, 40, 41, first=True)
    e("s_nop 7")
    e("s_mov_b32 exec_lo, -1")
    e("s_mov_b32 exec_hi, 0")
    for i in range(8):
        for r in range(4):
            e(f"ds_write_b32 v26, v{O+4*i+r} offset:{LDS_O + r*512+i*4}")
    e("s_mov_b64 exec, -1")
    e("s_waitcnt lgkmcnt(0)")
    e.label("L_ojoin")
    e("s_barrier")
    stamp(8)
    e("v_lshlrev_b32 v8, 2, v0")
    for u in range(2):
        for w in range(4):
            e(f"ds_read_b32 v{72+4*u+w}, v8 offset:{LDS_O + w*4096+u*2048}")
    e("v_lshrrev_b32 v9, 7, v0")
    e("v_and_b32 v10, 127, v0")
    e("v_lshlrev_b32 v9, 12, v9")
    e("v_lshl_add_u32 v9, v10, 2, v9")
    e("s_lshl_b32 s17, s3, 11")
    e("s_lshl_b32 s18, s95, 9")
    e("s_add_u32 s17, s17, s18")
    e(f"s_add_u32 s17, s17, {WS_ACC}")
    e("s_add_u32 s18, s17, 16384")
    e("s_waitcnt lgkmcnt(0)")
    for u in range(2):
        e(f"v_add_f32 v{72+4*u}, v{72+4*u}, v{73+4*u}")
        e(f"v_add_f32 v{74+4*u}, v{74+4*u}, v{75+4*u}")
    for u in range(2):
        e(f"v_add_f32 v{72+4*u}, v{72+4*u}, v{74+4*u}")
    e("buffer_atomic_add_f32 v72, v9, s[28:31], s17 offen")
    e("buffer_atomic_add_f32 v76, v9, s[28:31], s18 offen")
    e("s_waitcnt vmcnt(0)")
    e("s_barrier")
    stamp(9)
    e("s_cmp_lg_u32 s16, 0")
    e("s_cbranch_scc1 L_fin")
    e("s_lshl_b32 s19, s95, 6")
    e("s_lshl_b32 s18, s3, 2")
    e("s_add_u32 s19, s19, s18")
    e(f"s_add_u32 s19, s19, {CF}")
    e("v_mov_b32 v8, 1")
    e("s_mov_b64 exec, 1")
    e(f"buffer_atomic_add v8, v{VZ}, s[60:63], s19 offen sc0")
    e("s_waitcnt vmcnt(0)")
    e("s_mov_b64 exec, -1")
    e("v_readfirstlane_b32 s19, v8")
    stamp(10)
    e("s_and_b32 s19, s19, 31")
    e("s_cmp_lg_u32 s19, 31")
    e("s_cbranch_scc1 L_fin")
    e(f"v_lshlrev_b32 v9, 3, v{VLANE}")
    for i in range(16):
        e(f"v_mov_b32 v{72+i}, 0")
    e("s_mov_b32 s18, s17")
    for i in range(8):
        e(f"buffer_atomic_add_f32 v{72+2*i}, v9, s[28:31], s18 offen sc0")
        e(f"buffer_atomic_add_f32 v{73+2*i}, v9, s[28:31], s18 offen offset:4 sc0")
        if i < 7:
            e("s_add_u32 s18, s18, 4096")
    srd(e, 64, 52, 53, 16384)
    e("s_lshl_b32 s18, s3, 10")
    e("s_lshl_b32 s19, s95, 8")
    e("s_add_u32 s18, s18, s19")
    e(f"v_lshlrev_b32 v10, 2, v{VLANE}")
    e("s_waitcnt vmcnt(0)")
    for i in range(8):
        e(f"v_cvt_pk_bf16_f32 v{72+2*i}, v{72+2*i}, v{73+2*i}")
        e(f"buffer_store_dword v{72+2*i}, v10, s[64:67], s18 offen")
        if i < 7:
            e("s_add_u32 s18, s18, 2048")
    stamp(11)
    e.label("L_fin")
    if cfg.STAMP:
        srd(e, 28, 12, 13, 0x800000)
        e("s_lshl_b32 s18, s2, 3")
        e("s_add_u32 s18, s18, s16")
        e("s_lshl_b32 s18, s18, 8")
        e("s_add_u32 s18, s18, 0x400000")
        e(f"v_lshlrev_b32 v9, 2, v{VLANE}")
        e(f"buffer_store_dword v{VST}, v9, s[28:31], s18 offen")
    e.label("L_end")
    e("s_endpgm")
    return name, NV, LDS_TOTAL, NWG

def gen_fused7(e, cfg):
    name = NAME + "_kernel"
    NW, NSPLIT = 8, 2
    NWG = 256
    KEYS_WG = 4096
    NTILE = KEYS_WG // 32
    cscale = (128 ** -0.5) * math.log2(math.e)
    VKO0, VKO1, VVO0, VVO1 = 1, 2, 3, 4
    VM, VL, VMC, VT, VT2, VD = 5, 6, 7, 8, 9, 10
    VLANE = 11
    Q = 12; S = 28; P = 36; O = 40
    KB = [72, 104]; VB = [136, 168]; TMP = 200
    VC, VG, VZ, VST, VTK, VONE = 232, 233, 234, 235, 236, 237
    NV = 238
    LDS_O = 0
    LDS_ML = 16384
    LDS_Q = LDS_ML + 256
    LDS_TK = LDS_Q + 1024
    LDS_NC = LDS_TK + 8
    LDS_P = LDS_TK + 16 + 240
    LDS_TOTAL = LDS_P + 16384
    CQ, CO, CF, CZ = 16, 0, 32, 48
    WQ2, WO2, WML2, WACC, WSZ = 0, 0x200000, 0x300000, 0x310000, 0x320000
    def tagcheck(quads, vacc, vt1, vt2, snon):
        e(f"v_mov_b32 v{vacc}, 0")
        for q in quads:
            e(f"v_xor_b32 v{vt1}, s{snon}, v{q+1}")
            e(f"v_xor_b32 v{vt2}, s{snon}, v{q+3}")
            e(f"v_or3_b32 v{vacc}, v{vacc}, v{vt1}, v{vt2}")
        e(f"v_cmp_ne_u32 vcc, 0, v{vacc}")
    def stamp(i):
        if cfg.STAMP:
            e("s_memrealtime s[98:99]")
            e("s_waitcnt lgkmcnt(0)")
            e(f"v_writelane_b32 v{VST}, s98, {i}")
    kernel_begin(e, name)
    e(f"s_cmp_ge_u32 s2, {NWG}")
    e("s_cbranch_scc1 L_end")
    if cfg.STAMP:
        e(f"v_mov_b32 v{VST}, 0")
    stamp(0)
    e("s_lshr_b32 s3, s2, 7")
    e("s_lshr_b32 s14, s2, 1")
    e("s_and_b32 s14, s14, 63")
    e("s_and_b32 s15, s2, 1")
    e("s_mul_i32 s4, s3, 40")
    e("s_add_u32 s6, s0, s4")
    e("s_addc_u32 s7, s1, 0")
    e("s_load_dwordx8 s[68:75], s[6:7], 0")
    e("s_load_dwordx2 s[76:77], s[6:7], 32")
    e("s_load_dwordx4 s[52:55], s[0:1], 80")
    e("s_load_dwordx2 s[12:13], s[0:1], 96")
    e(f"v_and_b32 v{VLANE}, 63, v0")
    e("v_lshrrev_b32 v5, 6, v0")
    e("s_nop 0")
    e("v_readfirstlane_b32 s16, v5")
    e(f"v_and_b32 v{VC}, 15, v{VLANE}")
    e(f"v_lshrrev_b32 v{VG}, 4, v{VLANE}")
    e(f"v_mov_b32 v{VZ}, 0")
    e(f"v_mov_b32 v{VONE}, 1")
    e(f"v_and_b32 v8, 3, v{VC}")
    e(f"v_lshrrev_b32 v9, 2, v{VC}")
    e("v_lshl_add_u32 v8, v8, 2, v9")
    e("v_lshlrev_b32 v8, 8, v8")
    e(f"v_lshl_add_u32 v{VKO0}, v{VG}, 4, v8")
    e(f"v_add_u32 v{VKO1}, 0x1000, v{VKO0}")
    e(f"v_lshlrev_b32 v{VVO0}, 4, v{VLANE}")
    e(f"v_add_u32 v{VVO1}, 0x1000, v{VVO0}")
    e("s_mov_b32 s40, 0x05040100")
    e("s_mov_b32 s41, 0x07060302")
    e(f"s_mov_b32 s42, {f2u(cscale):#x}")
    e("s_and_b32 s78, s14, 7")
    e("s_lshr_b32 s79, s14, 3")
    e("s_lshl_b32 s80, s79, 1")
    e("s_add_u32 s80, s80, s15")
    e("s_lshl_b32 s81, s3, 3")
    e("s_add_u32 s81, s81, s78")
    e("s_and_b32 s82, s81, 3")
    e("s_lshl_b32 s82, s82, 6")
    e("s_lshr_b32 s83, s81, 2")
    e("s_lshl_b32 s83, s83, 2")
    e("s_add_u32 s82, s82, s83")
    e("s_lshl_b32 s17, s14, 21")
    e(f"s_mul_i32 s18, s15, {KEYS_WG*256}")
    e("s_add_u32 s17, s17, s18")
    e("s_sub_u32 s44, s16, 4")
    e("s_mov_b32 s45, s16")
    e("s_waitcnt lgkmcnt(0)")
    e("s_add_u32 s8, s70, s17")
    e("s_addc_u32 s9, s71, 0")
    e("s_add_u32 s10, s72, s17")
    e("s_addc_u32 s11, s73, 0")
    srd(e, 20, 8, 9, KEYS_WG * 256)
    srd(e, 24, 10, 11, KEYS_WG * 256)
    srd(e, 28, 12, 13, WSZ)
    srd(e, 60, 54, 55, 256)
    def loadK(st, soff):
        for T in range(2):
            for j in range(4):
                if cfg.KCONTIG:
                    vo = VVO1 if T else VVO0
                    e(f"buffer_load_dwordx4 {vr(KB[st]+16*T+4*j,4)}, v{vo}, s[20:23], {soff} offen offset:{j*1024}{cfg.NT}")
                    continue
                vo = VKO1 if T else VKO0
                e(f"buffer_load_dwordx4 {vr(KB[st]+16*T+4*j,4)}, v{vo}, s[20:23], {soff} offen offset:{j*64}{cfg.NT}")
    def loadV(st, soff):
        for t in range(8):
            vo = VVO1 if t >= 4 else VVO0
            e(f"buffer_load_dwordx4 {vr(VB[st]+4*t,4)}, v{vo}, s[24:27], {soff} offen offset:{(t&3)*1024}{cfg.NT}")
    def prefetch():
        e("s_lshl_b32 s47, s44, 13")
        loadK(0, "s47")
        if cfg.THR >= 0: e(f"s_waitcnt vmcnt({cfg.THR})")
        loadV(0, "s47")
        if cfg.THR >= 0: e(f"s_waitcnt vmcnt({cfg.THR})")
        e("s_lshl_b32 s47, s45, 13")
        loadK(1, "s47")
        if cfg.THR >= 0: e(f"s_waitcnt vmcnt({cfg.THR})")
        loadV(1, "s47")
    e("s_cmp_lt_u32 s16, 4")
    e("s_cbranch_scc1 L_qrole")
    if cfg.HB: e("s_barrier")
    prefetch()
    e("s_branch L_qjoin")
    e.label("L_qrole")
    e("s_cmp_eq_u32 s16, 0")
    e("s_cbranch_scc1 L_qwave")
    if cfg.HB: e("s_barrier")
    e("s_cmp_lg_u32 s16, 1")
    e("s_cbranch_scc1 L_qjoin")
    e("s_cmp_ge_u32 s2, 32")
    e("s_cbranch_scc1 L_qjoin")
    for k in range(4):
        e(f"v_mov_b32 v{S+k}, 0")
    e(f"v_lshlrev_b32 v8, 4, v{VLANE}")
    e("s_lshl_b32 s18, s2, 10")
    e(f"s_add_u32 s18, s18, {WACC}")
    e(f"buffer_store_dwordx4 {vr(S,4)}, v8, s[28:31], s18 offen sc1")
    e("s_waitcnt vmcnt(0)")
    e("s_mov_b64 exec, 1")
    e(f"buffer_atomic_add v{VONE}, v{VZ}, s[60:63], 0 offen offset:{CZ}")
    e("s_mov_b64 exec, -1")
    e("s_branch L_qjoin")
    e.label("L_qwave")
    e("s_memrealtime s[98:99]")
    e(f"s_add_u32 s17, s82, {CQ}")
    e("v_mov_b32 v7, 0")
    e("s_waitcnt lgkmcnt(0)")
    e("s_or_b32 s46, s98, 1")
    e("v_mov_b32 v6, s46")
    e("s_mov_b64 exec, 1")
    e(f"buffer_atomic_cmpswap v[6:7], v{VZ}, s[60:63], s17 offen sc0")
    e("s_mov_b64 exec, -1")
    srd(e, 84, 68, 69, 8192)
    srd(e, 88, 74, 75, 4194304)
    e("s_lshr_b32 s83, s80, 2")
    e("s_and_b32 s92, s80, 3")
    e("s_lshl_b32 s93, s78, 2")
    e("s_add_u32 s92, s92, s93")
    e(f"v_lshlrev_b32 v8, 10, v{VC}")
    e(f"v_lshl_add_u32 v8, v{VG}, 4, v8")
    e("s_lshl_b32 s17, s83, 8")
    bufs = [KB[0], KB[1], VB[0], VB[1]]
    for T in range(4):
        e(f"buffer_load_dwordx4 {vr(Q+4*T,4)}, v8, s[84:87], s17 offen offset:{T*64}")
    e(f"v_lshlrev_b32 v9, 16, v{VG}")
    e(f"v_lshl_add_u32 v9, v{VC}, 4, v9")
    e("s_lshl_b32 s17, s83, 20")
    e("s_lshl_b32 s18, s92, 8")
    e("s_add_u32 s17, s17, s18")
    for T in range(4):
        for t in range(8):
            e(f"buffer_load_dwordx4 {vr(bufs[T]+4*t,4)}, v9, s[88:91], s17 offen")
            e("s_add_u32 s17, s17, 8192")
        if T < 3:
            e(f"s_add_u32 s17, s17, {24*8192}")
    e("s_mov_b64 exec, 1")
    e("v_mov_b32 v10, 8")
    e(f"ds_write_b32 v{VZ}, v10 offset:{LDS_TK}")
    e("s_mov_b64 exec, -1")
    for T in range(4):
        e(f"s_waitcnt vmcnt({8*(3-T)})")
        if T == cfg.HB - 1: e("s_barrier")
        stamp(13 + T)
        perm_mfma(e, bufs[T], TMP, O, Q + 4*T, 40, 41, first=(T == 0))
    stamp(1)
    e("v_readfirstlane_b32 s39, v6")
    e("s_cmp_lg_u32 s39, 0")
    e("s_cselect_b32 s46, s39, s46")
    e("v_mov_b32 v10, s46")
    e("s_mov_b64 exec, 1")
    e(f"ds_write_b32 v{VZ}, v10 offset:{LDS_NC}")
    e("s_mov_b64 exec, -1")
    e(f"v_lshlrev_b32 v8, 17, v{VG}")
    e(f"v_lshl_add_u32 v8, v{VC}, 6, v8")
    e("s_lshl_b32 s18, s83, 1")
    e("s_add_u32 s18, s18, s3")
    e("s_lshl_b32 s18, s18, 18")
    e("s_lshl_b32 s19, s92, 10")
    e("s_add_u32 s18, s18, s19")
    e(f"s_add_u32 s18, s18, {WQ2}")
    G0 = KB[0]
    for r in range(4):
        for k in range(4):
            q = G0 + 16*r + 4*k
            e(f"v_mov_b32 v{q}, v{O+4*(2*k)+r}")
            e(f"v_mov_b32 v{q+1}, s46")
            e(f"v_mov_b32 v{q+2}, v{O+4*(2*k+1)+r}")
            e(f"v_mov_b32 v{q+3}, s46")
    e("s_mov_b32 exec_lo, -1")
    e("s_mov_b32 exec_hi, 0")
    for r in range(4):
        for k in range(4):
            e(f"buffer_store_dwordx4 {vr(G0+16*r+4*k,4)}, v8, s[28:31], s18 offen offset:{k*16} sc1")
        if r < 3:
            e("s_add_u32 s18, s18, 32768")
    e("s_mov_b64 exec, -1")
    stamp(2)
    e("s_lshl_b32 s18, s14, 12")
    e("s_lshl_b32 s19, s3, 18")
    e("s_add_u32 s18, s18, s19")
    e(f"s_add_u32 s18, s18, {WQ2}")
    e(f"v_lshlrev_b32 v8, 6, v{VLANE}")
    e("s_mov_b32 s38, 400000")
    G1 = VB[0]
    e.label("L_qpoll")
    e("s_mov_b32 s19, s18")
    for ks in range(4):
        for k in range(4):
            e(f"buffer_load_dwordx4 {vr(G1+16*ks+4*k,4)}, v8, s[28:31], s19 offen offset:{k*16} sc1")
        if ks < 3:
            e("s_add_u32 s19, s19, 0x80000")
    e("s_waitcnt vmcnt(0)")
    tagcheck([G1 + 4*i for i in range(16)], 9, 10, 5, 46)
    e("s_cbranch_vccz L_qpolld")
    e("s_sub_u32 s38, s38, 1")
    e("s_cmp_lg_u32 s38, 0")
    e("s_cbranch_scc1 L_qpoll")
    e.label("L_qpolld")
    stamp(3)
    for k in range(8):
        a = [G1 + 16*ks + 4*(k >> 1) + 2*(k & 1) for ks in range(4)]
        e(f"v_add_f32 v{TMP+k}, v{a[0]}, v{a[1]}")
        e(f"v_add_f32 v{TMP+8+k}, v{a[2]}, v{a[3]}")
    for k in range(8):
        e(f"v_add_f32 v{TMP+k}, v{TMP+k}, v{TMP+8+k}")
    for k in range(4):
        e(f"v_cvt_pk_bf16_f32 v{TMP+k}, v{TMP+2*k}, v{TMP+2*k+1}")
    e(f"v_lshlrev_b32 v8, 4, v{VLANE}")
    e(f"ds_write_b128 v8, {vr(TMP,4)} offset:{LDS_Q}")
    e("s_waitcnt lgkmcnt(0)")
    e.label("L_qjoin")
    e("s_barrier")
    stamp(4)
    e("s_lshr_b32 s94, s80, 2")
    e("s_lshl_b32 s93, s78, 2")
    e("s_add_u32 s94, s94, s93")
    e("s_and_b32 s95, s80, 3")
    e("s_cmp_lt_u32 s16, 4")
    e("s_cbranch_scc1 L_helper")
    for i in range(32):
        e(f"v_mov_b32 v{O+i}, 0")
    for i in range(16):
        e(f"v_mov_b32 v{Q+i}, 0")
    e(f"v_lshlrev_b32 v8, 8, v{VC}")
    e(f"v_lshl_add_u32 v8, v{VG}, 4, v8")
    e(f"v_cmp_gt_u32 vcc, 4, v{VC}")
    e("s_and_saveexec_b64 s[34:35], vcc")
    for j in range(4):
        e(f"ds_read_b128 {vr(Q+4*j,4)}, v8 offset:{LDS_Q + j*64}")
    e("s_mov_b64 exec, s[34:35]")
    e(f"v_mov_b32 v{VM}, 0xff800000")
    e(f"v_mov_b32 v{VL}, 0")
    e(f"v_mov_b32 v{VMC}, 0")
    e("s_waitcnt lgkmcnt(0)")
    e("s_mov_b32 s97, 0")
    e.label("L_loop")
    for st in range(2):
        K, V = KB[st], VB[st]
        tk = 44 + st
        e(f"s_cmp_ge_u32 s{tk}, {NTILE}")
        e("s_cbranch_scc1 L_loopend")
        if cfg.STAMP:
            e("s_add_u32 s97, s97, 1")
            e("s_and_b32 s100, s97, 3")
            e("s_cmp_lg_u32 s100, 0")
            e(f"s_cbranch_scc1 L_nost{st}")
            e("s_memrealtime s[98:99]")
            e("s_lshr_b32 s100, s97, 2")
            e("s_add_u32 s100, s100, 20")
            e("s_waitcnt lgkmcnt(0)")
            e("s_nop 3")
            e("s_mov_b32 m0, s100")
            e("s_nop 1")
            e(f"v_writelane_b32 v{VST}, s98, m0")
            e.label(f"L_nost{st}")
        e("s_mov_b64 exec, 1")
        e(f"ds_add_rtn_u32 v{VTK}, v{VZ}, v{VONE} offset:{LDS_TK}")
        e("s_mov_b64 exec, -1")
        e("s_waitcnt vmcnt(24)")
        for j in range(4):
            for T in range(2):
                c = "0" if j == 0 else vr(S+4*T, 4)
                e(f"v_mfma_f32_16x16x32_bf16 {vr(S+4*T,4)}, {vr(K+16*T+4*j,4)}, {vr(Q+4*j,4)}, {c}")
        e("s_waitcnt lgkmcnt(0)")
        e(f"v_readfirstlane_b32 s{tk}, v{VTK}")
        e(f"s_lshl_b32 s47, s{tk}, 13")
        e(f"s_cmp_ge_u32 s{tk}, {NTILE}")
        e("s_cselect_b32 s47, 0x40000000, s47")
        loadK(st, "s47")
        e(f"v_max3_f32 v{VT}, v{S}, v{S+1}, v{S+2}")
        e(f"v_max3_f32 v{VT}, v{VT}, v{S+3}, v{S+4}")
        e(f"v_max3_f32 v{VT}, v{VT}, v{S+5}, v{S+6}")
        e(f"v_max3_f32 v{VT}, v{VT}, v{S+7}, v{VM}")
        e(f"v_mov_b32 v{VT2}, v{VT}")
        e("s_nop 1")
        e(f"v_permlane16_swap_b32 v{VT}, v{VT2}")
        e("s_nop 0")
        e(f"v_max_f32 v{VT}, v{VT}, v{VT2}")
        e(f"v_mov_b32 v{VT2}, v{VT}")
        e("s_nop 1")
        e(f"v_permlane32_swap_b32 v{VT}, v{VT2}")
        e("s_nop 0")
        e(f"v_max_f32 v{VT}, v{VT}, v{VT2}")
        e(f"v_cmp_gt_f32 vcc, v{VT}, v{VM}")
        e(f"s_cbranch_vccz L_skip{st}")
        e(f"v_sub_f32 v{VD}, v{VM}, v{VT}")
        e(f"v_mul_f32 v{VD}, s42, v{VD}")
        e(f"v_exp_f32 v{VD}, v{VD}")
        e(f"v_mov_b32 v{VM}, v{VT}")
        e(f"v_mul_f32 v{VMC}, s42, v{VT}")
        e(f"v_mul_f32 v{VL}, v{VL}, v{VD}")
        for h in range(4):
            e(f"v_readlane_b32 s{48+h}, v{VD}, {h}")
        e("s_nop 1")
        for i in range(8):
            for r in range(4):
                e(f"v_mul_f32 v{O+4*i+r}, s{48+r}, v{O+4*i+r}")
        e.label(f"L_skip{st}")
        for i in range(8):
            e(f"v_fma_f32 v{S+i}, v{S+i}, s42, -v{VMC}")
        for i in range(8):
            e(f"v_exp_f32 v{S+i}, v{S+i}")
        e("s_nop 0")
        e(f"v_add_f32 v{VT}, v{S}, v{S+1}")
        e(f"v_add_f32 v{VT2}, v{S+2}, v{S+3}")
        e(f"v_add_f32 v{VD}, v{S+4}, v{S+5}")
        e(f"v_add_f32 v{VL}, v{VL}, v{VT}")
        e(f"v_add_f32 v{VT}, v{S+6}, v{S+7}")
        e(f"v_add_f32 v{VT2}, v{VT2}, v{VD}")
        e(f"v_add_f32 v{VL}, v{VL}, v{VT}")
        e(f"v_add_f32 v{VL}, v{VL}, v{VT2}")
        for k in range(4):
            e(f"v_cvt_pk_bf16_f32 v{P+k}, v{S+2*k}, v{S+2*k+1}")
        e("s_waitcnt vmcnt(24)")
        perm_mfma(e, V, TMP, O, P, 40, 41)
        loadV(st, "s47")
    e("s_branch L_loop")
    e.label("L_loopend")
    stamp(5)
    if cfg.STAMP:
        e(f"v_writelane_b32 v{VST}, s97, 12")
    e(f"v_mov_b32 v{VT}, v{VL}")
    e(f"v_mov_b32 v{VT2}, v{VL}")
    e("s_nop 1")
    e(f"v_permlane16_swap_b32 v{VT}, v{VT2}")
    e("s_nop 0")
    e(f"v_add_f32 v{VT}, v{VT}, v{VT2}")
    e(f"v_mov_b32 v{VT2}, v{VT}")
    e("s_nop 1")
    e(f"v_permlane32_swap_b32 v{VT}, v{VT2}")
    e("s_nop 0")
    e(f"v_add_f32 v{VT2}, v{VT}, v{VT2}")
    e(f"v_mov_b32 v{VT}, v{VM}")
    e("s_sub_u32 s96, s16, 4")
    e(f"v_lshlrev_b32 v12, 3, v{VLANE}")
    e("s_lshl_b32 s18, s96, 5")
    e(f"s_add_u32 s18, s18, {LDS_ML}")
    e("v_add_u32 v12, s18, v12")
    e(f"v_lshlrev_b32 v13, 5, v{VLANE}")
    e("s_lshl_b32 s18, s96, 11")
    e("v_add_u32 v13, s18, v13")
    e("s_mov_b64 exec, 0xf")
    e(f"ds_write_b64 v12, v[{VT}:{VT2}]")
    e("s_mov_b64 exec, 0xffff")
    for i in range(8):
        for r in range(4):
            e(f"ds_write_b32 v13, v{O+4*i+r} offset:{LDS_O + r*512 + i*4}")
    e("s_mov_b64 exec, -1")
    e("s_waitcnt vmcnt(0) lgkmcnt(0)")
    e("s_barrier")
    e("s_branch L_ojoin")
    e.label("L_helper")
    srd(e, 88, 76, 77, 4194304)
    e("s_lshl_b32 s17, s94, 7")
    e("s_lshl_b32 s18, s16, 5")
    e("s_add_u32 s17, s17, s18")
    e(f"v_lshl_add_u32 v14, v{VG}, 3, s17")
    e("v_lshlrev_b32 v14, 10, v14")
    e(f"v_lshl_add_u32 v14, v{VC}, 4, v14")
    e("s_lshl_b32 s17, s95, 8")
    e("v_add_u32 v14, s17, v14")
    e("v_add_u32 v15, 0x1000, v14")
    for t in range(8):
        vo = 15 if t >= 4 else 14
        e(f"buffer_load_dwordx4 {vr(VB[0]+4*t,4)}, v{vo}, s[88:91], 0 offen offset:{(t&3)*1024}")
    OP_P = 8 * 32 * NSPLIT * 1024
    ML_P = 8 * 32 * NSPLIT * 16
    e(f"ds_read_b32 v27, v{VZ} offset:{LDS_NC}")
    e(f"s_mul_i32 s17, s3, {OP_P}")
    e(f"s_add_u32 s17, s17, {WO2}")
    e("s_add_u32 s18, s12, s17")
    e("s_addc_u32 s19, s13, 0")
    srd(e, 84, 18, 19, OP_P)
    e(f"s_mul_i32 s17, s3, {ML_P}")
    e(f"s_add_u32 s17, s17, {WML2}")
    e("s_add_u32 s18, s12, s17")
    e("s_addc_u32 s19, s13, 0")
    srd(e, 56, 18, 19, ML_P)
    e(f"v_mul_u32_u24 v24, {32*NSPLIT*1024}, v{VC}")
    e("s_lshl_b32 s17, s16, 8")
    e("v_add_u32 v24, s17, v24")
    e(f"v_lshl_add_u32 v24, v{VG}, 6, v24")
    e(f"v_mul_u32_u24 v25, {32*NSPLIT*16}, v{VC}")
    e("s_lshl_b32 s18, s16, 12")
    e(f"v_lshl_add_u32 v26, v{VG}, 11, s18")
    e(f"v_lshl_add_u32 v26, v{VC}, 5, v26")
    e("s_lshl_b32 s17, s16, 3")
    e(f"v_mov_b32 v16, s17")
    e("s_lshl_b32 s17, s16, 9")
    e(f"v_lshl_add_u32 v17, v{VLANE}, 3, s17")
    e("s_lshl_b32 s18, s3, 6")
    e("s_add_u32 s18, s18, s14")
    e("s_lshl_b32 s18, s18, 2")
    e("s_add_u32 s18, s18, s16")
    e("s_lshl_b32 s18, s18, 1")
    e("s_add_u32 s18, s18, s15")
    e("s_lshl_b32 s19, s18, 10")
    e(f"s_add_u32 s19, s19, {WO2}")
    e("s_lshl_b32 s37, s18, 4")
    e(f"s_add_u32 s37, s37, {WML2}")
    e(f"v_lshlrev_b32 v23, 4, v{VLANE}")
    e("s_waitcnt lgkmcnt(0)")
    e("v_readfirstlane_b32 s46, v27")
    e("s_cmp_lg_u32 s16, 0")
    e("s_cbranch_scc1 L_noz")
    e(f"s_mov_b32 s17, {CZ}")
    poll2(e, "z", 60, "s17", 32, 9, VZ, 64)
    e.label("L_noz")
    e("s_waitcnt vmcnt(0)")
    e("s_barrier")
    NS = 4
    for w in range(NS):
        e(f"ds_read_b64 {vr(72+2*w,2)}, v16 offset:{LDS_ML + w*32}")
    for w in range(NS):
        e(f"ds_read_b64 {vr(104+2*w,2)}, v17 offset:{LDS_O + w*2048}")
    e("s_waitcnt lgkmcnt(0)")
    e("v_max_f32 v18, v72, v74")
    for w in range(2, NS):
        e(f"v_max_f32 v18, v18, v{72+2*w}")
    e("v_mov_b32 v19, 0")
    e("v_mov_b32 v20, 0")
    e("v_mov_b32 v21, 0")
    for w in range(NS):
        e(f"v_sub_f32 v22, v{72+2*w}, v18")
        e("v_mul_f32 v22, s42, v22")
        e("v_exp_f32 v22, v22")
        e("s_nop 0")
        e(f"v_fmac_f32 v19, v22, v{73+2*w}")
        e(f"v_fmac_f32 v20, v22, v{104+2*w}")
        e(f"v_fmac_f32 v21, v22, v{105+2*w}")
    e("v_mov_b32 v28, v20")
    e("v_mov_b32 v29, s46")
    e("v_mov_b32 v30, v21")
    e("v_mov_b32 v31, s46")
    e("v_mov_b32 v32, v18")
    e("v_mov_b32 v33, s46")
    e("v_mov_b32 v34, v19")
    e("v_mov_b32 v35, s46")
    e("buffer_store_dwordx4 v[28:31], v23, s[28:31], s19 offen sc1")
    e("s_mov_b64 exec, 1")
    e(f"buffer_store_dwordx4 v[32:35], v{VZ}, s[28:31], s37 offen sc1")
    e("s_mov_b64 exec, -1")
    stamp(6)
    GP = KB[0]
    GM = KB[1]
    e(f"s_mul_i32 s17, s94, {NSPLIT*1024}")
    e(f"s_mul_i32 s18, s94, {NSPLIT*16}")
    e("s_mov_b32 s38, 400000")
    e(f"v_cmp_gt_u32 vcc, 8, v{VC}")
    e("s_mov_b64 s[34:35], vcc")
    e.label("L_opoll")
    for s_ in range(NSPLIT):
        for k in range(4):
            e(f"buffer_load_dwordx4 {vr(GP+16*s_+4*k,4)}, v24, s[84:87], s17 offen offset:{s_*1024+k*16} sc1")
    for s_ in range(NSPLIT):
        e(f"buffer_load_dwordx4 {vr(GM+4*s_,4)}, v25, s[56:59], s18 offen offset:{s_*16} sc1")
    e("s_waitcnt vmcnt(0)")
    e("s_mov_b64 exec, s[34:35]")
    tagcheck([GP + 4*i for i in range(8)] + [GM, GM + 4], 19, 20, 21, 46)
    e("s_mov_b64 exec, -1")
    e("s_cbranch_vccz L_opolld")
    if cfg.SLEEP:
        e(f"s_sleep {cfg.SLEEP}")
    e("s_sub_u32 s38, s38, 1")
    e("s_cmp_lg_u32 s38, 0")
    e("s_cbranch_scc1 L_opoll")
    e.label("L_opolld")
    stamp(7)
    PB = KB[1] + 8
    MB = PB + 16
    for s_ in range(NSPLIT):
        for k in range(8):
            e(f"v_mov_b32 v{PB+8*s_+k}, v{GP+16*s_+4*(k>>1)+2*(k&1)}")
        e(f"v_mov_b32 v{MB+2*s_}, v{GM+4*s_}")
        e(f"v_mov_b32 v{MB+2*s_+1}, v{GM+4*s_+2}")
    e(f"v_max_f32 v19, v{MB}, v{MB+2}")
    for s_ in range(NSPLIT):
        e(f"v_sub_f32 v{MB+2*s_}, v{MB+2*s_}, v19")
        e(f"v_mul_f32 v{MB+2*s_}, s42, v{MB+2*s_}")
        e(f"v_exp_f32 v{MB+2*s_}, v{MB+2*s_}")
    e("s_nop 0")
    e(f"v_mul_f32 v19, v{MB}, v{MB+1}")
    e(f"v_fmac_f32 v19, v{MB+2}, v{MB+3}")
    e("v_rcp_f32 v19, v19")
    e("s_nop 0")
    for s_ in range(NSPLIT):
        e(f"v_mul_f32 v{MB+2*s_}, v{MB+2*s_}, v19")
    for k in range(8):
        e(f"v_mul_f32 v{PB+k}, v{PB+k}, v{MB}")
        e(f"v_fmac_f32 v{PB+k}, v{PB+8+k}, v{MB+2}")
    for k in range(4):
        e(f"v_cvt_pk_bf16_f32 v{P+k}, v{PB+2*k}, v{PB+2*k+1}")
    perm_mfma(e, VB[0], TMP, O, P, 40, 41, first=True)
    e("s_nop 7")
    e("s_mov_b32 exec_lo, -1")
    e("s_mov_b32 exec_hi, 0")
    for i in range(8):
        for r in range(4):
            e(f"ds_write_b32 v26, v{O+4*i+r} offset:{LDS_P + r*512+i*4}")
    e("s_mov_b64 exec, -1")
    e("s_waitcnt lgkmcnt(0)")
    e.label("L_ojoin")
    e("s_barrier")
    stamp(8)
    e("v_lshlrev_b32 v8, 2, v0")
    for u in range(2):
        for w in range(4):
            e(f"ds_read_b32 v{72+4*u+w}, v8 offset:{LDS_P + w*4096+u*2048}")
    e("v_lshrrev_b32 v9, 7, v0")
    e("v_and_b32 v10, 127, v0")
    e("v_lshlrev_b32 v9, 12, v9")
    e("v_lshl_add_u32 v9, v10, 2, v9")
    e("s_lshl_b32 s17, s3, 11")
    e("s_lshl_b32 s18, s95, 9")
    e("s_add_u32 s17, s17, s18")
    e(f"s_add_u32 s17, s17, {WACC}")
    e("s_add_u32 s18, s17, 16384")
    e("s_waitcnt lgkmcnt(0)")
    for u in range(2):
        e(f"v_add_f32 v{72+4*u}, v{72+4*u}, v{73+4*u}")
        e(f"v_add_f32 v{74+4*u}, v{74+4*u}, v{75+4*u}")
    for u in range(2):
        e(f"v_add_f32 v{72+4*u}, v{72+4*u}, v{74+4*u}")
    e("buffer_atomic_add_f32 v72, v9, s[28:31], s17 offen")
    e("buffer_atomic_add_f32 v76, v9, s[28:31], s18 offen")
    e("s_waitcnt vmcnt(0)")
    e("s_barrier")
    stamp(9)
    e("s_cmp_lg_u32 s16, 0")
    e("s_cbranch_scc1 L_fin")
    e("s_lshl_b32 s19, s95, 6")
    e("s_lshl_b32 s18, s3, 2")
    e("s_add_u32 s19, s19, s18")
    e(f"s_add_u32 s19, s19, {CF}")
    e("v_mov_b32 v8, 1")
    e("s_mov_b64 exec, 1")
    e(f"buffer_atomic_add v8, v{VZ}, s[60:63], s19 offen sc0")
    e("s_waitcnt vmcnt(0)")
    e("s_mov_b64 exec, -1")
    e("v_readfirstlane_b32 s19, v8")
    stamp(10)
    e("s_and_b32 s19, s19, 31")
    e("s_cmp_lg_u32 s19, 31")
    e("s_cbranch_scc1 L_fin")
    e(f"v_lshlrev_b32 v9, 3, v{VLANE}")
    for i in range(16):
        e(f"v_mov_b32 v{72+i}, 0")
    e("s_mov_b32 s18, s17")
    for i in range(8):
        e(f"buffer_atomic_add_f32 v{72+2*i}, v9, s[28:31], s18 offen sc0")
        e(f"buffer_atomic_add_f32 v{73+2*i}, v9, s[28:31], s18 offen offset:4 sc0")
        if i < 7:
            e("s_add_u32 s18, s18, 4096")
    srd(e, 64, 52, 53, 16384)
    e("s_lshl_b32 s18, s3, 10")
    e("s_lshl_b32 s19, s95, 8")
    e("s_add_u32 s18, s18, s19")
    e(f"v_lshlrev_b32 v10, 2, v{VLANE}")
    e("s_waitcnt vmcnt(0)")
    for i in range(8):
        e(f"v_cvt_pk_bf16_f32 v{72+2*i}, v{72+2*i}, v{73+2*i}")
        e(f"buffer_store_dword v{72+2*i}, v10, s[64:67], s18 offen")
        if i < 7:
            e("s_add_u32 s18, s18, 2048")
    stamp(11)
    e.label("L_fin")
    if cfg.STAMP:
        srd(e, 28, 12, 13, 0x800000)
        e("s_lshl_b32 s18, s2, 3")
        e("s_add_u32 s18, s18, s16")
        e("s_lshl_b32 s18, s18, 8")
        e("s_add_u32 s18, s18, 0x400000")
        e(f"v_lshlrev_b32 v9, 2, v{VLANE}")
        e(f"buffer_store_dword v{VST}, v9, s[28:31], s18 offen")
    e.label("L_end")
    e("s_endpgm")
    return name, NV, LDS_TOTAL, NWG

def main():
    cfg = Cfg()
    out = f"cdna_kernels/{NAME}.s"
    for a in sys.argv[1:]:
        if "=" in a:
            k, v = a.split("=", 1)
            if k == "out":
                out = v
            elif k == "NT":
                cfg.NT = " " + v if v else ""
            else:
                setattr(cfg, k, int(v))
    e = Emitter()
    e.raw('.amdgcn_target "amdgcn-amd-amdhsa--gfx950"')
    e.raw(".text")
    if cfg.FUSED:
        n, nv, lds, nwg = {1: gen_fused, 2: gen_fused2, 3: gen_fused3, 4: gen_fused4, 5: gen_fused5, 6: gen_fused6, 7: gen_fused7}[cfg.FUSED](e, cfg)
        e.raw('.section .rodata,"a"')
        e.raw(".p2align 6")
        kernel_desc(e, n, nv)
        hdr = HEADER + f"; @launch grid=({nwg},1,1) block=(512,1,1) lds={lds}\n"
        open(out, "w").write(hdr + e.text())
        return
    n1, nv1 = gen_qproj(e)
    n2, nv2, lds2, nwg2 = gen_attn(e, cfg)
    n3, nv3 = gen_oproj(e, cfg)
    e.raw('.section .rodata,"a"')
    for n, nv in ((n1, nv1), (n2, nv2), (n3, nv3)):
        e.raw(".p2align 6")
        kernel_desc(e, n, nv)
    hdr = HEADER
    hdr += f"; @launch kernel={n1} grid=(256,1,1) block=(256,1,1) lds=16384\n"
    hdr += f"; @launch kernel={n2} grid=({nwg2},1,1) block=({cfg.NW*64},1,1) lds={lds2}\n"
    hdr += f"; @launch kernel={n3} grid=(256,1,1) block=(256,1,1) lds=16384\n"
    open(out, "w").write(hdr + e.text())

main()
```
